```python
import torch

def _softmax(x, axis=-1):
    return torch.softmax(x, dim=axis)
def _gelu(x):
    return torch.nn.functional.gelu(x, approximate="tanh")
def _silu(x):
    return torch.nn.functional.silu(x)
def _sigmoid(x):
    return torch.sigmoid(x)
def _layernorm(x, axis=-1, eps=1e-5):
    m = x.mean(dim=axis, keepdim=True)
    v = x.var(dim=axis, keepdim=True, unbiased=False)
    return (x - m) / torch.sqrt(v + eps)
def _scatter_add(tgt, idx, src, axis=0):
    return tgt.clone().index_add_(axis, idx, src)
def _segment_sum(src, seg, n):
    out = torch.zeros((n,) + src.shape[1:], dtype=src.dtype)
    return out.index_add_(0, seg, src)
def _pad(x, pw):
    flat = tuple(v for pair in reversed(pw) for v in pair)
    return torch.nn.functional.pad(x, flat)

kernel_name = 'sequential_preLN__mha_block_cached__dense_activation_gelu__decode'

def setup_inputs():

    _w = (lambda a: (lambda t: t.to(torch.bfloat16) if t.is_floating_point() else t)(torch.as_tensor(a)))
    def _A_setup():
        B, Sq, D = 4, 1, 640
        H, Sk, Dh = 32, 8192, 192
        return {
            "x": _w((lambda *s: torch.randn(*s, dtype=torch.bfloat16) * 0.1)(B, Sq, D)),
            "k_cache": _w((lambda *s: torch.randn(*s, dtype=torch.bfloat16) * 1.6)(B, H, Sk, Dh)),
            "v_cache": _w((lambda *s: torch.randn(*s, dtype=torch.bfloat16) * 1.6)(B, H, Sk, Dh)),
            "wq": _w((lambda *s: torch.randn(*s, dtype=torch.bfloat16) * 1.6)(D, H * Dh) * (D ** -0.5)),
            "wo": _w((lambda *s: torch.randn(*s, dtype=torch.bfloat16) * 1.6)(H * Dh, D) * ((H * Dh) ** -0.5)),
        }
    _A_in = _A_setup()

    def _B_setup():
        B, S, D, F = 4, 1, 640, 1536
        return {
            "x": _w((lambda *s: torch.randn(*s, dtype=torch.bfloat16) * 0.1)(B, S, D)),
            "w1": _w((lambda *s: torch.randn(*s, dtype=torch.bfloat16) * 3.2)(D, F) * (D ** -0.5)),
            "b1": _w((lambda *s: torch.randn(*s, dtype=torch.bfloat16) * 3.2)(F) * 0.01),
            "w2": _w((lambda *s: torch.randn(*s, dtype=torch.bfloat16) * 3.2)(F, D) * (F ** -0.5)),
            "b2": _w((lambda *s: torch.randn(*s, dtype=torch.bfloat16) * 3.2)(D) * 0.01),
        }
    _B_in = _B_setup()

    return {
        "A_x": _A_in["x"],
        "A_k_cache": _A_in["k_cache"],
        "A_v_cache": _A_in["v_cache"],
        "A_wq": _A_in["wq"],
        "A_wo": _A_in["wo"],
        "B_x": _B_in["x"],
        "B_w1": _B_in["w1"],
        "B_b1": _B_in["b1"],
        "B_w2": _B_in["w2"],
        "B_b2": _B_in["b2"],
    }

def reference(A_x, A_k_cache, A_v_cache, A_wq, A_wo, B_x, B_w1, B_b1, B_w2, B_b2):
    def _A_ref(x, k_cache, v_cache, wq, wo):
        B, Sq, D = x.shape
        H, Dh = 32, 192
        q = (lambda x, *d: x.permute(*d))((x @ wq).reshape(B, Sq, H, Dh), 0, 2, 1, 3)
        scores = torch.einsum("bhqd,bhkd->bhqk", q, k_cache) * (Dh ** -0.5)
        p = _softmax(scores, axis=-1)
        o = torch.einsum("bhqk,bhkd->bhqd", p, v_cache)
        return (lambda x, *d: x.permute(*d))(o, 0, 2, 1, 3).reshape(B, Sq, H * Dh) @ wo

    def _B_ref(x, w1, b1, w2, b2):
        h = torch.einsum("bsd,df->bsf", x, w1) + b1
        h = _gelu(h)
        return torch.einsum("bsf,fd->bsd", h, w2) + b2

    x = A_x
    h = x + _A_ref(_layernorm(x, axis=-1), A_k_cache, A_v_cache, A_wq, A_wo)
    h2 = h + _B_ref(_layernorm(h, axis=-1), B_w1, B_b1, B_w2, B_b2)
    return h2
```

```python
import re

TRANS = ('v_exp_f32', 'v_log_f32', 'v_rcp_f32', 'v_rsq_f32', 'v_sqrt_f32', 'v_sin_f32', 'v_cos_f32')


def regs_of(tok):
    tok = tok.strip().lstrip('-')
    m = re.fullmatch(r'abs\((.*)\)', tok)
    if m:
        tok = m.group(1)
    m = re.fullmatch(r'\|(.*)\|', tok)
    if m:
        tok = m.group(1)
    m = re.fullmatch(r'([vs])(\d+)', tok)
    if m:
        return {(m.group(1), int(m.group(2)))}
    m = re.fullmatch(r'([vs])\[(\d+):(\d+)\]', tok)
    if m:
        return {(m.group(1), i) for i in range(int(m.group(2)), int(m.group(3)) + 1)}
    if tok == 'vcc':
        return {('s', 'vcc')}
    if tok == 'm0':
        return {('s', 'm0')}
    if tok == 'exec':
        return {('s', 'exec')}
    return set()


class Ins:
    def __init__(self, text):
        self.text = text
        t = text.split(';')[0].strip()
        self.label = t[:-1] if t.endswith(':') else None
        self.directive = t.startswith('.') and not self.label
        self.op = ''
        self.ops = []
        self.mods = ''
        if self.label or self.directive or not t:
            self.kind = 'none'
            self.rd, self.wr = set(), set()
            return
        parts = t.split(None, 1)
        self.op = parts[0]
        rest = parts[1] if len(parts) > 1 else ''
        toks = [x.strip() for x in re.split(r',(?![^\[]*\])', rest)] if rest else []
        if toks:
            last = toks[-1].split(None, 1)
            toks[-1] = last[0]
            self.mods = last[1] if len(last) > 1 else ''
        self.ops = toks
        op = self.op
        R = [regs_of(x) for x in toks]
        U = lambda xs: set().union(*xs) if xs else set()
        self.dpp = '_dpp' in op
        self.srcC = set()
        self.srcAB = set()
        if op.startswith('v_mfma'):
            self.kind = 'mfma'
            self.wr, self.rd = R[0], U(R[1:])
            self.srcC, self.srcAB = R[3], R[1] | R[2]
        elif op.startswith('v_'):
            self.kind = 'valu'
            self.wr, self.rd = set(R[0]), U(R[1:])
            if op.startswith('v_permlane'):
                self.wr = R[0] | R[1]
                self.rd = R[0] | R[1]
            if op.startswith(('v_dot2c', 'v_fmac', 'v_writelane')):
                self.rd |= R[0]
            if op.startswith('v_dot2c'):
                self.srcC, self.srcAB = R[0], R[1] | R[2]
            elif op.startswith('v_dot2'):
                self.srcC, self.srcAB = R[3], R[1] | R[2]
            if self.dpp:
                self.rd |= R[0]
        elif op.startswith('buffer_'):
            self.kind = 'vmem'
            lds = bool(re.search(r'\blds\b', self.mods))
            self.lds = lds
            if 'load' in op and not lds:
                self.wr, self.rd = R[0], U(R[1:])
                if 'd16' in op:
                    self.rd |= R[0]
            elif lds:
                self.wr, self.rd = set(), U(R) | {('s', 'm0')}
            elif 'atomic' in op:
                self.wr, self.rd = (R[0] if 'sc0' in self.mods else set()), U(R)
            else:
                self.wr, self.rd = set(), U(R)
            self.data = R[0] if ('store' in op) else set()
        elif op.startswith('ds_'):
            self.kind = 'ds'
            if op.startswith(('ds_read', 'ds_bpermute', 'ds_swizzle')) or '_rtn' in op:
                self.wr, self.rd = R[0], U(R[1:])
            else:
                self.wr, self.rd = set(), U(R)
        elif op.startswith('s_'):
            self.kind = 'salu'
            if op.startswith(('s_cmp', 's_cbranch', 's_branch', 's_waitcnt', 's_nop', 's_barrier', 's_sleep', 's_endpgm', 's_setprio')):
                self.wr, self.rd = set(), U(R)
            else:
                self.wr, self.rd = set(R[0]), U(R[1:])
        else:
            raise ValueError('unknown instruction: ' + text)

    def states(self):
        if self.kind == 'none':
            return 0
        if self.op == 's_nop':
            return int(self.ops[0], 0) + 1
        return 1


def need(p, c):
    n = 0
    vw = {r for r in p.wr if r[0] == 'v'}
    sw = {r for r in p.wr if r[0] == 's'}
    if p.kind == 'valu':
        hit = vw & c.rd
        if hit:
            if c.kind == 'valu' and (c.dpp or c.op.startswith('v_permlane')):
                n = max(n, 2)
            if c.kind == 'valu' and c.op.startswith(('v_readlane', 'v_readfirstlane')):
                n = max(n, 1)
            if c.kind == 'mfma':
                n = max(n, 2)
            if p.op.startswith(TRANS) and not c.op.startswith(TRANS):
                n = max(n, 1)
        if p.op.startswith('v_dot2'):
            if c.op == p.op:
                if vw & c.srcAB:
                    n = max(n, 3)
            elif vw & (c.rd | c.wr):
                n = max(n, 3)
        if sw & c.rd:
            if c.kind == 'valu':
                n = max(n, 4 if c.op.startswith(('v_readlane', 'v_writelane')) else 2)
            if c.kind == 'vmem':
                n = max(n, 5)
    if p.kind == 'mfma':
        if c.kind == 'mfma':
            if vw & c.srcAB:
                n = max(n, 8)
            if vw & c.srcC and (vw != c.srcC or p.op != c.op):
                n = max(n, 6)
        elif vw & (c.rd | c.wr):
            n = max(n, 8)
        if c.kind == 'valu' and (p.srcC & c.wr):
            n = max(n, 3)
    if p.kind == 'vmem' and ('x4' in p.op or 'x3' in p.op) and p.data & c.wr:
        n = max(n, 2)
    if p.kind == 'salu' and ('s', 'm0') in p.wr and c.kind == 'vmem' and c.lds:
        n = max(n, 1)
    return n


def pad(lines):
    ins = [Ins(x) for x in lines]
    changed = True
    while changed:
        changed = False
        srcs = {}
        for i, x in enumerate(ins):
            if x.op.startswith(('s_cbranch', 's_branch')):
                srcs.setdefault(x.ops[0], []).append(i)

        def short(i, c, dist, seen):
            worst = 0
            while i >= 0 and dist < 9:
                x = ins[i]
                if x.label:
                    for s in srcs.get(x.label, []):
                        if (s, dist) not in seen:
                            seen.add((s, dist))
                            worst = max(worst, short(s, c, dist, seen))
                    j = i - 1
                    while j >= 0 and ins[j].kind == 'none' and not ins[j].label:
                        j -= 1
                    if j >= 0 and ins[j].op in ('s_branch', 's_endpgm'):
                        return worst
                elif x.kind != 'none':
                    worst = max(worst, need(x, c) - dist)
                    dist += x.states()
                i -= 1
            return worst

        for i, c in enumerate(ins):
            if c.kind in ('none',):
                continue
            w = short(i - 1, c, 0, set())
            if w > 0:
                ins.insert(i, Ins(f's_nop {w - 1}'))
                changed = True
                break
    return [x.text for x in ins]


class Asm:
    def __init__(self):
        self.l = []

    def __call__(self, text):
        for line in text.split('\n'):
            line = line.strip()
            if line:
                self.l.append(line)

    def text(self):
        out = []
        for x in pad(self.l):
            out.append(x if x.endswith(':') or x.startswith('.') else '    ' + x)
        return '\n'.join(out)
```

```python
import os, sys, struct
from asmlib import Asm

NAME = 'sequential_preLN__mha_block_cached__dense_activation_gelu__decode'
KERN = NAME + '_kernel'


def f2u(x):
    return '0x%08x' % struct.unpack('<I', struct.pack('<f', x))[0]


NB_KV = 402653184
PROB = 3145728
BSTR = 100663296
ITEM = 12288
QP, OP, HP, HB, YP, CT, WS_SZ = 0x0, 0x100000, 0x200000, 0x280000, 0x300000, 0x380000, 0x400000
L_W = 0
L_W2 = 40960
L_ACT = 81920
L_Q = 87040
L_PART = 88576
PARTP = 784
L_NONCE = 101120
L_FP = 101184
L_A2 = 103232
LDS_SZ = 103680
SK, SV, SWS, SDBG, SX, SWQ, SWO, SW1, SW2, SOUT, SB1, SB2 = [f's[{i}:{i+3}]' for i in range(8, 56, 4)]
SRD = {'K': (8, 8, NB_KV), 'V': (12, 16, NB_KV), 'WS': (16, 96, WS_SZ), 'DBG': (20, 88, 256), 'X': (24, 0, 5120),
       'WQ': (28, 24, 7864320), 'WO': (32, 32, 7864320), 'W1': (36, 48, 1966080), 'W2': (40, 64, 1966080),
       'OUT': (44, 80, 5120), 'B1': (48, 56, 3072), 'B2': (52, 72, 1280)}
sWAVE, sH, sJ = 's3', 's4', 's5'
sCUR, sNEXT, sSTAT, sN, sDYN, sPB = 's56', 's57', 's58', 's59', 's60', 's61'
sT = ['s64', 's65', 's66', 's67']
sSPIN, s80, sHI, sLOG2E = 's68', 's69', 's70', 's71'
sA, sB, sC, sD = 's72', 's73', 's74', 's75'
sW = [f's{i}' for i in range(76, 84)]
SPIN = 1 << 16
DPPM = 'row_mask:0xf bank_mask:0xf'


def gen(diag=False, NSTAT=24, inter=True, pol='nt'):
    a = Asm()
    nstamp = [0]

    def stamp(i):
        if diag:
            a(f's_memrealtime s[{84 + 2 * i}:{85 + 2 * i}]')

    def allreduce(op, r, t, low=True):
        if low:
            a(f'{op}_dpp {r}, {r}, {r} quad_perm:[1,0,3,2] {DPPM}')
            a(f'{op}_dpp {r}, {r}, {r} quad_perm:[2,3,0,1] {DPPM}')
            a(f'{op}_dpp {r}, {r}, {r} row_half_mirror {DPPM}')
        a(f'{op}_dpp {r}, {r}, {r} row_ror:8 {DPPM}')
        for sw in ('v_permlane16_swap_b32', 'v_permlane32_swap_b32'):
            a(f'v_mov_b32 {t}, {r}')
            a(f'{sw} {r}, {t}')
            a(f'{op} {r}, {r}, {t}')

    def rbf(r):
        a(f'v_cvt_pk_bf16_f32 {r}, {r}, {r}')
        a(f'v_and_b32 {r}, {sHI}, {r}')

    def layernorm(X, T, vaddr):
        x = [f'v{X + i}' for i in range(10)]
        d = [f'v{T + i}' for i in range(10)]
        m, v, t, r = [f'v{T + 10 + i}' for i in range(4)]
        for i in range(5):
            a(f'v_add_f32 {d[i]}, {x[2 * i]}, {x[2 * i + 1]}')
        a(f'v_add_f32 {d[0]}, {d[0]}, {d[1]}\nv_add_f32 {d[2]}, {d[2]}, {d[3]}')
        a(f'v_add_f32 {d[0]}, {d[0]}, {d[4]}\nv_add_f32 {m}, {d[0]}, {d[2]}')
        allreduce('v_add_f32', m, t)
        a(f'v_mul_f32 {m}, {f2u(1 / 640)}, {m}')
        for i in range(10):
            a(f'v_sub_f32 {d[i]}, {x[i]}, {m}')
        a(f'v_mul_f32 {v}, {d[0]}, {d[0]}\nv_mul_f32 {r}, {d[1]}, {d[1]}')
        for i in range(2, 10):
            a(f'v_fmac_f32 {v if i % 2 == 0 else r}, {d[i]}, {d[i]}')
        a(f'v_add_f32 {v}, {v}, {r}')
        rbf(m)
        allreduce('v_add_f32', v, t)
        for i in range(10):
            a(f'v_sub_f32 {d[i]}, {x[i]}, {m}')
        a(f'v_mul_f32 {v}, {f2u(1 / 640)}, {v}')
        rbf(v)
        a(f'v_add_f32 {v}, {f2u(1e-5)}, {v}')
        rbf(v)
        a(f'v_sqrt_f32 {v}, {v}')
        for i in range(5):
            a(f'v_cvt_pk_bf16_f32 {x[i]}, {d[2 * i]}, {d[2 * i + 1]}')
        rbf(v)
        a(f'v_rcp_f32 {r}, {v}')
        for i in range(5):
            a(f'v_lshlrev_b32 {d[2 * i]}, 16, {x[i]}\nv_and_b32 {d[2 * i + 1]}, {sHI}, {x[i]}')
        for i in range(10):
            a(f'v_mul_f32 {d[i]}, {d[i]}, {r}')
        for i in range(5):
            a(f'v_cvt_pk_bf16_f32 {x[i]}, {d[2 * i]}, {d[2 * i + 1]}')
            a(f'ds_write_b32 {vaddr}, {x[i]} offset:{i * 256}')

    def tag(base, n, vM):
        for i in range(n):
            a(f'v_bfi_b32 v{base + i}, {vM}, {sT[i % 4]}, v{base + i}')

    def check(base, n, chk, label, done):
        a(f'v_xor_b32 {chk}, {sT[0]}, v{base}')
        for i in range(1, n):
            a(f'v_bitop3_b32 {chk}, {chk}, v{base + i}, {sT[i % 4]} bitop3:0xf6')
        a(f'v_and_b32 {chk}, 0xff, {chk}')
        a(f'v_cmp_ne_u32 vcc, 0, {chk}')
        a(f's_sub_u32 {sSPIN}, {sSPIN}, 1')
        a(f's_cbranch_scc1 {done}')
        a(f's_cbranch_vccnz {label}')
        a(f'{done}:')

    def clean(base, n, vM):
        for i in range(n):
            a(f'v_bfi_b32 v{base + i}, {vM}, {s80}, v{base + i}')

    def read_nonce(t):
        a(f'v_mov_b32 {t}, {L_NONCE}')
        a(f'ds_read_b32 {t}, {t}')
        a('s_waitcnt lgkmcnt(0)')
        a(f'v_readfirstlane_b32 {sT[0]}, {t}')
        a(f's_nop 1')
        for i in (1, 2, 3):
            a(f's_lshr_b32 {sT[i]}, {sT[0]}, {8 * i}')

    a(f'{KERN}:')
    a('s_cmp_ge_u32 s2, 256\ns_cbranch_scc1 L_end')
    for k in ('X', 'WQ', 'K', 'DBG', 'WS', 'V', 'WO', 'W1', 'W2', 'OUT', 'B1', 'B2'):
        r, off, _ = SRD[k]
        a(f's_load_dwordx2 s[{r}:{r + 1}], s[0:1], {off}')
    a('s_memrealtime s[62:63]')
    stamp(0)
    a('v_lshrrev_b32 v1, 6, v0\nv_and_b32 v0, 63, v0')
    a(f'v_readfirstlane_b32 {sWAVE}, v1')
    for k, (r, off, sz) in SRD.items():
        a(f's_mov_b32 s{r + 2}, {sz}\ns_mov_b32 s{r + 3}, 0x20000')
    a(f's_lshr_b32 {sH}, s2, 3\ns_and_b32 {sJ}, s2, 7')
    a(f's_mov_b32 {s80}, 0x80\ns_mov_b32 {sHI}, 0xffff0000\ns_mov_b32 {sLOG2E}, {f2u(1.4426950408889634)}')
    a(f's_mov_b32 {sSPIN}, {SPIN}')
    a(f's_cmp_ge_u32 {sWAVE}, 4\ns_cbranch_scc1 L_stream')

    a(f's_mul_i32 {sA}, {sWAVE}, 1280')
    a('v_lshlrev_b32 v1, 2, v0')
    a('v_lshrrev_b32 v2, 3, v0\nv_mul_u32_u24 v2, 12288, v2\nv_and_b32 v3, 7, v0\nv_lshl_add_u32 v2, v3, 4, v2')
    a(f's_mul_i32 {sB}, {sJ}, {80 * 12288}\ns_mul_i32 {sC}, {sH}, 384\ns_add_u32 {sB}, {sB}, {sC}')
    a(f's_lshl_b32 {sC}, {sWAVE}, 7\ns_add_u32 {sB}, {sB}, {sC}')
    a(f's_mul_i32 {sC}, {sWAVE}, 10240')
    a('v_mov_b32 v4, 0')
    a('s_waitcnt lgkmcnt(0)')
    for i in range(5):
        a(f'buffer_load_dword v{10 + i}, v1, {SX}, {sA} offen offset:{i * 256}')
    a(f's_cmp_eq_u32 {sWAVE}, 3\ns_cbranch_scc1 L_h3')
    for u in range(10):
        a(f's_mov_b32 m0, {sC}')
        a(f'buffer_load_dwordx4 v2, {SWQ}, {sB} offen nt lds')
        if u < 9:
            a(f's_add_u32 {sB}, {sB}, {8 * 12288}\ns_add_u32 {sC}, {sC}, 1024')
    a('s_waitcnt vmcnt(10)')
    a('s_branch L_hln')
    a('L_h3:')
    a('s_mov_b64 exec, 1')
    a('s_cmp_lg_u32 s2, 0\ns_cbranch_scc1 L_h3a')
    a(f's_mul_i32 {sB}, s62, 0x9e3779b1\ns_or_b32 {sB}, {sB}, 1\nv_mov_b32 v5, {sB}')
    a(f'buffer_store_dword v5, v4, {SDBG}, 0 offen sc1')
    a('L_h3a:')
    a(f's_cmp_lg_u32 {sJ}, 0\ns_cbranch_scc1 L_h3b')
    a(f's_lshl_b32 {sB}, {sH}, 8\ns_add_u32 {sB}, {sB}, {CT}')
    a(f'buffer_store_dword v4, v4, {SWS}, {sB} offen sc1')
    a('L_h3b:')
    a(f'buffer_load_dword v6, v4, {SDBG}, 0 offen sc1')
    a('s_mov_b64 exec, -1')
    a('s_waitcnt vmcnt(0)')
    a('L_hln:')
    stamp(1)
    for i in range(5):
        a(f'v_lshlrev_b32 v{20 + 2 * i}, 16, v{10 + i}\nv_and_b32 v{21 + 2 * i}, {sHI}, v{10 + i}')
    a(f'v_add_u32 v7, {sA}, v1\nv_add_u32 v7, {L_ACT}, v7')
    layernorm(20, 30, 'v7')
    a(f's_cmp_lg_u32 {sWAVE}, 3\ns_cbranch_scc1 L_hb1')
    a('s_mov_b64 exec, 1')
    a('L_np:')
    a('v_cmp_eq_u32 vcc, 0, v6')
    a('s_cbranch_vccz L_npd')
    a(f's_sub_u32 {sSPIN}, {sSPIN}, 1\ns_cbranch_scc1 L_npd')
    a(f'buffer_load_dword v6, v4, {SDBG}, 0 offen sc1')
    a('s_waitcnt vmcnt(0)')
    a('s_branch L_np')
    a('L_npd:')
    a(f'v_mov_b32 v5, {L_NONCE}\nds_write_b32 v5, v6')
    a('s_mov_b64 exec, -1')
    a('L_hb1:')
    a('s_waitcnt lgkmcnt(0)\ns_barrier')
    stamp(2)
    a(f's_mov_b32 {sSPIN}, {SPIN}')
    a(f's_cmp_eq_u32 {sWAVE}, 3\ns_cbranch_scc1 L_hb2')
    a('v_and_b32 v2, 3, v0\nv_mul_u32_u24 v3, 1280, v2\nv_lshrrev_b32 v5, 4, v0\nv_lshl_add_u32 v3, v5, 3, v3')
    a(f's_mul_i32 {sB}, {sJ}, 160\ns_add_u32 {sB}, {sB}, {L_ACT}\nv_add_u32 v3, {sB}, v3')
    a('ds_read2_b64 v[10:13], v3 offset0:0 offset1:4')
    a('ds_read2_b64 v[14:17], v3 offset0:8 offset1:12')
    a('ds_read_b64 v[18:19], v3 offset:128')
    a(f'v_lshrrev_b32 v5, 2, v0\nv_lshlrev_b32 v5, 7, v5\nv_lshl_add_u32 v5, v2, 3, v5')
    a(f's_mul_i32 {sC}, {sWAVE}, 10240\nv_add_u32 v5, {sC}, v5')
    read_nonce('v6')
    a('s_waitcnt vmcnt(0)')
    stamp(3)
    for qs in ((4,), (0, 1), (2, 3)):
        for T in range(4):
            for q in qs:
                r = 20 + T * 12 + q * 2
                a(f'ds_read_b64_tr_b16 v[{r}:{r + 1}], v5 offset:{q * 2048 + T * 32}')
    a('v_mov_b32 v9, 0xff')
    a(f's_mul_i32 {sB}, s2, 3072\ns_lshl_b32 {sC}, {sWAVE}, 10\ns_add_u32 {sB}, {sB}, {sC}')
    if QP:
        a(f's_add_u32 {sB}, {sB}, {QP}')
    a('v_lshlrev_b32 v8, 4, v0')
    a('s_waitcnt lgkmcnt(15)')
    for T in range(4):
        r, d = 20 + T * 12, 68 + T * 4
        a(f'v_mfma_f32_16x16x16_bf16 v[{d}:{d + 3}], v[18:19], v[{r + 8}:{r + 9}], 0')
    for kk in range(2):
        a(f's_waitcnt lgkmcnt({8 - 8 * kk})')
        for T in range(4):
            r, d = 20 + T * 12 + 4 * kk, 68 + T * 4
            a(f'v_mfma_f32_16x16x32_bf16 v[{d}:{d + 3}], v[{10 + 4 * kk}:{13 + 4 * kk}], v[{r}:{r + 3}], v[{d}:{d + 3}]')
    a('s_mov_b64 exec, 0xffff')
    for T in range(4):
        d = 68 + T * 4
        tag(d, 4, 'v9')
        a(f'buffer_store_dwordx4 v[{d}:{d + 3}], v8, {SWS}, {sB} offen offset:{T * 256} sc1')
    a('s_mov_b64 exec, -1')
    stamp(4)
    a(f's_mul_i32 {sB}, {sH}, {8 * 3072}\ns_add_u32 {sB}, {sB}, {sC}')
    if QP:
        a(f's_add_u32 {sB}, {sB}, {QP}')
    a('L_qg:')
    for m in range(8):
        a(f's_add_u32 {sD}, {sB}, {m * 3072}')
        a(f'buffer_load_dwordx4 v[{20 + 4 * m}:{23 + 4 * m}], v8, {SWS}, {sD} offen sc1')
    a('s_waitcnt vmcnt(0)')
    check(20, 32, 'v10', 'L_qg', 'L_qgd')
    clean(20, 32, 'v9')
    for st in (16, 8, 4):
        for i in range(st):
            a(f'v_add_f32 v{20 + i}, v{20 + i}, v{20 + st + i}')
    a('v_cvt_pk_bf16_f32 v20, v20, v21\nv_cvt_pk_bf16_f32 v22, v22, v23')
    a(f's_lshl_b32 {sC}, {sWAVE}, 7\ns_add_u32 {sC}, {sC}, {L_Q}')
    a(f'v_lshl_add_u32 v3, v0, 1, {sC}')
    a('ds_write_b16 v3, v20\nds_write_b16_d16_hi v3, v20 offset:384')
    a('ds_write_b16 v3, v22 offset:768\nds_write_b16_d16_hi v3, v22 offset:1152')
    a('L_hb2:')
    a('s_waitcnt lgkmcnt(0)\ns_barrier')
    stamp(5)
    read_nonce('v6')
    a(f's_cmp_ge_u32 {sJ}, 5\ns_cbranch_scc1 L_dma_ffn')
    a('v_lshrrev_b32 v2, 4, v0\nv_mul_u32_u24 v2, 1280, v2\nv_and_b32 v3, 15, v0\nv_lshl_add_u32 v2, v3, 4, v2')
    a(f's_mul_i32 {sB}, {sH}, {192 * 1280}\ns_lshl_b32 {sC}, {sJ}, 8\ns_add_u32 {sB}, {sB}, {sC}')
    a(f's_mul_i32 {sC}, {sWAVE}, {48 * 1280}\ns_add_u32 {sB}, {sB}, {sC}')
    a(f's_mul_i32 {sC}, {sWAVE}, {12 * 1024}')
    for u in range(12):
        a(f's_mov_b32 m0, {sC}')
        a(f'buffer_load_dwordx4 v2, {SWO}, {sB} offen nt lds')
        if u < 11:
            a(f's_add_u32 {sB}, {sB}, {4 * 1280}\ns_add_u32 {sC}, {sC}, 1024')
    a('s_branch L_hb3')
    a('L_dma_ffn:')
    a(f's_cmp_ge_u32 {sH}, 16\ns_cbranch_scc1 L_hb3')
    a(f's_sub_u32 {sA}, {sJ}, 5\ns_lshl_b32 {sA}, {sA}, 4\ns_add_u32 {sA}, {sA}, {sH}')
    a('v_lshrrev_b32 v2, 2, v0\nv_mul_u32_u24 v2, 3072, v2\nv_and_b32 v3, 3, v0\nv_lshl_add_u32 v2, v3, 4, v2')
    a(f's_lshl_b32 {sB}, {sA}, 6\ns_mul_i32 {sC}, {sWAVE}, {160 * 3072}\ns_add_u32 {sB}, {sB}, {sC}')
    a(f's_mul_i32 {sC}, {sWAVE}, 10240')
    for u in range(10):
        a(f's_mov_b32 m0, {sC}')
        a(f'buffer_load_dwordx4 v2, {SW1}, {sB} offen nt lds')
        if u < 9:
            a(f's_add_u32 {sB}, {sB}, {16 * 3072}\ns_add_u32 {sC}, {sC}, 1024')
    a('v_lshlrev_b32 v2, 4, v0')
    a(f's_mul_i32 {sC}, {sWAVE}, 10240\ns_mul_i32 {sB}, {sA}, 40960\ns_add_u32 {sB}, {sB}, {sC}\ns_add_u32 {sC}, {sC}, {L_W2}')
    for u in range(10):
        a(f's_mov_b32 m0, {sC}')
        a(f'buffer_load_dwordx4 v2, {SW2}, {sB} offen nt lds')
        if u < 9:
            a(f's_add_u32 {sB}, {sB}, 1024\ns_add_u32 {sC}, {sC}, 1024')
    a('L_hb3:')
    a('s_waitcnt vmcnt(0)')
    a('s_branch L_tail')

    Q, ACC, AD, S, P, TM, RING = 8, 20, 44, 52, 56, 64, 68
    vMC, vL = 'v6', 'v7'

    def ld_tile(t, srd, soff):
        for i in range(3):
            r = RING + t * 12 + i * 4
            a(f'buffer_load_dwordx4 v[{r}:{r + 3}], v{1 + t // 2}, {srd}, {soff} offen offset:{(t % 2) * 3072 + i * 128} {pol}')

    def reset_state():
        for i in range(24):
            a(f'v_mov_b32 v{ACC + i}, 0')
        a(f'v_mov_b32 {vL}, 0\nv_mov_b32 {vMC}, 0xff7fffff')

    def load_q():
        for i in range(3):
            a(f'ds_read_b128 v[{Q + 4 * i}:{Q + 4 * i + 3}], v5 offset:{i * 128}')

    a('L_stream:')
    a('v_lshrrev_b32 v1, 3, v0\nv_mul_u32_u24 v1, 384, v1\nv_and_b32 v5, 7, v0\nv_lshlrev_b32 v5, 4, v5\nv_add_u32 v1, v1, v5')
    a('v_add_u32 v2, 6144, v1')
    a(f's_sub_u32 {sA}, {sWAVE}, 4')
    a(f's_mul_i32 {sB}, {sH}, {PROB}')
    a(f's_lshl_b32 {sC}, {sJ}, {2 if inter else 5}\ns_add_u32 {sC}, {sC}, {sA}\ns_mul_i32 {sC}, {sC}, {ITEM}')
    a(f's_add_u32 {sCUR}, {sB}, {sC}')
    a('s_waitcnt lgkmcnt(0)')
    for t in range(4):
        ld_tile(t, SK, sCUR)
    ISTR = 32 * ITEM if inter else 4 * ITEM
    assert inter or NSTAT == 24
    a(f's_add_u32 {sSTAT}, {sCUR}, {ISTR}')
    a(f's_mov_b32 {sN}, 1')
    a(f's_add_u32 {sDYN}, {sB}, {3 * BSTR + (NSTAT - 24) * 32 * ITEM}')
    NDYN = 256 - (NSTAT - 24) * 32
    a(f's_lshl_b32 {sC}, {sH}, 8\ns_add_u32 {sC}, {sC}, {CT}\nv_mov_b32 v3, {sC}')
    a(f'v_add_u32 v5, {L_Q}, v5')
    a(f's_mul_i32 {sPB}, {sA}, {4 * PARTP}\ns_add_u32 {sPB}, {sPB}, {L_PART}')
    reset_state()
    a('v_mov_b32 v4, 0')
    a('s_barrier')
    a('s_barrier')
    stamp(1)
    load_q()
    read_nonce(f'v{TM}')
    a('L_item:')
    for t in range(4):
        a('s_waitcnt vmcnt(9)')
        for k in range(12):
            acc = f'v{AD + 2 * t + k % 2}'
            a(f'v_dot2_f32_bf16 {acc}, v{RING + t * 12 + k}, v{Q + k}, {acc if k >= 2 else 0}')
        if t == 0:
            a(f's_cmp_lt_u32 {sN}, {NSTAT}\ns_cbranch_scc1 L_noclaim')
            a('v_mov_b32 v4, 1\ns_mov_b64 exec, 1')
            a(f'buffer_atomic_add v4, v3, {SWS}, 0 offen sc0 sc1')
            a('s_mov_b64 exec, -1')
            a('L_noclaim:')
        ld_tile(t, SV, sCUR)
    s = [f'v{S + t}' for t in range(4)]
    t0, t1, t2, t3 = [f'v{TM + i}' for i in range(4)]
    for t in range(4):
        a(f'v_add_f32 {s[t]}, v{AD + 2 * t}, v{AD + 2 * t + 1}')
    for mode in ('quad_perm:[1,0,3,2]', 'quad_perm:[2,3,0,1]', 'row_half_mirror'):
        for t in range(4):
            a(f'v_add_f32_dpp {s[t]}, {s[t]}, {s[t]} {mode} {DPPM}')
    for rnd in range(2):
        a(f'v_cvt_pk_bf16_f32 {t0}, {s[0]}, {s[1]}\nv_cvt_pk_bf16_f32 {t1}, {s[2]}, {s[3]}')
        a(f'v_lshlrev_b32 {s[0]}, 16, {t0}\nv_and_b32 {s[1]}, {sHI}, {t0}')
        a(f'v_lshlrev_b32 {s[2]}, 16, {t1}\nv_and_b32 {s[3]}, {sHI}, {t1}')
        if rnd == 0:
            for t in range(4):
                a(f'v_mul_f32 {s[t]}, {f2u(192 ** -0.5)}, {s[t]}')
    a(f'v_max3_f32 {t0}, {s[0]}, {s[1]}, {s[2]}\nv_max_f32 {t0}, {t0}, {s[3]}')
    a(f'v_mul_f32 {t0}, {sLOG2E}, {t0}\nv_max_f32 {t0}, {t0}, {vMC}')
    a(f'v_sub_f32 {t2}, {vMC}, {t0}\nv_mov_b32 {vMC}, {t0}')
    for t in range(4):
        a(f'v_fma_f32 {s[t]}, {s[t]}, {sLOG2E}, -{t0}')
    a(f'v_exp_f32 {t2}, {t2}')
    for t in range(4):
        a(f'v_exp_f32 {s[t]}, {s[t]}')
    for i in range(12):
        a(f'v_pk_mul_f32 v[{ACC + 2 * i}:{ACC + 2 * i + 1}], v[{ACC + 2 * i}:{ACC + 2 * i + 1}], v[{TM + 2}:{TM + 3}] op_sel_hi:[1,0]')
    for t in range(4):
        a(f'v_cvt_pk_bf16_f32 v{P + 2 * t}, {s[t]}, 0')
    for t in range(4):
        a(f'v_lshlrev_b32 v{P + 2 * t + 1}, 16, v{P + 2 * t}')
    a(f'v_fma_f32 {vL}, {vL}, {t2}, v{P + 1}')
    a(f'v_add_f32 {t0}, v{P + 3}, v{P + 5}\nv_add_f32 {vL}, {vL}, v{P + 7}\nv_add_f32 {vL}, {vL}, {t0}')
    for t in range(4):
        a('s_waitcnt vmcnt(9)')
        if t == 0:
            a(f'v_readfirstlane_b32 {sA}, v4')
        for k in range(12):
            for hl in range(2):
                a(f'v_dot2c_f32_bf16 v{ACC + (k // 4) * 8 + (k % 4) * 2 + hl}, v{RING + t * 12 + k}, v{P + 2 * t + hl}')
        if t == 0:
            a(f's_mul_i32 {sB}, {sA}, {ITEM}\ns_add_u32 {sB}, {sB}, {sDYN}')
            a(f's_cmp_lt_u32 {sA}, {NDYN}\ns_cselect_b32 {sB}, {sB}, {NB_KV}')
            a(f's_cmp_lt_u32 {sN}, {NSTAT}\ns_cselect_b32 {sNEXT}, {sSTAT}, {sB}')
            a(f's_add_u32 {sN}, {sN}, 1')
            a(f's_and_b32 {sA}, {sN}, 7\ns_cselect_b32 {sA}, 0, {BSTR - 8 * ISTR}')
            a(f's_add_u32 {sSTAT}, {sSTAT}, {sA}\ns_add_u32 {sSTAT}, {sSTAT}, {ISTR}')
        ld_tile(t, SK, sNEXT)
    a(f's_mov_b32 {sCUR}, {sNEXT}')
    a(f's_cmp_ge_u32 {sCUR}, {NB_KV}\ns_cbranch_scc1 L_flush')
    a(f's_cmp_gt_u32 {sN}, 25\ns_cbranch_scc1 L_item')
    a(f's_and_b32 {sA}, {sN}, 7\ns_cmp_lg_u32 {sA}, 1\ns_cbranch_scc1 L_item')
    a('L_flush:')
    M, LL = f'v{TM}', f'v{TM + 1}'
    a(f'v_mov_b32 {M}, {vMC}')
    allreduce('v_max_f32', M, t3, low=False)
    a(f'v_sub_f32 {t2}, {vMC}, {M}\nv_exp_f32 {t2}, {t2}')
    a(f'v_and_b32 v{S}, 7, v0\nv_lshlrev_b32 v{S}, 5, v{S}\nv_lshrrev_b32 v{S + 1}, 4, v0\nv_lshl_add_u32 v{S}, v{S + 1}, 3, v{S}')
    a(f'v_add_u32 v{S}, {sPB}, v{S}\nv_mov_b32 v{S + 1}, {sPB}')
    a(f'v_mul_f32 {LL}, {vL}, {t2}')
    for i in range(12):
        a(f'v_pk_mul_f32 v[{ACC + 2 * i}:{ACC + 2 * i + 1}], v[{ACC + 2 * i}:{ACC + 2 * i + 1}], v[{TM + 2}:{TM + 3}] op_sel_hi:[1,0]')
    allreduce('v_add_f32', LL, t3, low=False)
    for sw, es, dl in (('v_permlane16_swap_b32', (0, 1, 4, 5), 2), ('v_permlane32_swap_b32', (0, 1), 4)):
        for i in range(3):
            for e in es:
                a(f'{sw} v{ACC + 8 * i + e}, v{ACC + 8 * i + e + dl}')
        for i in range(3):
            for e in es:
                a(f'v_add_f32 v{ACC + 8 * i + e}, v{ACC + 8 * i + e}, v{ACC + 8 * i + e + dl}')
    for i in range(3):
        for e in (0, 1):
            r = f'v{ACC + 8 * i + e}'
            a(f'v_add_f32_dpp {r}, {r}, {r} row_ror:8 {DPPM}')
    for i in range(3):
        a(f'ds_write_b64 v{S}, v[{ACC + 8 * i}:{ACC + 8 * i + 1}] offset:{i * 256}')
    a(f'ds_write_b64 v{S + 1}, v[{TM}:{TM + 1}] offset:768')
    a(f's_add_u32 {sPB}, {sPB}, {PARTP}')
    a('v_add_u32 v5, 384, v5')
    a('s_waitcnt lgkmcnt(0)')
    reset_state()
    a(f's_sub_u32 {sA}, {sWAVE}, 3\ns_mul_i32 {sA}, {sA}, {4 * PARTP}\ns_add_u32 {sA}, {sA}, {L_PART}')
    a(f's_cmp_ge_u32 {sPB}, {sA}\ns_cbranch_scc1 L_sdone')
    a(f's_cmp_ge_u32 {sCUR}, {NB_KV}\ns_cbranch_scc1 L_flush')
    load_q()
    a('s_waitcnt lgkmcnt(0)')
    a('s_branch L_item')
    a('L_sdone:')
    a('s_waitcnt vmcnt(0)')
    stamp(2)

    a('L_tail:')
    a('s_barrier')
    stamp(6)
    a(f's_mov_b32 {sSPIN}, {SPIN}')
    a('v_mov_b32 v9, 0xff\nv_lshlrev_b32 v8, 4, v0')
    a(f's_cmp_ge_u32 {sWAVE}, 4\ns_cbranch_scc1 L_s1done')
    a(f's_mul_i32 {sA}, {sWAVE}, {PARTP}\ns_add_u32 {sA}, {sA}, {L_PART}')
    a(f'v_add_u32 v1, {sA}, v8\nv_mov_b32 v2, {sA}')
    for w in range(4):
        a(f'ds_read_b64 v[{10 + 2 * w}:{11 + 2 * w}], v2 offset:{w * 4 * PARTP + 768}')
    for w in range(4):
        a(f'ds_read_b128 v[{20 + 4 * w}:{23 + 4 * w}], v1 offset:{w * 4 * PARTP}')
    a(f's_lshl_b32 {sB}, s2, 12\ns_lshl_b32 {sC}, {sWAVE}, 10\ns_add_u32 {sC}, {sC}, {OP}\ns_add_u32 {sB}, {sB}, {sC}')
    a('v_cmp_eq_u32 vcc, 48, v0')
    a('s_waitcnt lgkmcnt(4)')
    a('v_max3_f32 v18, v10, v12, v14\nv_max_f32 v18, v18, v16')
    for w in range(4):
        a(f'v_sub_f32 v{10 + 2 * w}, v{10 + 2 * w}, v18')
    for w in range(4):
        a(f'v_exp_f32 v{10 + 2 * w}, v{10 + 2 * w}')
    a('v_mul_f32 v19, v10, v11')
    for w in range(1, 4):
        a(f'v_fmac_f32 v19, v{10 + 2 * w}, v{11 + 2 * w}')
    a('s_waitcnt lgkmcnt(0)')
    for k in range(4):
        a(f'v_mul_f32 v{20 + k}, v10, v{20 + k}')
    for w in range(1, 4):
        for k in range(4):
            a(f'v_fmac_f32 v{20 + k}, v{10 + 2 * w}, v{20 + 4 * w + k}')
    a('v_lshlrev_b32 v17, 8, v18')
    a('v_cndmask_b32 v20, v20, v18, vcc\nv_cndmask_b32 v21, v21, v19, vcc\nv_cndmask_b32 v22, v22, v17, vcc')
    tag(20, 4, 'v9')
    a('s_mov_b32 exec_hi, 0x1ffff')
    a(f'buffer_store_dwordx4 v[20:23], v8, {SWS}, {sB} offen sc1')
    a('s_mov_b32 exec_hi, -1')
    a('L_s1done:')
    a(f's_cmp_ge_u32 {sJ}, 5\ns_cbranch_scc1 L_not_s2')

    a('v_lshrrev_b32 v1, 2, v0\nv_lshlrev_b32 v1, 8, v1\nv_and_b32 v2, 3, v0\nv_lshl_add_u32 v1, v2, 3, v1')
    a(f's_lshl_b32 {sA}, {sWAVE}, 5\nv_add_u32 v1, {sA}, v1')
    a(f'v_mul_u32_u24 v2, 1280, v2\nv_lshrrev_b32 v3, 4, v0\nv_lshl_add_u32 v2, v3, 3, v2\nv_add_u32 v2, {L_ACT}, v2')
    a(f's_cmp_ge_u32 {sWAVE}, 4\ns_cbranch_scc1 L_s2pre')
    a(f's_lshl_b32 {sB}, {sH}, 15\ns_add_u32 {sB}, {sB}, {sC}')
    a('s_mov_b32 exec_hi, 0x1ffff')
    a('L_og:')
    for m in range(8):
        a(f's_add_u32 {sD}, {sB}, {m * 4096}')
        a(f'buffer_load_dwordx4 v[{24 + 4 * m}:{27 + 4 * m}], v8, {SWS}, {sD} offen sc1')
    a('s_waitcnt vmcnt(0)')
    check(24, 32, 'v10', 'L_og', 'L_ogd')
    stamp(3)
    for m in range(8):
        a(f'v_lshrrev_b32 v{10 + m}, 8, v{26 + 4 * m}')
        a(f'v_bfi_b32 v{10 + m}, v9, v{10 + m}, v{24 + 4 * m}')
    clean(24, 32, 'v9')
    a('v_max3_f32 v18, v10, v11, v12\nv_max3_f32 v19, v13, v14, v15\nv_max3_f32 v18, v18, v16, v17\nv_max_f32 v18, v18, v19')
    for m in range(8):
        a(f'v_sub_f32 v{10 + m}, v{10 + m}, v18')
    for m in range(8):
        a(f'v_exp_f32 v{10 + m}, v{10 + m}')
    a('v_mul_f32 v18, v10, v25\nv_mul_f32 v19, v11, v29')
    for m in range(2, 8):
        a(f'v_fmac_f32 v{18 + m % 2}, v{10 + m}, v{25 + 4 * m}')
    a('v_add_f32 v18, v18, v19\nv_rcp_f32 v18, v18')
    for m in range(8):
        a(f'v_mul_f32 v{10 + m}, v{10 + m}, v18')
    for m in range(8):
        a(f'v_readlane_b32 {sW[m]}, v{10 + m}, 48')
    for k in range(4):
        a(f'v_mul_f32 v{20 + k}, {sW[0]}, v{24 + k}')
    for m in range(1, 8):
        for k in range(4):
            a(f'v_fmac_f32 v{20 + k}, {sW[m]}, v{24 + 4 * m + k}')
    a('v_cvt_pk_bf16_f32 v20, v20, v21\nv_cvt_pk_bf16_f32 v21, v22, v23')
    a(f's_mul_i32 {sA}, {sWAVE}, 1280\ns_add_u32 {sA}, {sA}, {L_ACT}\nv_lshl_add_u32 v3, v0, 3, {sA}')
    a('ds_write_b64 v3, v[20:21]')
    a('s_mov_b32 exec_hi, -1')
    a('L_s2pre:')
    for s_ in range(6):
        for q in range(2):
            r = 60 + s_ * 4 + q * 2
            a(f'ds_read_b64_tr_b16 v[{r}:{r + 1}], v1 offset:{s_ * 8192 + q * 4096}')
    a(f's_mul_i32 {sB}, {sH}, 10240\ns_lshl_b32 {sC}, {sJ}, 11\ns_add_u32 {sB}, {sB}, {sC}')
    a(f's_lshl_b32 {sC}, {sWAVE}, 8\ns_add_u32 {sB}, {sB}, {sC}\ns_add_u32 {sB}, {sB}, {HP}')
    a('s_waitcnt lgkmcnt(0)\ns_barrier')
    for s_ in range(6):
        a(f'ds_read2_b64 v[{24 + 4 * s_}:{27 + 4 * s_}], v2 offset0:{s_ * 8} offset1:{s_ * 8 + 4}')
    for s_ in range(6):
        a(f's_waitcnt lgkmcnt({5 - s_})')
        a(f'v_mfma_f32_16x16x32_bf16 v[20:23], v[{24 + 4 * s_}:{27 + 4 * s_}], v[{60 + 4 * s_}:{63 + 4 * s_}], {"v[20:23]" if s_ else 0}')
    a('s_mov_b64 exec, 0xffff')
    tag(20, 4, 'v9')
    a(f'buffer_store_dwordx4 v[20:23], v8, {SWS}, {sB} offen sc1')
    a('s_branch L_fin')

    a('L_not_s2:')
    a(f's_sub_u32 {sA}, {sJ}, 5\ns_lshl_b32 {sA}, {sA}, 4\ns_add_u32 {sA}, {sA}, {sH}')
    a(f's_cmp_ge_u32 {sH}, 16\ns_cbranch_scc1 L_red')

    a('v_lshrrev_b32 v1, 2, v0\nv_and_b32 v2, 3, v0\nv_lshlrev_b32 v3, 3, v2')
    a('v_lshl_add_u32 v4, v1, 6, v3')
    a(f's_lshr_b32 {sB}, {sWAVE}, 1\ns_mul_i32 {sC}, {sB}, 10240\ns_and_b32 {sD}, {sWAVE}, 1\ns_lshl_b32 {sD}, {sD}, 5')
    a(f's_add_u32 {sC}, {sC}, {sD}\nv_add_u32 v4, {sC}, v4')
    for i in range(10):
        a(f'ds_read_b64_tr_b16 v[{60 + 2 * i}:{61 + 2 * i}], v4 offset:{i * 1024}')
    a('v_mul_u32_u24 v4, 1280, v1\nv_add_u32 v4, v4, v3')
    a(f's_mul_i32 {sC}, {sWAVE}, 160\ns_add_u32 {sC}, {sC}, {L_W2}\nv_add_u32 v4, {sC}, v4')
    a('s_waitcnt lgkmcnt(5)')
    for T in range(5):
        for q in range(2):
            r = 80 + 4 * T + 2 * q
            a(f'ds_read_b64_tr_b16 v[{r}:{r + 1}], v4 offset:{q * 16 * 1280 + T * 32}')
    a('v_lshrrev_b32 v3, 4, v0\nv_lshlrev_b32 v3, 3, v3')
    a(f's_mul_i32 {sC}, {sB}, 320\ns_add_u32 {sC}, {sC}, {L_ACT}')
    a(f'v_mul_u32_u24 v5, 1280, v2\nv_add3_u32 v5, v5, v3, {sC}')
    a(f'v_lshl_add_u32 v6, v2, 6, v3\nv_add_u32 v6, {L_A2}, v6')
    a(f's_lshl_b32 {sC}, {sA}, 6\ns_and_b32 {sD}, {sWAVE}, 1\ns_lshl_b32 {sD}, {sD}, 5\ns_add_u32 {sC}, {sC}, {sD}')
    a('v_lshlrev_b32 v7, 1, v1')
    a(f'buffer_load_ushort v58, v7, {SB1}, {sC} offen')
    a(f'v_add_u32 v7, {sD}, v7\nv_lshl_add_u32 v7, v2, 6, v7\nv_add_u32 v7, {L_A2}, v7')
    a(f's_cmp_ge_u32 {sWAVE}, 4\ns_cbranch_scc1 L_f4')
    a('v_lshlrev_b32 v3, 7, v1\nv_lshl_add_u32 v3, v2, 3, v3')
    a(f's_lshl_b32 {sC}, {sWAVE}, 5\ns_add_u32 {sC}, {sC}, {HB}')
    a('L_hg:')
    for i in range(5):
        a(f's_add_u32 {sD}, {sC}, {i * 2048}')
        a(f'buffer_load_dwordx2 v[{20 + 2 * i}:{21 + 2 * i}], v3, {SWS}, {sD} offen sc1')
    a('s_waitcnt vmcnt(0)')
    a(f'v_xor_b32 v10, {sT[0]}, v20')
    for i in range(1, 10):
        a(f'v_bitop3_b32 v10, v10, v{20 + i}, {sT[2 * (i % 2)]} bitop3:0xf6')
    a('v_and_b32 v10, 0xffff, v10\nv_cmp_ne_u32 vcc, 0, v10')
    a(f's_sub_u32 {sSPIN}, {sSPIN}, 1\ns_cbranch_scc1 L_hgd\ns_cbranch_vccnz L_hg')
    a('L_hgd:')
    stamp(3)
    for i in range(10):
        a(f'v_and_b32 v{20 + i}, {sHI}, v{20 + i}')
    a(f's_mul_i32 {sC}, {sWAVE}, 1280\ns_add_u32 {sC}, {sC}, {L_ACT}\nv_lshl_add_u32 v3, v0, 2, {sC}')
    layernorm(20, 30, 'v3')
    a('L_f4:')
    a('s_waitcnt lgkmcnt(0)\ns_barrier')
    for s_ in range(5):
        a(f'ds_read2_b64 v[{24 + 4 * s_}:{27 + 4 * s_}], v5 offset0:{s_ * 8} offset1:{s_ * 8 + 4}')
    a(f's_lshl_b32 {sC}, {sWAVE}, 8\ns_add_u32 {sC}, {sC}, {L_FP}\nv_add_u32 v3, {sC}, v8')
    for s_ in range(5):
        a(f's_waitcnt lgkmcnt({4 - s_})')
        a(f'v_mfma_f32_16x16x32_bf16 v[20:23], v[{24 + 4 * s_}:{27 + 4 * s_}], v[{60 + 4 * s_}:{63 + 4 * s_}], {"v[20:23]" if s_ else 0}')
    a('s_mov_b64 exec, 0xffff')
    a('ds_write_b128 v3, v[20:23]')
    a('s_mov_b64 exec, -1')
    a('s_waitcnt lgkmcnt(0)\ns_barrier')
    a(f's_cmp_ge_u32 {sWAVE}, 2\ns_cbranch_scc1 L_f6')
    a(f'v_lshl_add_u32 v3, v0, 2, {sC}')
    for kq in range(4):
        a(f'ds_read_b32 v{20 + kq}, v3 offset:{kq * 512}')
    a('s_waitcnt vmcnt(0)')
    a('v_lshlrev_b32 v58, 16, v58')
    a('s_waitcnt lgkmcnt(0)')
    a('v_add_f32 v20, v20, v21\nv_add_f32 v22, v22, v23\nv_add_f32 v20, v20, v22')
    rbf('v20')
    a('v_add_f32 v20, v20, v58')
    rbf('v20')
    c2 = -2.0 * 0.7978845608028654 * 1.4426950408889634
    a(f'v_mul_f32 v21, v20, v20\nv_mul_f32 v21, {f2u(0.044715)}, v21\nv_fma_f32 v21, v21, v20, v20')
    a(f'v_mul_f32 v21, {f2u(c2)}, v21\nv_exp_f32 v21, v21\nv_add_f32 v21, 1.0, v21\nv_rcp_f32 v21, v21')
    a('v_mul_f32 v20, v20, v21\nv_cvt_pk_bf16_f32 v20, v20, v20')
    a('ds_write_b16 v7, v20')
    a('L_f6:')
    a('s_waitcnt lgkmcnt(0)\ns_barrier')
    a('ds_read2_b64 v[24:27], v6 offset0:0 offset1:4')
    a(f's_mul_i32 {sB}, {sA}, 10240\ns_mul_i32 {sC}, {sWAVE}, 1280\ns_add_u32 {sB}, {sB}, {sC}\ns_add_u32 {sB}, {sB}, {YP}')
    a('s_waitcnt lgkmcnt(0)')
    for T in range(5):
        a(f'v_mfma_f32_16x16x32_bf16 v[{28 + 4 * T}:{31 + 4 * T}], v[24:27], v[{80 + 4 * T}:{83 + 4 * T}], 0')
    a('s_mov_b64 exec, 0xffff')
    for T in range(5):
        tag(28 + 4 * T, 4, 'v9')
        a(f'buffer_store_dwordx4 v[{28 + 4 * T}:{31 + 4 * T}], v8, {SWS}, {sB} offen offset:{T * 256} sc1')
    a('s_branch L_fin')

    a('L_red:')
    a(f's_sub_u32 {sA}, {sA}, 16')
    a(f's_cmp_ge_u32 {sA}, 40\ns_cbranch_scc1 L_fin')
    a(f's_sub_u32 {sB}, {sWAVE}, 4\ns_cmp_ge_u32 {sB}, 2\ns_cbranch_scc1 L_fin')
    a(f's_lshl_b32 {sA}, {sA}, 1\ns_add_u32 {sA}, {sA}, {sB}')
    a('v_and_b32 v1, 7, v0\nv_lshrrev_b32 v2, 4, v0\nv_lshrrev_b32 v3, 3, v0')
    a(f's_lshl_b32 {sB}, {sA}, 4')
    a('v_lshlrev_b32 v4, 1, v1\nv_mul_u32_u24 v5, 1280, v2\nv_add_u32 v5, v5, v4')
    a(f'buffer_load_ushort v56, v5, {SX}, {sB} offen')
    a(f'buffer_load_ushort v57, v4, {SB2}, {sB} offen')
    a('v_mul_u32_u24 v6, 10240, v3\nv_lshl_add_u32 v6, v1, 4, v6')
    a(f's_lshl_b32 {sC}, {sA}, 7')
    a('v_lshlrev_b32 v7, 5, v2\nv_lshl_add_u32 v7, v1, 2, v7')

    def colreduce(n, base, lab):
        a(f'{lab}:')
        for i in range(n):
            a(f's_add_u32 {sD}, {sC}, {base + i * 8 * 10240}')
            a(f'buffer_load_dwordx4 v[{20 + 4 * i}:{23 + 4 * i}], v6, {SWS}, {sD} offen sc1')
        a('s_waitcnt vmcnt(0)')
        check(20, 4 * n, 'v10', lab, lab + 'd')
        clean(20, 4 * n, 'v9')
        h = n // 2
        for i in range(4 * h):
            a(f'v_add_f32 v{20 + i}, v{20 + i}, v{20 + 4 * h + i}')
        for i in range(1, h):
            for k in range(4):
                a(f'v_add_f32 v{20 + k}, v{20 + k}, v{20 + 4 * i + k}')
        a('v_permlane16_swap_b32 v20, v21\nv_permlane16_swap_b32 v22, v23')
        a('v_add_f32 v20, v20, v21\nv_add_f32 v22, v22, v23')
        a('v_permlane32_swap_b32 v20, v22')
        a('v_add_f32 v20, v20, v22')
        a(f'v_add_f32_dpp v20, v20, v20 row_ror:8 {DPPM}')
        rbf('v20')

    colreduce(4, HP, 'L_r3')
    stamp(3)
    a('v_lshlrev_b32 v56, 16, v56\nv_lshlrev_b32 v57, 16, v57')
    a('v_add_f32 v56, v56, v20')
    rbf('v56')
    a(f'v_and_b32 v11, 1, v0\nv_lshlrev_b32 v11, 4, v11\nv_lshrrev_b32 v11, v11, {sT[0]}')
    a(f'v_bfi_b32 v11, {sHI}, v56, v11')
    a(f's_add_u32 {sD}, {sC}, {HB}')
    a('s_mov_b32 exec_lo, 0x00ff00ff\ns_mov_b32 exec_hi, 0x00ff00ff')
    a(f'buffer_store_dword v11, v7, {SWS}, {sD} offen sc1')
    a('s_mov_b64 exec, -1')
    a(f's_mov_b32 {sSPIN}, {SPIN}')
    colreduce(6, YP, 'L_r5')
    stamp(4)
    a('v_add_f32 v20, v20, v57')
    rbf('v20')
    a('v_add_f32 v20, v20, v56\nv_cvt_pk_bf16_f32 v20, v20, v20')
    a('s_mov_b32 exec_lo, 0x00ff00ff\ns_mov_b32 exec_hi, 0x00ff00ff')
    a(f'buffer_store_short v20, v5, {SOUT}, {sB} offen')

    a('L_fin:')
    if diag:
        a('s_waitcnt vmcnt(0)')
        stamp(7)
        a('s_mov_b64 exec, -1')
        a('s_load_dwordx2 s[8:9], s[0:1], 96')
        a('s_getreg_b32 s62, hwreg(20, 0, 4)')
        a('s_waitcnt lgkmcnt(0)')
        a('s_add_u32 s8, s8, 0x40000000\ns_addc_u32 s9, s9, 0\ns_mov_b32 s10, 0x200000')
        a(f's_lshl_b32 {sA}, s2, 3\ns_add_u32 {sA}, {sA}, {sWAVE}')
        a(f's_lshl_b32 {sB}, {sA}, 5\nv_mov_b32 v1, {sB}')
        a(f's_lshl_b32 {sB}, {sA}, 6\ns_add_u32 {sB}, {sB}, 0x100000\nv_mov_b32 v2, {sB}')
        a('v_mov_b32 v4, s84\nv_mov_b32 v5, s85\nv_mov_b32 v6, s98\nv_mov_b32 v7, s99')
        a(f'v_mov_b32 v8, s62\nv_mov_b32 v9, 0\nv_mov_b32 v10, s96\nv_mov_b32 v11, s97')
        for i in range(16):
            a(f'v_mov_b32 v{12 + i}, s{84 + i}')
        a('s_mov_b64 exec, 1')
        a('buffer_store_dwordx4 v[4:7], v1, s[8:11], 0 offen')
        a('buffer_store_dwordx4 v[8:11], v1, s[8:11], 0 offen offset:16')
        for i in range(4):
            a(f'buffer_store_dwordx4 v[{12 + 4 * i}:{15 + 4 * i}], v2, s[8:11], 0 offen offset:{16 * i}')
    a('L_end:')
    a('s_endpgm')

    ref = open(f'cdna_kernels/{NAME}.s.ref').read().split('\n')
    head = [x for x in ref if x.startswith(';') and '@launch' not in x and not x.startswith('; Override') and not x.startswith('; grid=')]
    out = '\n'.join(head) + f'\n; @launch grid=(256,1,1) block=(512,1,1) lds={LDS_SZ}\n'
    out += f'.amdgcn_target "amdgcn-amd-amdhsa--gfx950"\n.text\n.globl {KERN}\n.p2align 8\n.type {KERN},@function\n'
    out += a.text() + '\n'
    out += f'''.section .rodata,"a"
.p2align 6
.amdhsa_kernel {KERN}
  .amdhsa_next_free_vgpr 128
  .amdhsa_next_free_sgpr 102
  .amdhsa_accum_offset 128
  .amdhsa_group_segment_fixed_size 0
  .amdhsa_kernarg_size 104
  .amdhsa_user_sgpr_count 2
  .amdhsa_user_sgpr_kernarg_segment_ptr 1
  .amdhsa_system_sgpr_workgroup_id_x 1
.end_amdhsa_kernel
'''
    return out


if __name__ == '__main__':
    kw = eval('dict(' + (sys.argv[2] if len(sys.argv) > 2 else '') + ')')
    open(sys.argv[1], 'w').write(gen(**kw))
```

```python
import os, sys, struct
from asmlib import Asm

NAME = 'sequential_preLN__mha_block_cached__dense_activation_gelu__decode'
KERN = NAME + '_kernel'


def f2u(x):
    return '0x%08x' % struct.unpack('<I', struct.pack('<f', x))[0]


NB_KV = 402653184
PROB = 3145728
BSTR = 100663296
ITEM = 12288
QP, OP, HP, CT, YP, WS_SZ = 0x0, 0x100000, 0x200000, 0x280000, 0x300000, 0x400000
HPB, YPB = 20480, 245760
REG = 24576
L_Q = 98304
L_PART = 99840
PARTP = 784
L_FLAG = 112384
F_Q, F_NONCE, F_W, F_FL, F_ST = 0, 4, 8, 16, 32
L_ACT = 112448
LDS_SZ = 118592
SK, SV, SWS, SDBG, SX, SWQ, SWO, SW1, SW2, SOUT, SB1, SB2 = [f's[{i}:{i+3}]' for i in range(8, 56, 4)]
SRD = {'K': (8, 8, NB_KV), 'V': (12, 16, NB_KV), 'WS': (16, 96, WS_SZ), 'DBG': (20, 88, 256), 'X': (24, 0, 5120),
       'WQ': (28, 24, 7864320), 'WO': (32, 32, 7864320), 'W1': (36, 48, 1966080), 'W2': (40, 64, 1966080),
       'OUT': (44, 80, 5120), 'B1': (48, 56, 3072), 'B2': (52, 72, 1280)}
sWAVE, sH, sJ = 's3', 's4', 's5'
sCUR, sNEXT, sHB, sCB, sNB, sPB, sMODE, sSB = 's56', 's57', 's58', 's59', 's60', 's61', 's6', 's7'
sBAT, sROLE, sIN, sOUTA, sACT, sXO = 's56', 's57', 's58', 's59', 's60', 's61'
sT = ['s64', 's65', 's66', 's67']
sSPIN, sST, sHI, sLOG2E = 's68', 's69', 's70', 's71'
sA, sB, sC, sD = 's72', 's73', 's74', 's75'
sW = [f's{i}' for i in range(76, 84)]
SPIN = 1 << 14
DPPM = 'row_mask:0xf bank_mask:0xf'


def gen(diag=False, pol='nt', pst=False, PWIN=9, WWIN=7, SMALL=128, SLP=127, FSLP=2, NSTAT=24, late=0, prepoll=True, dummy=None, ysl=0, pre3=False, hsl=0, osl=0):
    a = Asm()
    nstamp = [0]

    def stamp(i):
        if diag:
            a(f's_memrealtime s[{84 + 2 * i}:{85 + 2 * i}]')

    def allreduce(op, r, t, low=True):
        if low:
            a(f'{op}_dpp {r}, {r}, {r} quad_perm:[1,0,3,2] {DPPM}')
            a(f'{op}_dpp {r}, {r}, {r} quad_perm:[2,3,0,1] {DPPM}')
            a(f'{op}_dpp {r}, {r}, {r} row_half_mirror {DPPM}')
        a(f'{op}_dpp {r}, {r}, {r} row_ror:8 {DPPM}')
        for sw in ('v_permlane16_swap_b32', 'v_permlane32_swap_b32'):
            a(f'v_mov_b32 {t}, {r}')
            a(f'{sw} {r}, {t}')
            a(f'{op} {r}, {r}, {t}')

    def rbf(r):
        a(f'v_cvt_pk_bf16_f32 {r}, {r}, {r}')
        a(f'v_and_b32 {r}, {sHI}, {r}')

    def tag(base, n, vM):
        for i in range(n):
            a(f'v_bfi_b32 v{base + i}, {vM}, {sT[i % 4]}, v{base + i}')

    def check(base, n, chk, label, done, sleep=True):
        c2 = f'v{int(chk[1:]) + 1}'
        a(f'v_xor_b32 {chk}, {sT[0]}, v{base}\nv_xor_b32 {c2}, {sT[1]}, v{base + 1}')
        for i in range(2, n):
            c = chk if i % 2 == 0 else c2
            a(f'v_bitop3_b32 {c}, {c}, v{base + i}, {sT[i % 4]} bitop3:0xf6')
        a(f'v_bitop3_b32 {chk}, {chk}, {c2}, v9 bitop3:0xa8')
        a(f'v_cmp_ne_u32 vcc, 0, {chk}')
        a(f's_cbranch_vccz {done}')
        a(f's_sub_u32 {sSPIN}, {sSPIN}, 1')
        a(f's_cbranch_scc1 {done}')
        if sleep:
            a(f's_cmp_eq_u32 {sBAT}, 3\ns_cbranch_scc1 {label}')
            a(f's_sleep {SLP}')
        a(f's_branch {label}')
        a(f'{done}:')
        a(f's_mov_b32 {sSPIN}, {SPIN}')

    def get_nonce(lab, t):
        a(f'{lab}:')
        a(f'v_mov_b32 {t}, {L_FLAG}')
        a(f'ds_read_b32 {t}, {t} offset:{F_NONCE}')
        a('s_waitcnt lgkmcnt(0)')
        a(f'v_readfirstlane_b32 {sT[0]}, {t}')
        a('s_nop 1')
        a(f's_cmp_eq_u32 {sT[0]}, 0\ns_cbranch_scc1 {lab}')
        for i in (1, 2, 3):
            a(f's_lshr_b32 {sT[i]}, {sT[0]}, {8 * i}')

    def lds_wait(lab, t, vaddr, off, val, slp):
        a(f'{lab}:')
        a(f'ds_read_b32 {t}, {vaddr} offset:{off}')
        a('s_waitcnt lgkmcnt(0)')
        a(f'v_cmp_ne_u32 vcc, {val}, {t}')
        if slp:
            a(f's_cbranch_vccz {lab}d')
            a(f's_sleep {slp}\ns_branch {lab}')
            a(f'{lab}d:')
        else:
            a(f's_cbranch_vccnz {lab}')

    def lds_inc(vaddr, off, one):
        a('s_mov_b64 exec, 1')
        a(f'ds_add_u32 {vaddr}, {one} offset:{off}')
        a('s_mov_b64 exec, -1')

    def set_exec(m):
        a(f's_mov_b32 exec_lo, {m:#x}\ns_mov_b32 exec_hi, {m:#x}')

    a(f'{KERN}:')
    a('s_cmp_ge_u32 s2, 256\ns_cbranch_scc1 L_end')
    for k in ('X', 'WQ', 'K', 'DBG', 'WS', 'V', 'WO', 'W1', 'W2', 'OUT', 'B1', 'B2'):
        r, off, _ = SRD[k]
        a(f's_load_dwordx2 s[{r}:{r + 1}], s[0:1], {off}')
    a('s_memrealtime s[62:63]')
    stamp(0)
    a('v_lshrrev_b32 v1, 6, v0\nv_and_b32 v0, 63, v0')
    a(f'v_readfirstlane_b32 {sWAVE}, v1')
    for k, (r, off, sz) in SRD.items():
        a(f's_mov_b32 s{r + 2}, {sz}\ns_mov_b32 s{r + 3}, 0x20000')
    a(f's_lshr_b32 {sH}, s2, 3\ns_and_b32 {sJ}, s2, 7')
    a(f's_mov_b32 {sHI}, 0xffff0000\ns_mov_b32 {sLOG2E}, {f2u(1.4426950408889634)}')
    a(f's_mov_b32 {sSPIN}, {SPIN}')
    a(f's_cmp_ge_u32 {sWAVE}, 4\ns_cbranch_scc1 L_stream')

    a(f's_cmp_eq_u32 {sWAVE}, 3\ns_cbranch_scc1 L_h3')
    a('v_and_b32 v1, 3, v0\nv_mul_u32_u24 v1, 1280, v1\nv_lshrrev_b32 v2, 2, v0\nv_mul_u32_u24 v3, 80, v2\nv_add_u32 v3, v3, v1')
    a('v_lshrrev_b32 v4, 4, v0\nv_lshl_add_u32 v4, v4, 3, v1')
    a('v_lshrrev_b32 v5, 3, v0\nv_mul_u32_u24 v5, 12288, v5\nv_and_b32 v6, 7, v0\nv_lshl_add_u32 v5, v6, 4, v5')
    a(f's_mul_i32 {sA}, {sJ}, 160')
    a(f's_mul_i32 {sB}, {sJ}, {80 * 12288}\ns_mul_i32 {sC}, {sH}, 384\ns_add_u32 {sB}, {sB}, {sC}')
    a(f's_lshl_b32 {sC}, {sWAVE}, 7\ns_add_u32 {sB}, {sB}, {sC}')
    a(f's_mul_i32 {sC}, {sWAVE}, {REG}')
    a('s_waitcnt lgkmcnt(0)')
    for i in range(5):
        a(f'buffer_load_dwordx4 v[{20 + 4 * i}:{23 + 4 * i}], v3, {SX}, 0 offen offset:{i * 16}')
    for i in range(5):
        a(f'buffer_load_dwordx2 v[{10 + 2 * i}:{11 + 2 * i}], v4, {SX}, {sA} offen offset:{i * 32}')
    for u in range(10):
        a(f's_mov_b32 m0, {sC}')
        a(f'buffer_load_dwordx4 v5, {SWQ}, {sB} offen nt lds')
        if u < 9:
            a(f's_add_u32 {sB}, {sB}, {8 * 12288}\ns_add_u32 {sC}, {sC}, 1024')
    a('s_barrier')
    a(f's_or_b32 {sB}, {sJ}, {sWAVE}\ns_cbranch_scc1 L_noct')
    a(f's_lshl_b32 {sB}, {sH}, 8\ns_add_u32 {sB}, {sB}, {CT}')
    a('v_mov_b32 v6, 0\nv_lshlrev_b32 v7, 7, v0\ns_mov_b64 exec, 3')
    a(f'buffer_store_dword v6, v7, {SWS}, {sB} offen sc1')
    a('s_mov_b64 exec, -1')
    a('L_noct:')
    a('s_waitcnt vmcnt(10)')
    stamp(1)
    a(f's_mov_b32 {sD}, 0x3f803f80')
    for i in range(20):
        acc = f'v{6 + i % 2}'
        a(f'v_dot2_f32_bf16 {acc}, v{20 + i}, {sD}, {acc if i >= 2 else 0}')
    for i in range(20):
        a(f'v_lshlrev_b32 v{40 + 2 * i}, 16, v{20 + i}\nv_and_b32 v{41 + 2 * i}, {sHI}, v{20 + i}')
    a('v_add_f32 v6, v6, v7')

    def red4(r, t):
        a(f'v_add_f32_dpp {r}, {r}, {r} row_ror:4 {DPPM}')
        allreduce('v_add_f32', r, t, low=False)
    red4('v6', 'v7')
    a(f'v_mul_f32 v6, {f2u(1 / 640)}, v6')
    for i in range(20):
        a(f'v_pk_add_f32 v[{40 + 2 * i}:{41 + 2 * i}], v[{40 + 2 * i}:{41 + 2 * i}], v[6:7] op_sel_hi:[1,0] neg_lo:[0,1] neg_hi:[0,1]')
    for i in range(20):
        d = f'v[{40 + 2 * i}:{41 + 2 * i}]'
        acc = f'v[{20 + 2 * (i % 2)}:{21 + 2 * (i % 2)}]'
        a(f'v_pk_mul_f32 {acc}, {d}, {d}' if i < 2 else f'v_pk_fma_f32 {acc}, {d}, {d}, {acc}')
    rbf('v6')
    for i in range(10):
        a(f'v_lshlrev_b32 v{40 + 2 * i}, 16, v{10 + i}\nv_and_b32 v{41 + 2 * i}, {sHI}, v{10 + i}')
    a('v_add_f32 v20, v20, v21\nv_add_f32 v22, v22, v23\nv_add_f32 v8, v20, v22')
    red4('v8', 'v9')
    for i in range(10):
        a(f'v_pk_add_f32 v[{40 + 2 * i}:{41 + 2 * i}], v[{40 + 2 * i}:{41 + 2 * i}], v[6:7] op_sel_hi:[1,0] neg_lo:[0,1] neg_hi:[0,1]')
    a(f'v_mul_f32 v8, {f2u(1 / 640)}, v8')
    rbf('v8')
    a(f'v_add_f32 v8, {f2u(1e-5)}, v8')
    rbf('v8')
    a('v_sqrt_f32 v8, v8')
    for i in range(10):
        a(f'v_cvt_pk_bf16_f32 v{10 + i}, v{40 + 2 * i}, v{41 + 2 * i}')
    rbf('v8')
    a('v_rcp_f32 v8, v8')
    for i in range(10):
        a(f'v_lshlrev_b32 v{40 + 2 * i}, 16, v{10 + i}\nv_and_b32 v{41 + 2 * i}, {sHI}, v{10 + i}')
    for i in range(10):
        a(f'v_pk_mul_f32 v[{40 + 2 * i}:{41 + 2 * i}], v[{40 + 2 * i}:{41 + 2 * i}], v[8:9] op_sel_hi:[1,0]')
    for i in range(10):
        a(f'v_cvt_pk_bf16_f32 v{10 + i}, v{40 + 2 * i}, v{41 + 2 * i}')
    a(f'v_and_b32 v1, 3, v0\nv_lshlrev_b32 v5, 7, v2\nv_lshl_add_u32 v5, v1, 3, v5')
    a(f's_mul_i32 {sC}, {sWAVE}, {REG}\nv_add_u32 v5, {sC}, v5')
    a('v_mov_b32 v9, 0xff\nv_lshlrev_b32 v8, 4, v0')
    get_nonce('L_np0', 'v6')
    stamp(2)
    a('s_waitcnt vmcnt(0)')
    stamp(3)
    for qs in ((4,), (0, 1), (2, 3)):
        for T in range(4):
            for q in qs:
                r = 20 + T * 12 + q * 2
                a(f'ds_read_b64_tr_b16 v[{r}:{r + 1}], v5 offset:{q * 2048 + T * 32}')
    a(f's_mul_i32 {sB}, s2, 3072\ns_lshl_b32 {sC}, {sWAVE}, 10\ns_add_u32 {sB}, {sB}, {sC}')
    if QP:
        a(f's_add_u32 {sB}, {sB}, {QP}')
    a('s_waitcnt lgkmcnt(15)')
    for T in range(4):
        r, d = 20 + T * 12, 68 + T * 4
        a(f'v_mfma_f32_16x16x16_bf16 v[{d}:{d + 3}], v[18:19], v[{r + 8}:{r + 9}], 0')
    for kk in range(2):
        a(f's_waitcnt lgkmcnt({8 - 8 * kk})')
        for T in range(4):
            r, d = 20 + T * 12 + 4 * kk, 68 + T * 4
            a(f'v_mfma_f32_16x16x32_bf16 v[{d}:{d + 3}], v[{10 + 4 * kk}:{13 + 4 * kk}], v[{r}:{r + 3}], v[{d}:{d + 3}]')
    a('s_mov_b64 exec, 0xffff')
    for T in range(4):
        d = 68 + T * 4
        tag(d, 4, 'v9')
        a(f'buffer_store_dwordx4 v[{d}:{d + 3}], v8, {SWS}, {sB} offen offset:{T * 256} sc1')
    a('s_mov_b64 exec, -1')
    stamp(4)
    a(f's_mul_i32 {sB}, {sH}, {8 * 3072}\ns_add_u32 {sB}, {sB}, {sC}')
    if QP:
        a(f's_add_u32 {sB}, {sB}, {QP}')
    a('L_qg:')
    for m in range(8):
        a(f's_add_u32 {sD}, {sB}, {m * 3072}')
        a(f'buffer_load_dwordx4 v[{20 + 4 * m}:{23 + 4 * m}], v8, {SWS}, {sD} offen sc1')
    a('s_waitcnt vmcnt(0)')
    check(20, 32, 'v10', 'L_qg', 'L_qgd', sleep=False)
    a(f's_mov_b32 {sD}, 0x80')
    for i in range(32):
        a(f'v_bfi_b32 v{20 + i}, v9, {sD}, v{20 + i}')
    for st in (16, 8, 4):
        for i in range(st):
            a(f'v_add_f32 v{20 + i}, v{20 + i}, v{20 + st + i}')
    a('v_cvt_pk_bf16_f32 v20, v20, v21\nv_cvt_pk_bf16_f32 v22, v22, v23')
    a(f's_lshl_b32 {sC}, {sWAVE}, 7\ns_add_u32 {sC}, {sC}, {L_Q}')
    a(f'v_lshl_add_u32 v3, v0, 1, {sC}')
    a('ds_write_b16 v3, v20\nds_write_b16_d16_hi v3, v20 offset:384')
    a('ds_write_b16 v3, v22 offset:768\nds_write_b16_d16_hi v3, v22 offset:1152')
    a(f'v_mov_b32 v3, {L_FLAG}\nv_mov_b32 v4, 1')
    lds_inc('v3', F_Q, 'v4')
    stamp(5)
    a('s_branch L_role')

    a('L_h3:')
    a(f'v_mov_b32 v4, 0\nv_mov_b32 v3, {L_FLAG}\nv_lshlrev_b32 v7, 6, v0')
    a('v_and_b32 v5, 15, v0\nv_lshl_add_u32 v5, v5, 2, v3')
    a('ds_write_b32 v5, v4')
    a('s_waitcnt lgkmcnt(0)')
    a('s_cmp_lg_u32 s2, 0\ns_cbranch_scc1 L_h3a')
    a(f's_mul_i32 {sB}, s62, 0x9e3779b1\ns_or_b32 {sB}, {sB}, 1\nv_mov_b32 v5, {sB}')
    a('s_mov_b64 exec, 15')
    a(f'buffer_store_dword v5, v7, {SDBG}, 0 offen sc1')
    a('L_h3a:')
    a('s_mov_b64 exec, 1')
    a(f's_load_dword {sT[0]}, s[20:21], 192')
    a('s_barrier')
    a('s_waitcnt lgkmcnt(0)')
    for i in range(3):
        a(f's_cmp_lg_u32 {sT[0]}, 0\ns_cbranch_scc1 L_ngot')
        a(f's_load_dword {sT[0]}, s[20:21], {64 * i}')
        a('s_waitcnt lgkmcnt(0)')
    a(f's_cmp_lg_u32 {sT[0]}, 0\ns_cbranch_scc1 L_ngot')
    a('L_nv:')
    a(f'buffer_load_dword v6, v4, {SDBG}, 0 offen sc1')
    a('s_waitcnt vmcnt(0)')
    a(f'v_readfirstlane_b32 {sT[0]}, v6')
    a(f's_sub_u32 {sSPIN}, {sSPIN}, 1\ns_cselect_b32 {sT[0]}, 1, {sT[0]}')
    a(f's_cmp_eq_u32 {sT[0]}, 0\ns_cbranch_scc1 L_nv')
    a(f's_mov_b32 {sSPIN}, {SPIN}')
    a('L_ngot:')
    a(f'v_mov_b32 v6, {sT[0]}')
    a(f'ds_write_b32 v3, v6 offset:{F_NONCE}')
    a('s_mov_b64 exec, -1')
    for i in (1, 2, 3):
        a(f's_lshr_b32 {sT[i]}, {sT[0]}, {8 * i}')
    a('v_mov_b32 v4, 1\nv_mov_b32 v9, 0xff\nv_mov_b32 v2, 0\nv_mov_b32 v8, 0')

    def dma_loop(lab, srd, n, gstep):
        a(f's_add_u32 {sD}, {sC}, {n * 1024}')
        a(f'{lab}:')
        a(f's_mov_b32 m0, {sC}')
        a(f's_add_u32 {sC}, {sC}, 1024')
        a(f'buffer_load_dwordx4 v2, {srd}, {sB} offen nt lds')
        a(f's_add_u32 {sB}, {sB}, {gstep}')
        a(f's_waitcnt vmcnt({WWIN})')
        a(f's_cmp_lt_u32 {sC}, {sD}\ns_cbranch_scc1 {lab}')

    def weights_ready(lab):
        a('s_waitcnt vmcnt(0)')
        lds_inc('v3', F_W, 'v4')
        lds_wait(lab, 'v10', 'v3', F_W, 4, 8)

    def tr_reads(lst):
        for n, (r, va, off) in enumerate(lst):
            if n and n % 12 == 0:
                a('s_waitcnt lgkmcnt(0)')
            a(f'ds_read_b64_tr_b16 v[{r}:{r + 1}], {va} offset:{off}')
        a('s_waitcnt lgkmcnt(0)')

    def batch_top(lab):
        a(f's_mov_b32 {sBAT}, 0')
        if late and dummy:
            srd, mod, lanes, slp, step = dummy
            a(f's_lshl_b32 {sA}, s2, 12\ns_lshl_b32 {sB}, {sWAVE}, 10\ns_add_u32 {sA}, {sA}, {sB}')
            a(f'v_and_b32 v11, {lanes - 1}, v0\nv_lshlrev_b32 v11, {7 if srd != "st" else 4}, v11')
            a(f's_add_u32 {sA}, {sA}, 0x400000\ns_mov_b32 s18, 0x8000000')
            a(f'{lab}x:')
            if srd == 'st':
                a(f's_mov_b64 exec, {(1 << lanes) - 1}')
                if 'sc0' in mod:
                    a(f'buffer_atomic_add v12, v11, {SWS}, {sA} offen {mod}')
                else:
                    a(f'buffer_store_dwordx4 v[12:15], v11, {SWS}, {sA} offen {mod}')
                a('s_mov_b64 exec, -1')
                a(f's_add_u32 {sA}, {sA}, {step}')
            else:
                a(f'buffer_load_dword v12, v11, {dict(ws=SWS, wq=SWQ)[srd]}, {sA} offen {mod}')
                a(f's_add_u32 {sA}, {sA}, {step}')
            a(f'ds_read_b32 v10, v3 offset:{F_FL + 4 * late}')
            a('s_waitcnt vmcnt(0) lgkmcnt(0)')
            a(f'v_cmp_ne_u32 vcc, 4, v10')
            a(f's_cbranch_vccz {lab}xd')
            a(f's_sleep {slp}\ns_branch {lab}x')
            a(f'{lab}xd:')
        elif late:
            lds_wait(lab + 'x', 'v10', 'v3', F_FL + 4 * late, 4, FSLP)
        a(f'{lab}:')

    def shadow_sleep(lab, n, force=False):
        if n or force:
            a(f's_cmp_eq_u32 {sBAT}, 3\ns_cbranch_scc1 {lab}')
        for i in range(n):
            a('s_sleep 127')

    def s1_setup(sb):
        a(f's_mul_i32 {sA}, {sb}, {PARTP}\ns_add_u32 {sA}, {sA}, {L_PART}')
        a(f'v_lshlrev_b32 v54, 4, v0\nv_add_u32 v52, {sA}, v54\nv_mov_b32 v53, {sA}\nv_mov_b32 v55, 0xff')
        a(f's_lshl_b32 {sB}, {sb}, 18\ns_lshl_b32 {sA}, s2, 10\ns_add_u32 {sB}, {sB}, {sA}\ns_add_u32 {sB}, {sB}, {OP}')

    def wait_flush(lab):
        lds_wait(lab, 'v10', 'v3', F_FL, 4, FSLP)
        stamp(6)
        a(f's_cmp_eq_u32 {sBAT}, 3\ns_cbranch_scc1 {lab}r')
        a(f's_cmp_lg_u32 {sWAVE}, 3\ns_cbranch_scc1 {lab}r')
        s1_setup(sBAT)
        a('s_branch L_s1')
        a(f'{lab}r:')

    def batch_end(lab, incs):
        a('s_mov_b64 exec, -1')
        a(f's_add_u32 {sBAT}, {sBAT}, 1')
        a('v_add_u32 v3, 4, v3')
        for r, d in incs:
            a(f's_add_u32 {r}, {r}, {d}' if r[0] == 's' else f'v_add_u32 {r}, {d}, {r}')
        a(f's_cmp_lt_u32 {sBAT}, 4\ns_cbranch_scc1 {lab}')
        a('s_branch L_fin')

    a('L_role:')
    a(f's_lshl_b32 {sA}, {sJ}, 2\ns_add_u32 {sA}, {sA}, {sH}\ns_and_b32 {sA}, {sA}, 31\ns_mov_b32 {sROLE}, {sA}')
    a(f's_mul_i32 {sC}, {sWAVE}, {REG}')
    a('v_lshrrev_b32 v5, 4, v0\nv_bfe_u32 v6, v0, 2, 2\nv_and_b32 v7, 3, v0')
    a(f's_cmp_ge_u32 {sA}, 16\ns_cbranch_scc1 L_s5')
    a(f's_cmp_ge_u32 {sA}, 10\ns_cbranch_scc1 L_ffn')

    a(f's_mov_b32 {sD}, {sJ}')
    a(f's_mul_i32 {sOUTA}, {sD}, 2560\ns_lshl_b32 {sB}, {sA}, 8\ns_add_u32 {sOUTA}, {sOUTA}, {sB}')
    a(f's_lshl_b32 {sB}, {sWAVE}, 6\ns_add_u32 {sOUTA}, {sOUTA}, {sB}\ns_add_u32 {sOUTA}, {sOUTA}, {HP}')
    a(f's_lshl_b32 {sD}, {sD}, 2\ns_add_u32 {sD}, {sD}, {sWAVE}')
    a(f's_lshl_b32 {sIN}, {sD}, 13\ns_add_u32 {sIN}, {sIN}, {OP}')
    a(f's_mul_i32 {sB}, {sD}, {192 * 1280}\ns_lshl_b32 {sA}, {sA}, 7\ns_add_u32 {sB}, {sB}, {sA}')
    a('v_lshrrev_b32 v2, 3, v0\nv_mul_u32_u24 v2, 1280, v2\nv_and_b32 v1, 7, v0\nv_lshl_add_u32 v2, v1, 4, v2')
    dma_loop('L_dwo', SWO, 24, 8 * 1280)
    weights_ready('L_wr2')
    a('v_lshlrev_b32 v10, 10, v5\nv_lshl_add_u32 v10, v6, 7, v10\nv_lshl_add_u32 v10, v7, 3, v10')
    a(f's_lshl_b32 {sA}, {sWAVE}, 5\nv_add_u32 v10, {sA}, v10\nv_add_u32 v11, 49152, v10')
    tr_reads([(128 + 4 * s_ + 2 * q, 'v10' if s_ < 12 else 'v11', (s_ % 12) * 4096 + q * 512) for s_ in range(24) for q in range(2)])
    stamp(5)
    a('v_min_u32 v8, 47, v0\nv_lshlrev_b32 v2, 3, v8\nv_lshlrev_b32 v8, 4, v8')
    a('v_lshlrev_b32 v1, 10, v1\nv_add_u32 v1, 768, v1')
    a(f's_mul_i32 {sA}, {sWAVE}, 384\ns_add_u32 {sA}, {sA}, {L_ACT}\nv_add_u32 v2, {sA}, v2')
    a(f'v_lshlrev_b32 v5, 4, v5\nv_add_u32 v6, {L_ACT}, v5')
    batch_top('L_s2b')
    wait_flush('L_s2w')
    a(f's_add_u32 {sA}, {sIN}, 4096')
    if prepoll:
        shadow_sleep('L_op' if pre3 else 'L_og', osl, True)
        a('L_op:')
        a(f'buffer_load_dwordx4 v[20:23], v1, {SWS}, {sIN} offen sc1')
        a('s_waitcnt vmcnt(0)')
        check(20, 4, 'v10', 'L_op', 'L_opd')
    a('L_og:')
    a(f'buffer_load_dwordx4 v[20:23], v1, {SWS}, {sIN} offen sc1')
    for m in range(8):
        a(f'buffer_load_dwordx4 v[{24 + 4 * m}:{27 + 4 * m}], v8, {SWS}, {sIN if m < 4 else sA} offen offset:{(m % 4) * 1024} sc1')
    a('s_waitcnt vmcnt(8)')
    a('v_lshrrev_b32 v12, 8, v22\nv_bfi_b32 v12, v9, v12, v20')
    a(f'v_max_f32_dpp v13, v12, v12 quad_perm:[1,0,3,2] {DPPM}')
    a(f'v_max_f32_dpp v13, v13, v13 quad_perm:[2,3,0,1] {DPPM}')
    a(f'v_max_f32_dpp v13, v13, v13 row_half_mirror {DPPM}')
    a('v_sub_f32 v12, v12, v13\nv_exp_f32 v12, v12\nv_mul_f32 v13, v12, v21')
    for mode in ('quad_perm:[1,0,3,2]', 'quad_perm:[2,3,0,1]', 'row_half_mirror'):
        a(f'v_add_f32_dpp v13, v13, v13 {mode} {DPPM}')
    a('v_rcp_f32 v13, v13\nv_mul_f32 v12, v12, v13')
    for m in range(8):
        a(f'v_readlane_b32 {sW[m]}, v12, {m}')
    a('s_waitcnt vmcnt(0)')
    check(20, 36, 'v10', 'L_og', 'L_ogd')
    stamp(3)
    for k in range(4):
        a(f'v_mul_f32 v{12 + k}, {sW[0]}, v{24 + k}')
    for m in range(1, 8):
        for k in range(4):
            a(f'v_fmac_f32 v{12 + k}, {sW[m]}, v{24 + 4 * m + k}')
    a('v_cvt_pk_bf16_f32 v12, v12, v13\nv_cvt_pk_bf16_f32 v13, v14, v15')
    a('ds_write_b64 v2, v[12:13]')
    lds_inc('v3', F_ST, 'v4')
    lds_wait('L_s2s', 'v10', 'v3', F_ST, 4, 0)
    for s_ in range(12):
        a(f'ds_read_b128 v[{32 + 4 * s_}:{35 + 4 * s_}], v6 offset:{s_ * 64}')
    for s_ in range(24):
        a(f's_waitcnt lgkmcnt({11 if s_ < 12 else 23 - s_})')
        d = f'v[{12 + 4 * (s_ % 2)}:{15 + 4 * (s_ % 2)}]'
        a(f'v_mfma_f32_16x16x32_bf16 {d}, v[{128 + 4 * s_}:{131 + 4 * s_}], v[{32 + 4 * s_}:{35 + 4 * s_}], {d if s_ >= 2 else 0}')
        if s_ < 12:
            a(f'ds_read_b128 v[{80 + 4 * s_}:{83 + 4 * s_}], v6 offset:{(s_ + 12) * 64}')
    set_exec(0x00010001)
    for k in range(4):
        a(f'v_add_f32 v{12 + k}, v{12 + k}, v{16 + k}')
    tag(12, 4, 'v9')
    a(f'buffer_store_dwordx4 v[12:15], v5, {SWS}, {sOUTA} offen sc1')
    stamp(4)
    batch_end('L_s2b', [(sIN, 262144), (sOUTA, HPB), ('v2', 1536), ('v6', 1536)])

    a('L_ffn:')
    a(f's_mul_i32 {sB}, {sJ}, 6\ns_add_u32 {sA}, {sA}, {sB}\ns_sub_u32 {sA}, {sA}, 10')
    a('v_lshrrev_b32 v2, 2, v0\nv_mul_u32_u24 v2, 3072, v2\nv_lshl_add_u32 v2, v7, 4, v2')
    a(f's_lshl_b32 {sB}, {sA}, 6\ns_mul_i32 {sD}, {sWAVE}, {160 * 3072}\ns_add_u32 {sB}, {sB}, {sD}')
    dma_loop('L_dw1', SW1, 10, 16 * 3072)
    a('v_lshlrev_b32 v2, 4, v0')
    a(f's_mul_i32 {sB}, {sA}, 40960\ns_mul_i32 {sD}, {sWAVE}, 10240\ns_add_u32 {sB}, {sB}, {sD}')
    dma_loop('L_dw2', SW2, 10, 1024)
    a(f's_and_b32 {sB}, {sWAVE}, 1\ns_lshr_b32 {sC}, {sWAVE}, 1')
    a(f's_lshl_b32 {sA}, {sA}, 1\ns_add_u32 {sA}, {sA}, {sB}')
    a(f's_lshl_b32 {sD}, {sA}, 5\nv_lshlrev_b32 v10, 3, v5')
    a(f'buffer_load_dwordx2 v[246:247], v10, {SB1}, {sD} offen')
    a(f's_lshl_b32 {sOUTA}, {sA}, 6\ns_mul_i32 {sD}, {sC}, {20 * 6144}\ns_add_u32 {sOUTA}, {sOUTA}, {sD}\ns_add_u32 {sOUTA}, {sOUTA}, {YP}')
    weights_ready('L_wr4')
    a('v_lshlrev_b32 v10, 9, v5\nv_lshl_add_u32 v10, v6, 6, v10\nv_lshl_add_u32 v10, v7, 3, v10')
    a(f's_lshl_b32 {sD}, {sB}, 5\nv_add_u32 v10, {sD}, v10\nv_add_u32 v11, {2 * REG}, v10')
    a(f'v_lshrrev_b32 v12, 1, v5\nv_mul_u32_u24 v12, {REG}, v12\nv_bfe_u32 v13, v0, 2, 3\nv_mul_u32_u24 v13, 1280, v13')
    a('v_add_u32 v12, v12, v13\nv_lshl_add_u32 v12, v7, 3, v12')
    a(f's_mul_i32 {sD}, {sB}, {2 * REG}\ns_mul_i32 {sA}, {sC}, 640\ns_add_u32 {sD}, {sD}, {sA}\ns_add_u32 {sD}, {sD}, 10240')
    a(f'v_add_u32 v12, {sD}, v12')
    tr_reads([(144 + 4 * s_ + 2 * q, 'v10' if s_ < 10 else 'v11', (s_ // 5 % 2) * REG + (s_ % 5) * 2048 + q * 256) for s_ in range(20) for q in range(2)]
             + [(104 + 2 * T, 'v12', T * 32) for T in range(20)])
    MK, XR, CS, B1R = 224, 234, 240, 244
    for k in range(4):
        a(f'v_mov_b32 v{24 + k}, 0x3f803f80')
    for s_ in range(20):
        a(f'v_mfma_f32_16x16x32_bf16 v[{CS}:{CS + 3}], v[{144 + 4 * s_}:{147 + 4 * s_}], v[24:27], {f"v[{CS}:{CS + 3}]" if s_ else 0}')
    a('v_and_b32 v10, 15, v0')
    for T in range(10):
        a(f'v_cmp_eq_u32 vcc, {T}, v10\nv_cndmask_b32 v{MK + T}, 0, -1, vcc')
    a(f'v_lshlrev_b32 v{B1R}, 16, v246\nv_and_b32 v{B1R + 1}, {sHI}, v246')
    a(f'v_lshlrev_b32 v{B1R + 2}, 16, v247\nv_and_b32 v{B1R + 3}, {sHI}, v247')
    stamp(5)
    a('v_mul_u32_u24 v8, 6144, v10\nv_lshl_add_u32 v8, v5, 4, v8')
    a('v_lshrrev_b32 v1, 3, v0\nv_mul_u32_u24 v1, 2560, v1\nv_and_b32 v10, 7, v0\nv_lshl_add_u32 v1, v10, 4, v1')
    a('v_lshlrev_b32 v7, 3, v10\nv_lshl_add_u32 v7, v5, 1, v7')
    a(f's_mul_i32 {sXO}, {sWAVE}, 320\ns_add_u32 {sA}, {sXO}, {L_ACT}\nv_add_u32 v2, {sA}, v7')
    a(f's_lshl_b32 {sIN}, {sXO}, 1\ns_add_u32 {sIN}, {sIN}, {HP}')
    a(f'v_lshlrev_b32 v6, 4, v5\nv_add_u32 v6, {L_ACT}, v6')
    a(f'v_lshlrev_b32 v5, 2, v0\nv_add_u32 v5, {L_ACT}, v5')
    a(f's_mov_b32 {sC}, 0x3f803f80')
    batch_top('L_s4b')
    for i in range(5):
        a(f'buffer_load_ushort v{XR + i}, v7, {SX}, {sXO} offen offset:{i * 64}')
    a(f's_add_u32 {sD}, {sOUTA}, {10 * 6144}')
    wait_flush('L_s4w')
    a('s_waitcnt vmcnt(0)')
    for i in range(5):
        a(f'v_lshlrev_b32 v{XR + i}, 16, v{XR + i}')
    if prepoll:
        shadow_sleep('L_hp' if pre3 else 'L_hg', hsl, True)
        a('L_hp:')
        a(f'buffer_load_dwordx4 v[24:27], v1, {SWS}, {sIN} offen sc1')
        a('s_waitcnt vmcnt(0)')
        check(24, 4, 'v10', 'L_hp', 'L_hpd')
    a('L_hg:')
    for i in range(5):
        a(f'buffer_load_dwordx4 v[{24 + 4 * i}:{27 + 4 * i}], v1, {SWS}, {sIN} offen offset:{i * 128} sc1')
    a('s_waitcnt vmcnt(0)')
    check(24, 20, 'v10', 'L_hg', 'L_hgd')
    stamp(3)
    G = lambda i, e: f'v{24 + 4 * i + e}'
    for i in range(5):
        a(f'v_permlane16_swap_b32 {G(i, 0)}, {G(i, 1)}\nv_permlane16_swap_b32 {G(i, 2)}, {G(i, 3)}')
    for i in range(5):
        a(f'v_add_f32 {G(i, 0)}, {G(i, 0)}, {G(i, 1)}\nv_add_f32 {G(i, 2)}, {G(i, 2)}, {G(i, 3)}')
    for i in range(5):
        a(f'v_permlane32_swap_b32 {G(i, 0)}, {G(i, 2)}')
    for i in range(5):
        a(f'v_add_f32 {G(i, 0)}, {G(i, 0)}, {G(i, 2)}')
    for i in range(5):
        a(f'v_add_f32_dpp {G(i, 0)}, {G(i, 0)}, {G(i, 0)} row_ror:8 {DPPM}')
    for i in range(5):
        a(f'v_cvt_pk_bf16_f32 {G(i, 0)}, 0, {G(i, 0)}')
    for i in range(5):
        a(f'v_add_f32 {G(i, 0)}, {G(i, 0)}, v{XR + i}')
    for i in range(5):
        a(f'v_cvt_pk_bf16_f32 {G(i, 0)}, {G(i, 0)}, {G(i, 0)}')
        a(f'ds_write_b16 v2, {G(i, 0)} offset:{i * 64}')
    lds_inc('v3', F_ST, 'v4')
    lds_wait('L_s4s', 'v10', 'v3', F_ST, 4, 0)
    stamp(1)
    for i in range(5):
        a(f'ds_read_b32 v{XR + i}, v5 offset:{i * 256}')
    for s_ in range(10):
        a(f'ds_read_b128 v[{24 + 4 * s_}:{27 + 4 * s_}], v6 offset:{s_ * 64}')
    st = Asm()
    sv, a_main = a, a
    a = st
    U = 10
    for i in range(5):
        a(f'v_dot2_f32_bf16 v20, v{XR + i}, {sC}, {"v20" if i else 0}')
    for i in range(5):
        a(f'v_lshlrev_b32 v{U + 2 * i}, 16, v{XR + i}\nv_and_b32 v{U + 2 * i + 1}, {sHI}, v{XR + i}')
    allreduce('v_add_f32', 'v20', 'v21')
    a(f'v_mul_f32 v20, {f2u(1 / 640)}, v20')
    for i in range(5):
        a(f'v_pk_add_f32 v[{U + 2 * i}:{U + 2 * i + 1}], v[{U + 2 * i}:{U + 2 * i + 1}], v[20:21] op_sel_hi:[1,0] neg_lo:[0,1] neg_hi:[0,1]')
    for i in range(5):
        d = f'v[{U + 2 * i}:{U + 2 * i + 1}]'
        a(f'v_pk_mul_f32 v[22:23], {d}, {d}' if i == 0 else f'v_pk_fma_f32 v[22:23], {d}, {d}, v[22:23]')
    a('v_add_f32 v22, v22, v23')
    a('v_cvt_pk_bf16_f32 v20, 0, v20')
    allreduce('v_add_f32', 'v22', 'v23')
    a(f'v_mul_f32 v22, {f2u(1 / 640)}, v22\nv_cvt_pk_bf16_f32 v22, 0, v22')
    a(f'v_add_f32 v22, {f2u(1e-5)}, v22\nv_cvt_pk_bf16_f32 v22, 0, v22')
    a('v_sqrt_f32 v22, v22\nv_cvt_pk_bf16_f32 v22, 0, v22\nv_rcp_f32 v22, v22')
    a = a_main
    sl = list(st.l)
    per = (len(sl) + 19) // 20
    D0, D1 = 248, 252
    a('s_waitcnt lgkmcnt(10)')
    for s_ in range(20):
        for x in sl[s_ * per:(s_ + 1) * per]:
            a(x)
        a(f's_waitcnt lgkmcnt({9 if s_ < 10 else 19 - s_})')
        d = f'v[{D0 + 4 * (s_ % 2)}:{D0 + 3 + 4 * (s_ % 2)}]'
        a(f'v_mfma_f32_16x16x32_bf16 {d}, v[{144 + 4 * s_}:{147 + 4 * s_}], v[{24 + 4 * s_}:{27 + 4 * s_}], {d if s_ >= 2 else 0}')
        if s_ < 10:
            a(f'ds_read_b128 v[{64 + 4 * s_}:{67 + 4 * s_}], v6 offset:{(s_ + 10) * 64}')
    Z = lambda k: f'v{10 + k}'
    Y = lambda k: f'v{14 + k}'
    c2 = -2.0 * 0.7978845608028654 * 1.4426950408889634
    steps = [lambda k: f'v_add_f32 {Z(k)}, v{D0 + k}, v{D1 + k}',
             lambda k: f'v_fma_f32 {Z(k)}, -v20, v{CS + k}, {Z(k)}',
             lambda k: f'v_mul_f32 {Z(k)}, v22, {Z(k)}',
             lambda k: f'v_cvt_pk_bf16_f32 {Z(k)}, 0, {Z(k)}',
             lambda k: f'v_add_f32 {Z(k)}, {Z(k)}, v{B1R + k}',
             lambda k: f'v_cvt_pk_bf16_f32 {Z(k)}, 0, {Z(k)}',
             lambda k: f'v_mul_f32 {Y(k)}, {Z(k)}, {Z(k)}',
             lambda k: f'v_fmaak_f32 {Y(k)}, v18, {Y(k)}, {f2u(c2)}',
             lambda k: f'v_mul_f32 {Y(k)}, {Y(k)}, {Z(k)}',
             lambda k: f'v_exp_f32 {Y(k)}, {Y(k)}',
             lambda k: f'v_add_f32 {Y(k)}, 1.0, {Y(k)}',
             lambda k: f'v_rcp_f32 {Y(k)}, {Y(k)}',
             lambda k: f'v_mul_f32 {Z(k)}, {Z(k)}, {Y(k)}']
    a(f'v_mov_b32 v18, {f2u(c2 * 0.044715)}')
    for f in steps:
        for k in range(4):
            a(f(k))
    a('v_cvt_pk_bf16_f32 v10, v10, v11\nv_cvt_pk_bf16_f32 v11, v12, v13')
    for i in range(5):
        for e in range(4):
            a(f'v_and_b32 v{24 + 4 * i + e}, v{MK + 2 * i + e // 2}, v{10 + e % 2}')
    for i in range(5):
        for k in range(2):
            d = f'v[{D0 + 4 * k}:{D0 + 3 + 4 * k}]'
            w = 104 + 20 * k + 4 * i
            a(f'v_mfma_f32_16x16x32_bf16 {d}, v[{w}:{w + 3}], v[{24 + 4 * i}:{27 + 4 * i}], {d if i else 0}')
    set_exec(0x03ff03ff)
    for k in range(2):
        tag(D0 + 4 * k, 4, 'v9')
        a(f'buffer_store_dwordx4 v[{D0 + 4 * k}:{D0 + 3 + 4 * k}], v8, {SWS}, {sD if k else sOUTA} offen sc1')
    stamp(4)
    batch_end('L_s4b', [(sIN, HPB), (sOUTA, YPB), (sXO, 1280), ('v2', 1536), ('v5', 1536), ('v6', 1536)])

    a('L_s5:')
    a(f's_cmp_ge_u32 {sA}, 21\ns_cbranch_scc1 L_idle')
    a(f's_mul_i32 {sB}, {sJ}, 5\ns_add_u32 {sA}, {sA}, {sB}\ns_sub_u32 {sA}, {sA}, 16')
    a(f's_lshl_b32 {sB}, {sWAVE}, 4')
    a(f's_mul_i32 {sACT}, {sA}, 6144\ns_add_u32 {sACT}, {sACT}, {sB}\ns_add_u32 {sACT}, {sACT}, {YP}')
    a(f's_lshl_b32 {sIN}, {sA}, 6\ns_add_u32 {sIN}, {sIN}, {sB}')
    a(f's_lshr_b32 {sXO}, {sIN}, 1\ns_add_u32 {sIN}, {sIN}, {HP}')
    a('v_lshlrev_b32 v7, 1, v5')
    a(f'buffer_load_ushort v65, v7, {SB2}, {sXO} offen')
    a('v_lshrrev_b32 v1, 3, v0\nv_mul_u32_u24 v1, 2560, v1')
    a('v_lshlrev_b32 v2, 6, v0\nv_and_b32 v6, 31, v0\nv_lshlrev_b32 v6, 6, v6\nv_add_u32 v6, 4096, v6')
    a('s_waitcnt vmcnt(0)')
    a('v_lshlrev_b32 v65, 16, v65')

    def red_rows(b):
        a(f'v_permlane16_swap_b32 v{b}, v{b + 1}\nv_permlane16_swap_b32 v{b + 2}, v{b + 3}')
        a(f'v_add_f32 v{b}, v{b}, v{b + 1}\nv_add_f32 v{b + 2}, v{b + 2}, v{b + 3}')
        a(f'v_permlane32_swap_b32 v{b}, v{b + 2}')
        a(f'v_add_f32 v{b}, v{b}, v{b + 2}')
        a(f'v_add_f32_dpp v{b}, v{b}, v{b} row_ror:8 {DPPM}')

    batch_top('L_s5b')
    a(f'buffer_load_ushort v64, v7, {SX}, {sXO} offen')
    wait_flush('L_s5w')
    shadow_sleep('L_h5', hsl)
    a('L_h5:')
    a(f'buffer_load_dwordx4 v[20:23], v1, {SWS}, {sIN} offen sc1')
    a('s_waitcnt vmcnt(0)')
    check(20, 4, 'v10', 'L_h5', 'L_h5d')
    stamp(3)
    red_rows(20)
    a('v_lshlrev_b32 v64, 16, v64\nv_cvt_pk_bf16_f32 v20, 0, v20\nv_add_f32 v64, v64, v20\nv_cvt_pk_bf16_f32 v64, 0, v64')
    shadow_sleep('L_y5', ysl)
    a('L_y5:')
    a(f'buffer_load_dwordx4 v[20:23], v2, {SWS}, {sACT} offen sc1')
    a(f'buffer_load_dwordx4 v[24:27], v6, {SWS}, {sACT} offen sc1')
    a('s_waitcnt vmcnt(0)')
    check(20, 8, 'v10', 'L_y5', 'L_y5d')
    stamp(4)
    for k in range(4):
        a(f'v_fmac_f32 v{20 + k}, 0.5, v{24 + k}')
    red_rows(20)
    for mode in ('quad_perm:[1,0,3,2]', 'quad_perm:[2,3,0,1]', 'row_half_mirror'):
        a(f'v_add_f32_dpp v20, v20, v20 {mode} {DPPM}')
    a('v_cvt_pk_bf16_f32 v20, 0, v20\nv_add_f32 v20, v20, v65\nv_cvt_pk_bf16_f32 v20, 0, v20')
    a('v_add_f32 v20, v20, v64\nv_cvt_pk_bf16_f32 v20, v20, v20')
    set_exec(0x00010001)
    a(f'buffer_store_short v20, v7, {SOUT}, {sXO} offen')
    batch_end('L_s5b', [(sIN, HPB), (sACT, YPB), (sXO, 1280)])

    a('L_idle:')
    a(f's_cmp_lg_u32 {sWAVE}, 3\ns_cbranch_scc1 L_fin')
    batch_top('L_idb')
    wait_flush('L_idw')
    a(f's_cmp_eq_u32 {sBAT}, 2\ns_cbranch_scc1 L_fin')
    batch_end('L_idb', [])

    Q, ACC, AD, S, P, TM, RING, EXT0, EXT1, AD2 = 8, 20, 44, 52, 56, 64, 68, 116, 164, 212
    vMC, vL = 'v6', 'v7'
    s = [f'v{S + t}' for t in range(4)]
    t0, t1, t2, t3 = [f'v{TM + i}' for i in range(4)]

    def ld_tile(t, srd, soff, base=RING):
        for i in range(3):
            r = base + t * 12 + i * 4
            a(f'buffer_load_dwordx4 v[{r}:{r + 3}], v{1 + t // 2}, {srd}, {soff} offen offset:{(t % 2) * 3072 + i * 128} {pol}')

    def reset_state():
        for i in range(24):
            a(f'v_mov_b32 v{ACC + i}, 0')
        a(f'v_mov_b32 {vL}, 0\nv_mov_b32 {vMC}, 0xff7fffff')

    def load_q():
        for i in range(3):
            a(f'ds_read_b128 v[{Q + 4 * i}:{Q + 4 * i + 3}], v5 offset:{i * 128}')

    def kdot(t, base, ad):
        for k in range(12):
            acc = f'v{ad + 2 * t + k % 2}'
            a(f'v_dot2_f32_bf16 {acc}, v{base + t * 12 + k}, v{Q + k}, {acc if k >= 2 else 0}')

    def vdot(t, base):
        for k in range(12):
            for hl in range(2):
                a(f'v_dot2c_f32_bf16 v{ACC + (k // 4) * 8 + (k % 4) * 2 + hl}, v{base + t * 12 + k}, v{P + 2 * t + hl}')

    def softmax4(ad):
        for t in range(4):
            a(f'v_add_f32 {s[t]}, v{ad + 2 * t}, v{ad + 2 * t + 1}')
        for mode in ('quad_perm:[1,0,3,2]', 'quad_perm:[2,3,0,1]', 'row_half_mirror'):
            for t in range(4):
                a(f'v_add_f32_dpp {s[t]}, {s[t]}, {s[t]} {mode} {DPPM}')
        for rnd in range(2):
            a(f'v_cvt_pk_bf16_f32 {t0}, {s[0]}, {s[1]}\nv_cvt_pk_bf16_f32 {t1}, {s[2]}, {s[3]}')
            a(f'v_lshlrev_b32 {s[0]}, 16, {t0}\nv_and_b32 {s[1]}, {sHI}, {t0}')
            a(f'v_lshlrev_b32 {s[2]}, 16, {t1}\nv_and_b32 {s[3]}, {sHI}, {t1}')
            if rnd == 0:
                for t in range(4):
                    a(f'v_mul_f32 {s[t]}, {f2u(192 ** -0.5)}, {s[t]}')
        a(f'v_max3_f32 {t0}, {s[0]}, {s[1]}, {s[2]}\nv_max_f32 {t0}, {t0}, {s[3]}')
        a(f'v_mul_f32 {t0}, {sLOG2E}, {t0}\nv_max_f32 {t0}, {t0}, {vMC}')
        a(f'v_sub_f32 {t2}, {vMC}, {t0}\nv_mov_b32 {vMC}, {t0}')
        for t in range(4):
            a(f'v_fma_f32 {s[t]}, {s[t]}, {sLOG2E}, -{t0}')
        a(f'v_exp_f32 {t2}, {t2}')
        for t in range(4):
            a(f'v_exp_f32 {s[t]}, {s[t]}')
        for i in range(12):
            a(f'v_pk_mul_f32 v[{ACC + 2 * i}:{ACC + 2 * i + 1}], v[{ACC + 2 * i}:{ACC + 2 * i + 1}], v[{TM + 2}:{TM + 3}] op_sel_hi:[1,0]')
        for t in range(4):
            a(f'v_cvt_pk_bf16_f32 v{P + 2 * t}, {s[t]}, 0')
        for t in range(4):
            a(f'v_lshlrev_b32 v{P + 2 * t + 1}, 16, v{P + 2 * t}')
        a(f'v_fma_f32 {vL}, {vL}, {t2}, v{P + 1}')
        a(f'v_add_f32 {t0}, v{P + 3}, v{P + 5}\nv_add_f32 {vL}, {vL}, v{P + 7}\nv_add_f32 {vL}, {vL}, {t0}')

    def ld_one(slot, srd, soff):
        for i in range(3):
            r = RING + slot * 12 + i * 4
            a(f'buffer_load_dwordx4 v[{r}:{r + 3}], v1, {srd}, {soff} offen offset:{i * 128} {pol}')

    def claim(v, off):
        a(f'v_mov_b32 {v}, 1\ns_mov_b64 exec, 1')
        a(f'buffer_atomic_add {v}, v3, {SWS}, 0 offen offset:{off} sc0 sc1')
        a('s_mov_b64 exec, -1')

    def softmax1(t):
        x = s[0]
        a(f'v_add_f32 {x}, v{AD + 2 * t}, v{AD + 2 * t + 1}')
        for mode in ('quad_perm:[1,0,3,2]', 'quad_perm:[2,3,0,1]', 'row_half_mirror'):
            a(f'v_add_f32_dpp {x}, {x}, {x} {mode} {DPPM}')
        a(f'v_cvt_pk_bf16_f32 {x}, 0, {x}\nv_mul_f32 {x}, {f2u(192 ** -0.5)}, {x}\nv_cvt_pk_bf16_f32 {x}, 0, {x}')
        a(f'v_mul_f32 {t0}, {sLOG2E}, {x}\nv_max_f32 {t0}, {t0}, {vMC}')
        a(f'v_sub_f32 {t2}, {vMC}, {t0}\nv_mov_b32 {vMC}, {t0}')
        a(f'v_fma_f32 {x}, {x}, {sLOG2E}, -{t0}')
        a(f'v_exp_f32 {t2}, {t2}\nv_exp_f32 {x}, {x}')
        for i in range(12):
            a(f'v_pk_mul_f32 v[{ACC + 2 * i}:{ACC + 2 * i + 1}], v[{ACC + 2 * i}:{ACC + 2 * i + 1}], v[{TM + 2}:{TM + 3}] op_sel_hi:[1,0]')
        p = P + 2 * (t + 1)
        a(f'v_cvt_pk_bf16_f32 v{p}, {x}, 0\nv_cvt_pk_bf16_f32 v{p + 1}, 0, {x}')
        a(f'v_fma_f32 {vL}, {vL}, {t2}, v{p + 1}')

    assert SMALL % 4 == 0
    NBIG = 1024 - 16 - SMALL // 4
    vCA, vCB, vFL = 'v220', 'v221', 'v222'
    a('L_stream:')
    a('v_lshrrev_b32 v1, 3, v0\nv_mul_u32_u24 v1, 384, v1\nv_and_b32 v5, 7, v0\nv_lshlrev_b32 v5, 4, v5\nv_add_u32 v1, v1, v5')
    a('v_add_u32 v2, 6144, v1')
    a(f's_sub_u32 {sA}, {sWAVE}, 4')
    a(f's_mul_i32 {sHB}, {sH}, {PROB}')
    a(f's_lshl_b32 {sC}, {sJ}, 2\ns_add_u32 {sC}, {sC}, {sA}\ns_add_u32 {sST}, {sC}, 64\ns_mul_i32 {sC}, {sC}, {ITEM}\nv_mov_b32 v4, 0')
    a(f's_add_u32 {sNEXT}, {sHB}, {sC}')
    a(f's_add_u32 {sCUR}, {sNEXT}, {32 * ITEM}')
    a(f's_lshr_b32 {sC}, {sC}, 1\ns_add_u32 {sSB}, {sHB}, {sC}\ns_add_u32 {sSB}, {sSB}, {3 * BSTR + (NBIG - 768) * ITEM}')
    a(f's_lshl_b32 {sC}, {sH}, 8\ns_add_u32 {sC}, {sC}, {CT}\nv_mov_b32 v3, {sC}')
    a(f'v_add_u32 v5, {L_Q}, v5\nv_mov_b32 {vFL}, {L_FLAG}')
    a(f's_mul_i32 {sPB}, {sA}, {4 * PARTP}\ns_add_u32 {sPB}, {sPB}, {L_PART}')
    a(f's_mov_b32 {sCB}, 0\ns_mov_b32 {sMODE}, 2')
    a('s_waitcnt lgkmcnt(0)')
    a('s_barrier')
    for t in range(4):
        ld_tile(t, SK, sNEXT, EXT0)
    reset_state()
    for t in range(4):
        a(f's_waitcnt vmcnt({PWIN})')
        ld_tile(t, SV, sNEXT, EXT1)
    for t in range(4):
        a(f's_waitcnt vmcnt({PWIN})')
        ld_tile(t, SK, sCUR)
    stamp(3)
    lds_wait('L_wqs', t0, vFL, F_Q, 3, 1)
    stamp(1)
    load_q()
    get_nonce('L_nps', t0)
    a('L_item:')
    for t in range(4):
        a(f's_waitcnt vmcnt({10 if t and NSTAT == 2 else 9})')
        kdot(t, RING, AD)
        if t == 0:
            if NSTAT > 2:
                a(f's_cmp_lt_u32 {sST}, {NSTAT * 32}\ns_cbranch_scc1 L_noclaim')
            claim('v4', 0)
            a('L_noclaim:')
        ld_tile(t, SV, sCUR)
    a(f's_cmp_eq_u32 {sMODE}, 2\ns_cbranch_scc1 L_first')
    a('L_mid:')
    softmax4(AD)
    a('s_waitcnt vmcnt(9)')
    a(f'v_readfirstlane_b32 {sA}, v4')
    vdot(0, RING)
    a(f's_add_u32 {sA}, {sA}, {NSTAT * 32}')
    if NSTAT > 2:
        a(f's_cmp_lt_u32 {sST}, {NSTAT * 32}\ns_cselect_b32 {sA}, {sST}, {sA}\ns_add_u32 {sST}, {sST}, 32')
    a(f's_cmp_ge_u32 {sA}, {NBIG}\ns_cbranch_scc1 L_trans')
    a(f's_lshr_b32 {sNB}, {sA}, 8\ns_mul_i32 {sB}, {sNB}, {BSTR - PROB}\ns_mul_i32 {sA}, {sA}, {ITEM}')
    a(f's_add_u32 {sCUR}, {sHB}, {sA}\ns_add_u32 {sCUR}, {sCUR}, {sB}')
    for t in range(4):
        if t:
            a('s_waitcnt vmcnt(9)')
            vdot(t, RING)
        ld_tile(t, SK, sCUR)
    a(f's_cmp_eq_u32 {sNB}, {sCB}\ns_cbranch_scc1 L_item')

    a('L_flush:')
    M, LL = f'v{TM}', f'v{TM + 1}'
    a(f'v_mov_b32 {M}, {vMC}')
    allreduce('v_max_f32', M, t3, low=False)
    a(f'v_sub_f32 {t2}, {vMC}, {M}\nv_exp_f32 {t2}, {t2}')
    a(f'v_and_b32 v{S}, 7, v0\nv_lshlrev_b32 v{S}, 5, v{S}\nv_lshrrev_b32 v{S + 1}, 4, v0\nv_lshl_add_u32 v{S}, v{S + 1}, 3, v{S}')
    a(f'v_add_u32 v{S}, {sPB}, v{S}\nv_mov_b32 v{S + 1}, {sPB}')
    a(f'v_mul_f32 {LL}, {vL}, {t2}')
    for i in range(12):
        a(f'v_pk_mul_f32 v[{ACC + 2 * i}:{ACC + 2 * i + 1}], v[{ACC + 2 * i}:{ACC + 2 * i + 1}], v[{TM + 2}:{TM + 3}] op_sel_hi:[1,0]')
    allreduce('v_add_f32', LL, t3, low=False)
    for sw, es, dl in (('v_permlane16_swap_b32', (0, 1, 4, 5), 2), ('v_permlane32_swap_b32', (0, 1), 4)):
        for i in range(3):
            for e in es:
                a(f'{sw} v{ACC + 8 * i + e}, v{ACC + 8 * i + e + dl}')
        for i in range(3):
            for e in es:
                a(f'v_add_f32 v{ACC + 8 * i + e}, v{ACC + 8 * i + e}, v{ACC + 8 * i + e + dl}')
    for i in range(3):
        for e in (0, 1):
            r = f'v{ACC + 8 * i + e}'
            a(f'v_add_f32_dpp {r}, {r}, {r} row_ror:8 {DPPM}')
    a(f'v_mov_b32 {t2}, 1')
    for i in range(3):
        a(f'ds_write_b64 v{S}, v[{ACC + 8 * i}:{ACC + 8 * i + 1}] offset:{i * 256}')
    a('s_mov_b64 exec, 1')
    a(f'ds_write_b64 v{S + 1}, v[{TM}:{TM + 1}] offset:768')
    a(f'ds_add_rtn_u32 {t2}, {vFL}, {t2} offset:{F_FL}')
    a('s_mov_b64 exec, -1')
    a(f's_cmp_lg_u32 {sCB}, 3\ns_cbranch_scc1 L_nos1')
    s1_setup(sCB)
    a('s_waitcnt lgkmcnt(0)')
    stamp(2)
    a(f'v_readfirstlane_b32 {sA}, {t2}')
    a('s_nop 1')
    a(f's_cmp_lg_u32 {sA}, 3\ns_cbranch_scc1 L_fin')
    a('L_s1:')
    for w in range(4):
        a(f'ds_read_b64 v[{10 + 2 * w}:{11 + 2 * w}], v53 offset:{w * 4 * PARTP + 768}')
    for w in range(4):
        a(f'ds_read_b128 v[{20 + 4 * w}:{23 + 4 * w}], v52 offset:{w * 4 * PARTP}')
    a('v_cmp_eq_u32 vcc, 48, v0')
    a('s_waitcnt lgkmcnt(4)')
    a('v_max3_f32 v18, v10, v12, v14\nv_max_f32 v18, v18, v16')
    for w in range(4):
        a(f'v_sub_f32 v{10 + 2 * w}, v{10 + 2 * w}, v18')
    for w in range(4):
        a(f'v_exp_f32 v{10 + 2 * w}, v{10 + 2 * w}')
    a('v_mul_f32 v19, v10, v11')
    for w in range(1, 4):
        a(f'v_fmac_f32 v19, v{10 + 2 * w}, v{11 + 2 * w}')
    a('s_waitcnt lgkmcnt(0)')
    for k in range(4):
        a(f'v_mul_f32 v{20 + k}, v10, v{20 + k}')
    for w in range(1, 4):
        for k in range(4):
            a(f'v_fmac_f32 v{20 + k}, v{10 + 2 * w}, v{20 + 4 * w + k}')
    a('v_lshlrev_b32 v17, 8, v18')
    a('v_cndmask_b32 v10, v20, v18, vcc\nv_cndmask_b32 v11, v21, v19, vcc\nv_cndmask_b32 v12, v22, v17, vcc')
    for k in range(4):
        a(f'v_bfi_b32 v{56 + k}, v55, {sT[k]}, v{10 + k if k < 3 else 23}')
    a('s_mov_b32 exec_hi, 0x1ffff')
    a(f'buffer_store_dwordx4 v[56:59], v54, {SWS}, {sB} offen sc1')
    a('s_mov_b32 exec_hi, -1')
    if diag:
        a(f's_cmp_lt_u32 {sWAVE}, 4\ns_cbranch_scc1 L_s1x')
        stamp(5)
        a('L_s1x:')
    a(f's_cmp_ge_u32 {sWAVE}, 4\ns_cbranch_scc1 L_fin')
    a(f's_cmp_lt_u32 {sROLE}, 10\ns_cbranch_scc1 L_s2wr')
    a(f's_cmp_lt_u32 {sROLE}, 16\ns_cbranch_scc1 L_s4wr')
    a(f's_cmp_lt_u32 {sROLE}, 21\ns_cbranch_scc1 L_s5wr')
    a('s_branch L_idwr')
    a('L_nos1:')
    a(f's_add_u32 {sCB}, {sCB}, 1')
    a('s_waitcnt lgkmcnt(0)')
    if pst:
        for b, k in ((1, 6), (2, 3), (3, 4)):
            a(f's_cmp_lg_u32 {sCB}, {b}\ns_cbranch_scc1 L_st{k}')
            stamp(k)
            a(f'L_st{k}:')
    a(f's_add_u32 {sPB}, {sPB}, {PARTP}')
    a(f'v_add_u32 v5, 384, v5\nv_add_u32 {vFL}, 4, {vFL}')
    reset_state()
    a(f's_cmp_lt_u32 {sCB}, {sNB}\ns_cbranch_scc1 L_flush')
    load_q()
    a('s_waitcnt lgkmcnt(0)')
    a(f's_cmp_eq_u32 {sMODE}, 0\ns_cbranch_scc1 L_item')
    a('s_branch L_small')

    a('L_first:')
    for t in range(4):
        kdot(t, EXT0, AD2)
    softmax4(AD2)
    for t in range(4):
        vdot(t, EXT1)
    a(f's_mov_b32 {sMODE}, 0')
    stamp(4)
    a('s_branch L_mid')

    a('L_trans:')
    a(f's_mov_b32 {sCUR}, {sSB}\ns_add_u32 {sNEXT}, {sSB}, 3072')
    a(f's_add_u32 {sSB}, {sHB}, {3 * BSTR + (NBIG - 768 + 16) * ITEM}')
    a(f's_mov_b32 {sMODE}, 1\ns_mov_b32 {sNB}, 3')
    for t in range(4):
        if t:
            a(f's_waitcnt vmcnt({(9, 10, 10, 11)[t]})')
            vdot(t, RING)
        if t % 2 == 0:
            claim(vCB if t else vCA, 128)
        ld_one(t, SV if t % 2 else SK, sNEXT if t >= 2 else sCUR)
    if not pst:
        stamp(6)
    a(f's_cmp_lg_u32 {sCB}, 3\ns_cbranch_scc1 L_flush')
    a('L_small:')
    a(f's_mov_b32 {sNB}, 4')
    for t, sX, vC in ((0, sCUR, vCA), (2, sNEXT, vCB)):
        a(f's_cmp_ge_u32 {sX}, {NB_KV}\ns_cbranch_scc1 L_flush')
        a('s_waitcnt vmcnt(10)')
        a(f'v_readfirstlane_b32 {sA}, {vC}')
        kdot(t, RING, AD)
        a(f's_mul_i32 {sB}, {sA}, 3072\ns_add_u32 {sB}, {sB}, {sSB}')
        a(f's_cmp_lt_u32 {sA}, {SMALL}\ns_cselect_b32 {sX}, {sB}, {NB_KV}')
        claim(vC, 128)
        ld_one(t, SK, sX)
        softmax1(t)
        a('s_waitcnt vmcnt(11)')
        vdot(t + 1, RING)
        ld_one(t + 1, SV, sX)
    a('s_branch L_small')

    a('L_fin:')
    if diag:
        a('s_waitcnt vmcnt(0)')
        stamp(7)
        a('s_mov_b64 exec, -1')
        a('s_load_dwordx2 s[8:9], s[0:1], 96')
        a('s_getreg_b32 s62, hwreg(20, 0, 4)')
        a('s_waitcnt lgkmcnt(0)')
        a('s_add_u32 s8, s8, 0x40000000\ns_addc_u32 s9, s9, 0\ns_mov_b32 s10, 0x200000')
        a(f's_lshl_b32 {sA}, s2, 3\ns_add_u32 {sA}, {sA}, {sWAVE}')
        a(f's_lshl_b32 {sB}, {sA}, 5\nv_mov_b32 v1, {sB}')
        a(f's_lshl_b32 {sB}, {sA}, 6\ns_add_u32 {sB}, {sB}, 0x100000\nv_mov_b32 v2, {sB}')
        a('v_mov_b32 v4, s84\nv_mov_b32 v5, s85\nv_mov_b32 v6, s98\nv_mov_b32 v7, s99')
        a(f'v_mov_b32 v8, s62\nv_mov_b32 v9, 0\nv_mov_b32 v10, s96\nv_mov_b32 v11, s97')
        for i in range(16):
            a(f'v_mov_b32 v{12 + i}, s{84 + i}')
        a('s_mov_b64 exec, 1')
        a('buffer_store_dwordx4 v[4:7], v1, s[8:11], 0 offen')
        a('buffer_store_dwordx4 v[8:11], v1, s[8:11], 0 offen offset:16')
        for i in range(4):
            a(f'buffer_store_dwordx4 v[{12 + 4 * i}:{15 + 4 * i}], v2, s[8:11], 0 offen offset:{16 * i}')
    a('L_end:')
    a('s_endpgm')

    ref = open(f'cdna_kernels/{NAME}.s.ref').read().split('\n')
    head = [x for x in ref if x.startswith(';') and '@launch' not in x and not x.startswith('; Override') and not x.startswith('; grid=')]
    out = '\n'.join(head) + f'\n; @launch grid=(256,1,1) block=(512,1,1) lds={LDS_SZ}\n'
    out += f'.amdgcn_target "amdgcn-amd-amdhsa--gfx950"\n.text\n.globl {KERN}\n.p2align 8\n.type {KERN},@function\n'
    out += a.text() + '\n'
    out += f'''.section .rodata,"a"
.p2align 6
.amdhsa_kernel {KERN}
  .amdhsa_next_free_vgpr 256
  .amdhsa_next_free_sgpr 102
  .amdhsa_accum_offset 256
  .amdhsa_group_segment_fixed_size 0
  .amdhsa_kernarg_size 104
  .amdhsa_user_sgpr_count 2
  .amdhsa_user_sgpr_kernarg_segment_ptr 1
  .amdhsa_system_sgpr_workgroup_id_x 1
.end_amdhsa_kernel
'''
    return out


if __name__ == '__main__':
    kw = eval('dict(' + (sys.argv[2] if len(sys.argv) > 2 else '') + ')')
    open(sys.argv[1], 'w').write(gen(**kw))
```

```python
import os, sys, struct
from asmlib import Asm

NAME = 'sequential_preLN__mha_block_cached__dense_activation_gelu__decode'
KERN = NAME + '_kernel'


def f2u(x):
    return '0x%08x' % struct.unpack('<I', struct.pack('<f', x))[0]


NB_KV = 402653184
PROB = 3145728
BSTR = 100663296
ITEM = 12288
QP, OP, HP, CT, AP, WS_SZ = 0x0, 0x100000, 0x200000, 0x280000, 0x300000, 0x400000
HPB, APB = 20480, 6144
REG = 24576
L_Q = 98304
L_PART = 99840
PARTP = 784
L_FLAG = 112384
F_Q, F_NONCE, F_W, F_T1, F_T2, F_FL, F_ST, F_H = 0, 4, 8, 12, 16, 16, 32, 48
L_ACT = 112448
L_TAB = 118592
L_TAB2 = L_TAB + 1024
LDS_SZ = 120128
SK, SV, SWS, SDBG, SX, SWQ, SWO, SW1, SW2, SOUT, SB1, SB2 = [f's[{i}:{i+3}]' for i in range(8, 56, 4)]
SRD = {'K': (8, 8, NB_KV), 'V': (12, 16, NB_KV), 'WS': (16, 96, WS_SZ), 'DBG': (20, 88, 256), 'X': (24, 0, 5120),
       'WQ': (28, 24, 7864320), 'WO': (32, 32, 7864320), 'W1': (36, 48, 1966080), 'W2': (40, 64, 1966080),
       'OUT': (44, 80, 5120), 'B1': (48, 56, 3072), 'B2': (52, 72, 1280)}
sWAVE, sH, sJ = 's3', 's4', 's5'
sCUR, sNEXT, sHB, sCB, sNB, sPB, sMODE, sSB = 's56', 's57', 's58', 's59', 's60', 's61', 's6', 's7'
sBAT, sROLE, sIN, sOUTA, sACT, sXO = 's56', 's57', 's58', 's59', 's60', 's61'
sT = ['s64', 's65', 's66', 's67']
sSPIN, sST, sHI, sLOG2E = 's68', 's69', 's70', 's71'
sA, sB, sC, sD = 's72', 's73', 's74', 's75'
sPH = 's79'
SPIN = 1 << 14
DPPM = 'row_mask:0xf bank_mask:0xf'


def gen(diag=False, pol='nt', pst=False, PWIN=9, WWIN=7, SMALL=128, SLP=32, FSLP=2, NSTAT=18, pp2=7, pp4=4, ysl=0, hsl=0, early=1, SLP0=100, QSL=0, dbt=False, pnt='', sb=3, noq=False, WSL=0, PSL=0):
    a = Asm()
    nstamp = [0]

    def stamp(i):
        if diag:
            a(f's_memrealtime s[{84 + 2 * i}:{85 + 2 * i}]')

    def bstamp(i):
        if diag and sb < 3:
            nstamp[0] += 1
            a(f's_cmp_lg_u32 {sBAT}, {sb}\ns_cbranch_scc1 L_bs{nstamp[0]}')
            stamp(i)
            a(f'L_bs{nstamp[0]}:')
        else:
            stamp(i)

    def dstamp(i, op='umax'):
        if dbt:
            a('s_memrealtime s[84:85]\ns_mov_b64 s[86:87], exec\ns_mov_b64 exec, 1\ns_waitcnt lgkmcnt(0)')
            a('v_mov_b32 v254, s84\nv_mov_b32 v255, 0')
            if op == 'umin':
                a('v_sub_u32 v254, 0, v254')
            a(f'buffer_atomic_umax v254, v255, {SDBG}, 0 offen offset:{4 * i} sc1')
            a('s_mov_b64 exec, s[86:87]')

    def allreduce(op, r, t, low=True):
        if low:
            a(f'{op}_dpp {r}, {r}, {r} quad_perm:[1,0,3,2] {DPPM}')
            a(f'{op}_dpp {r}, {r}, {r} quad_perm:[2,3,0,1] {DPPM}')
            a(f'{op}_dpp {r}, {r}, {r} row_half_mirror {DPPM}')
        a(f'{op}_dpp {r}, {r}, {r} row_ror:8 {DPPM}')
        for sw in ('v_permlane16_swap_b32', 'v_permlane32_swap_b32'):
            a(f'v_mov_b32 {t}, {r}')
            a(f'{sw} {r}, {t}')
            a(f'{op} {r}, {r}, {t}')

    def rbf(r):
        a(f'v_cvt_pk_bf16_f32 {r}, {r}, {r}')
        a(f'v_and_b32 {r}, {sHI}, {r}')

    def tag(base, n, vM):
        for i in range(n):
            a(f'v_bfi_b32 v{base + i}, {vM}, {sT[i % 4]}, v{base + i}')

    def check(base, n, chk, label, done, sleep=True, tags=None, mask='v9', step=1):
        tags = tags or sT
        c2 = f'v{int(chk[1:]) + 1}'
        a(f'v_xor_b32 {chk}, {tags[0]}, v{base}\nv_xor_b32 {c2}, {tags[1 % len(tags)]}, v{base + step}')
        for i in range(2, n):
            c = chk if i % 2 == 0 else c2
            a(f'v_bitop3_b32 {c}, {c}, v{base + i * step}, {tags[i % len(tags)]} bitop3:0xf6')
        a(f'v_bitop3_b32 {chk}, {chk}, {c2}, {mask} bitop3:0xa8')
        a(f'v_cmp_ne_u32 vcc, 0, {chk}')
        a(f's_cbranch_vccz {done}')
        a(f's_sub_u32 {sSPIN}, {sSPIN}, 1')
        a(f's_cbranch_scc1 {done}')
        if sleep:
            a(f's_cmp_eq_u32 {sBAT}, 3\ns_cbranch_scc1 {label}')
            a(f's_sleep {SLP}')
            if SLP0:
                a(f's_cmp_lg_u32 {sBAT}, 0\ns_cbranch_scc1 {label}\ns_sleep {SLP0}')
        a(f's_branch {label}')
        a(f'{done}:')
        a(f's_mov_b32 {sSPIN}, {SPIN}')

    def get_nonce(lab, t):
        a(f'{lab}:')
        a(f'v_mov_b32 {t}, {L_FLAG}')
        a(f'ds_read_b32 {t}, {t} offset:{F_NONCE}')
        a('s_waitcnt lgkmcnt(0)')
        a(f'v_readfirstlane_b32 {sT[0]}, {t}')
        a('s_nop 1')
        a(f's_cmp_eq_u32 {sT[0]}, 0\ns_cbranch_scc1 {lab}')
        for i in (1, 2, 3):
            a(f's_lshr_b32 {sT[i]}, {sT[0]}, {8 * i}')

    def lds_wait(lab, t, vaddr, off, val, slp):
        a(f'{lab}:')
        a(f'ds_read_b32 {t}, {vaddr} offset:{off}')
        a('s_waitcnt lgkmcnt(0)')
        a(f'v_cmp_ne_u32 vcc, {val}, {t}')
        if slp:
            a(f's_cbranch_vccz {lab}d')
            a(f's_sleep {slp}\ns_branch {lab}')
            a(f'{lab}d:')
        else:
            a(f's_cbranch_vccnz {lab}')

    def lds_inc(vaddr, off, one):
        a('s_mov_b64 exec, 1')
        a(f'ds_add_u32 {vaddr}, {one} offset:{off}')
        a('s_mov_b64 exec, -1')

    def set_exec(m):
        a(f's_mov_b32 exec_lo, {m:#x}\ns_mov_b32 exec_hi, {m:#x}')

    a(f'{KERN}:')
    a('s_cmp_ge_u32 s2, 256\ns_cbranch_scc1 L_end')
    for k in ('X', 'WQ', 'K', 'DBG', 'WS', 'V', 'WO', 'W1', 'W2', 'OUT', 'B1', 'B2'):
        r, off, _ = SRD[k]
        a(f's_load_dwordx2 s[{r}:{r + 1}], s[0:1], {off}')
    a('s_memrealtime s[62:63]')
    stamp(0)
    a('v_lshrrev_b32 v1, 6, v0\nv_and_b32 v0, 63, v0')
    a(f'v_readfirstlane_b32 {sWAVE}, v1')
    for k, (r, off, sz) in SRD.items():
        a(f's_mov_b32 s{r + 2}, {sz}\ns_mov_b32 s{r + 3}, 0x20000')
    a(f's_lshr_b32 {sH}, s2, 3\ns_and_b32 {sJ}, s2, 7')
    a(f's_mov_b32 {sHI}, 0xffff0000\ns_mov_b32 {sLOG2E}, {f2u(1.4426950408889634)}')
    a(f's_mov_b32 {sSPIN}, {SPIN}')
    a(f's_cmp_ge_u32 {sWAVE}, 4\ns_cbranch_scc1 L_stream')

    sP, sQO = 's80', 's81'
    a(f's_cmp_lg_u32 {sWAVE}, 3\ns_cbranch_scc1 L_h0')
    for k in range(4):
        a(f'v_mov_b32 v{12 + k}, 0')
    a(f'v_and_b32 v5, 15, v0\nv_lshlrev_b32 v5, 2, v5\nv_add_u32 v5, {L_FLAG}, v5')
    a('ds_write_b32 v5, v12')
    a(f'v_lshlrev_b32 v5, 4, v0\nv_lshlrev_b32 v6, 3, v0\nv_add_u32 v10, {L_TAB}, v5\nv_add_u32 v6, {L_TAB2}, v6')
    a('ds_write_b128 v10, v[12:15]\nds_write_b64 v6, v[12:13]')
    a(f's_lshr_b32 {sA}, {sJ}, 2\ns_mul_i32 {sA}, {sA}, 240\ns_lshl_b32 {sB}, {sJ}, 2\ns_add_u32 {sB}, {sB}, 1\ns_add_u32 {sA}, {sA}, {sB}')
    a(f'v_add_u32 v6, {sA}, v5\nv_lshlrev_b32 v5, 5, v0\nv_add_u32 v5, {sB}, v5')
    a('v_cmp_gt_u32 vcc, 16, v0\nv_cndmask_b32 v5, v5, v6, vcc')
    a(f'v_cmp_gt_u32 vcc, {NSTAT}, v0\nv_cndmask_b32 v5, 0, v5, vcc')
    a(f'v_lshlrev_b32 v6, 2, v0\nv_add_u32 v6, {L_TAB}, v6')
    a('ds_write_b32 v6, v5')
    a('s_cmp_lg_u32 s2, 0\ns_cbranch_scc1 L_h0')
    a('v_lshlrev_b32 v7, 6, v0\ns_waitcnt lgkmcnt(0)')
    a(f's_mul_i32 {sB}, s62, 0x9e3779b1\ns_or_b32 {sB}, {sB}, 1\nv_mov_b32 v5, {sB}')
    a('s_mov_b64 exec, 15')
    a(f'buffer_store_dword v5, v7, {SDBG}, 0 offen sc1')
    a('s_mov_b64 exec, -1')
    a('L_h0:')
    a('v_and_b32 v1, 3, v0\nv_mul_u32_u24 v1, 1280, v1\nv_lshrrev_b32 v2, 2, v0\nv_mul_u32_u24 v3, 80, v2\nv_add_u32 v3, v3, v1')
    a('v_lshrrev_b32 v4, 4, v0\nv_lshl_add_u32 v4, v4, 3, v1')
    a('v_lshrrev_b32 v5, 3, v0\nv_mul_u32_u24 v5, 12288, v5\nv_and_b32 v6, 7, v0\nv_lshl_add_u32 v5, v6, 4, v5')
    a(f's_add_u32 {sP}, {sJ}, {sH}\ns_and_b32 {sP}, {sP}, 7')
    a(f's_and_b32 {sD}, {sP}, 1\ns_lshl_b32 {sD}, {sD}, 2\ns_add_u32 {sD}, {sD}, {sWAVE}')
    a(f's_mul_i32 {sA}, {sD}, 160')
    a(f's_mul_i32 {sB}, {sD}, {80 * 12288}\ns_mul_i32 {sC}, {sH}, 384\ns_add_u32 {sB}, {sB}, {sC}')
    a(f's_lshr_b32 {sC}, {sP}, 1\ns_lshl_b32 {sC}, {sC}, 7\ns_add_u32 {sB}, {sB}, {sC}')
    a(f's_mul_i32 {sC}, {sWAVE}, {REG}\ns_mul_i32 {sQO}, {sH}, 6144')
    a('s_waitcnt lgkmcnt(0)')
    a(f's_cmp_ge_u32 {sP}, 6\ns_cbranch_scc1 L_nold')
    for i in range(5):
        a(f'buffer_load_dwordx4 v[{20 + 4 * i}:{23 + 4 * i}], v3, {SX}, 0 offen offset:{i * 16}')
    for i in range(5):
        a(f'buffer_load_dwordx2 v[{10 + 2 * i}:{11 + 2 * i}], v4, {SX}, {sA} offen offset:{i * 32}')
    for u in range(10):
        a(f's_mov_b32 m0, {sC}')
        a(f'buffer_load_dwordx4 v5, {SWQ}, {sB} offen nt lds')
        if u < 9:
            a(f's_add_u32 {sB}, {sB}, {8 * 12288}\ns_add_u32 {sC}, {sC}, 1024')
    a('L_nold:')
    a('s_barrier')
    a(f's_cmp_lg_u32 {sWAVE}, 3\ns_cbranch_scc1 L_h1')
    for i in (3, 0, 1, 2):
        a(f's_load_dword {sT[0]}, s[20:21], {64 * i}')
        a('s_waitcnt lgkmcnt(0)')
        a(f's_cmp_lg_u32 {sT[0]}, 0\ns_cbranch_scc1 L_ngot')
    a('v_mov_b32 v7, 0')
    a('L_nv:')
    a(f'buffer_load_dword v6, v7, {SDBG}, 0 offen sc1')
    a('s_waitcnt vmcnt(0)')
    a(f'v_readfirstlane_b32 {sT[0]}, v6')
    a(f's_sub_u32 {sSPIN}, {sSPIN}, 1\ns_cselect_b32 {sT[0]}, 1, {sT[0]}')
    a(f's_cmp_eq_u32 {sT[0]}, 0\ns_cbranch_scc1 L_nv')
    a(f's_mov_b32 {sSPIN}, {SPIN}')
    a('L_ngot:')
    a(f'v_mov_b32 v6, {sT[0]}\nv_mov_b32 v7, {L_FLAG}')
    a(f'ds_write_b32 v7, v6 offset:{F_NONCE}')
    a('L_h1:')
    a(f's_cmp_ge_u32 {sP}, 6\ns_cbranch_scc1 L_nop')
    a(f's_or_b32 {sB}, {sP}, {sWAVE}\ns_cbranch_scc1 L_noct')
    a(f's_lshl_b32 {sB}, {sH}, 8\ns_add_u32 {sB}, {sB}, {CT}')
    a('v_mov_b32 v6, 0\nv_lshlrev_b32 v7, 7, v0\ns_mov_b64 exec, 3')
    a(f'buffer_store_dword v6, v7, {SWS}, {sB} offen sc1')
    a('s_mov_b64 exec, -1')
    a('L_noct:')
    a('s_waitcnt vmcnt(10)')
    stamp(1)
    a(f's_mov_b32 {sD}, 0x3f803f80')
    for i in range(20):
        acc = f'v{6 + i % 2}'
        a(f'v_dot2_f32_bf16 {acc}, v{20 + i}, {sD}, {acc if i >= 2 else 0}')
    for i in range(20):
        a(f'v_lshlrev_b32 v{40 + 2 * i}, 16, v{20 + i}\nv_and_b32 v{41 + 2 * i}, {sHI}, v{20 + i}')
    a('v_add_f32 v6, v6, v7')

    def red4(r, t):
        a(f'v_add_f32_dpp {r}, {r}, {r} row_ror:4 {DPPM}')
        allreduce('v_add_f32', r, t, low=False)
    red4('v6', 'v7')
    a(f'v_mul_f32 v6, {f2u(1 / 640)}, v6')
    for i in range(20):
        a(f'v_pk_add_f32 v[{40 + 2 * i}:{41 + 2 * i}], v[{40 + 2 * i}:{41 + 2 * i}], v[6:7] op_sel_hi:[1,0] neg_lo:[0,1] neg_hi:[0,1]')
    for i in range(20):
        d = f'v[{40 + 2 * i}:{41 + 2 * i}]'
        acc = f'v[{20 + 2 * (i % 2)}:{21 + 2 * (i % 2)}]'
        a(f'v_pk_mul_f32 {acc}, {d}, {d}' if i < 2 else f'v_pk_fma_f32 {acc}, {d}, {d}, {acc}')
    rbf('v6')
    for i in range(10):
        a(f'v_lshlrev_b32 v{40 + 2 * i}, 16, v{10 + i}\nv_and_b32 v{41 + 2 * i}, {sHI}, v{10 + i}')
    a('v_add_f32 v20, v20, v21\nv_add_f32 v22, v22, v23\nv_add_f32 v8, v20, v22')
    red4('v8', 'v9')
    for i in range(10):
        a(f'v_pk_add_f32 v[{40 + 2 * i}:{41 + 2 * i}], v[{40 + 2 * i}:{41 + 2 * i}], v[6:7] op_sel_hi:[1,0] neg_lo:[0,1] neg_hi:[0,1]')
    a(f'v_mul_f32 v8, {f2u(1 / 640)}, v8')
    rbf('v8')
    a(f'v_add_f32 v8, {f2u(1e-5)}, v8')
    rbf('v8')
    a('v_sqrt_f32 v8, v8')
    for i in range(10):
        a(f'v_cvt_pk_bf16_f32 v{10 + i}, v{40 + 2 * i}, v{41 + 2 * i}')
    rbf('v8')
    a('v_rcp_f32 v8, v8')
    for i in range(10):
        a(f'v_lshlrev_b32 v{40 + 2 * i}, 16, v{10 + i}\nv_and_b32 v{41 + 2 * i}, {sHI}, v{10 + i}')
    for i in range(10):
        a(f'v_pk_mul_f32 v[{40 + 2 * i}:{41 + 2 * i}], v[{40 + 2 * i}:{41 + 2 * i}], v[8:9] op_sel_hi:[1,0]')
    for i in range(10):
        a(f'v_cvt_pk_bf16_f32 v{10 + i}, v{40 + 2 * i}, v{41 + 2 * i}')
    a(f'v_and_b32 v1, 3, v0\nv_lshlrev_b32 v5, 7, v2\nv_lshl_add_u32 v5, v1, 3, v5')
    a(f's_mul_i32 {sC}, {sWAVE}, {REG}\nv_add_u32 v5, {sC}, v5')
    a('v_mov_b32 v9, 0xff\nv_lshlrev_b32 v8, 4, v0')
    get_nonce('L_np0', 'v6')
    stamp(2)
    a('s_waitcnt vmcnt(0)')
    stamp(3)
    for qs in ((4,), (0, 1), (2, 3)):
        for T in range(4):
            for q in qs:
                r = 20 + T * 12 + q * 2
                a(f'ds_read_b64_tr_b16 v[{r}:{r + 1}], v5 offset:{q * 2048 + T * 32}')
    a(f's_lshl_b32 {sB}, {sP}, 10\ns_add_u32 {sB}, {sB}, {sQO}')
    a(f's_lshl_b32 {sC}, {sWAVE}, 10\nv_add_u32 v7, {L_ACT}, v8\nv_add_u32 v6, {sC}, v7')
    a(f'v_mov_b32 v3, {L_TAB2 + 508}\nv_mov_b32 v4, 1')
    a('s_waitcnt lgkmcnt(15)')
    for T in range(4):
        r, d = 20 + T * 12, 68 + T * 4
        a(f'v_mfma_f32_16x16x16_bf16 v[{d}:{d + 3}], v[18:19], v[{r + 8}:{r + 9}], 0')
    for kk in range(2):
        a(f's_waitcnt lgkmcnt({8 - 8 * kk})')
        for T in range(4):
            r, d = 20 + T * 12 + 4 * kk, 68 + T * 4
            a(f'v_mfma_f32_16x16x32_bf16 v[{d}:{d + 3}], v[{10 + 4 * kk}:{13 + 4 * kk}], v[{r}:{r + 3}], v[{d}:{d + 3}]')
    a('s_mov_b64 exec, 0xffff')
    for T in range(4):
        a(f'ds_write_b128 v6, v[{68 + T * 4}:{71 + T * 4}] offset:{T * 256}')
    a('s_mov_b64 exec, 1\nds_add_rtn_u32 v4, v3, v4\ns_mov_b64 exec, -1')
    a(f's_waitcnt lgkmcnt(0)\nv_readfirstlane_b32 {sA}, v4\ns_nop 1')
    a(f's_cmp_lg_u32 {sA}, 3\ns_cbranch_scc1 L_qc')
    for w in range(4):
        a(f'ds_read_b128 v[{20 + 4 * w}:{23 + 4 * w}], v7 offset:{w * 1024}')
    a('s_waitcnt lgkmcnt(2)')
    a('v_pk_add_f32 v[20:21], v[20:21], v[24:25]\nv_pk_add_f32 v[22:23], v[22:23], v[26:27]')
    a('s_waitcnt lgkmcnt(0)')
    a('v_pk_add_f32 v[28:29], v[28:29], v[32:33]\nv_pk_add_f32 v[30:31], v[30:31], v[34:35]')
    a('v_pk_add_f32 v[36:37], v[20:21], v[28:29]\nv_pk_add_f32 v[38:39], v[22:23], v[30:31]')
    tag(36, 4, 'v9')
    a(f'buffer_store_dwordx4 v[36:39], v8, {SWS}, {sB} offen sc1')
    stamp(4)
    a('s_branch L_qc')
    a('L_nop:')
    a('v_mov_b32 v9, 0xff\nv_lshlrev_b32 v8, 4, v0')
    get_nonce('L_np1', 'v6')
    if QSL:
        a(f's_sleep {QSL}')
    a('L_qc:')
    a(f'v_mov_b32 v3, {L_FLAG}\nv_mov_b32 v4, 1')
    a(f's_cmp_eq_u32 {sWAVE}, 3\ns_cbranch_scc1 L_role')
    a(f's_lshl_b32 {sB}, {sWAVE}, 11\ns_add_u32 {sB}, {sB}, {sQO}')
    a('L_qg:')
    for m in range(2):
        a(f'buffer_load_dwordx4 v[{20 + 4 * m}:{23 + 4 * m}], v8, {SWS}, {sB} offen offset:{m * 1024} sc1')
    a('s_waitcnt vmcnt(0)')
    check(20, 8, 'v10', 'L_qg', 'L_qgd', sleep=False)
    a(f's_mov_b32 {sD}, 0x80')
    for i in range(8):
        a(f'v_bfi_b32 v{20 + i}, v9, {sD}, v{20 + i}')
    for i in range(4):
        a(f'v_add_f32 v{20 + i}, v{20 + i}, v{24 + i}')
    a('v_cvt_pk_bf16_f32 v20, v20, v21\nv_cvt_pk_bf16_f32 v22, v22, v23')
    a(f's_lshl_b32 {sC}, {sWAVE}, 7\ns_add_u32 {sC}, {sC}, {L_Q}')
    a(f'v_lshl_add_u32 v5, v0, 1, {sC}')
    a('ds_write_b16 v5, v20\nds_write_b16_d16_hi v5, v20 offset:384')
    a('ds_write_b16 v5, v22 offset:768\nds_write_b16_d16_hi v5, v22 offset:1152')
    lds_inc('v3', F_Q, 'v4')
    stamp(5)

    def dma_loop(lab, srd, n, gstep):
        a(f's_add_u32 {sD}, {sC}, {n * 1024}')
        a(f'{lab}:')
        a(f's_mov_b32 m0, {sC}')
        a(f's_add_u32 {sC}, {sC}, 1024')
        a(f'buffer_load_dwordx4 v2, {srd}, {sB} offen nt lds')
        a(f's_add_u32 {sB}, {sB}, {gstep}')
        a(f's_waitcnt vmcnt({WWIN})')
        a(f's_cmp_lt_u32 {sC}, {sD}\ns_cbranch_scc1 {lab}')

    def weights_ready(lab):
        a('s_waitcnt vmcnt(0)')
        lds_inc('v3', F_W, 'v4')
        lds_wait(lab, 'v10', 'v3', F_W, 4, 8)

    def tr_reads(lst):
        for n, (r, va, off) in enumerate(lst):
            if n and n % 12 == 0:
                a('s_waitcnt lgkmcnt(0)')
            a(f'ds_read_b64_tr_b16 v[{r}:{r + 1}], {va} offset:{off}')
        a('s_waitcnt lgkmcnt(0)')

    def batch_top(lab):
        a('s_branch L_pre')
        a(f'{lab}:')
        if early >> ('L_s2b', 'L_s4b', 'L_s5b').index(lab) & 1:
            a(f's_cmp_eq_u32 {sBAT}, 2\ns_cbranch_scc1 L_pre2')
        a(f'{lab}c:')

    def shadow_sleep(lab, n, force=False):
        if n or force:
            a(f's_cmp_eq_u32 {sBAT}, 3\ns_cbranch_scc1 {lab}')
        for i in range(n):
            a('s_sleep 127')

    def s1_setup(sb):
        a(f's_mul_i32 {sA}, {sb}, {PARTP}\ns_add_u32 {sA}, {sA}, {L_PART}')
        a(f'v_and_b32 v51, 31, v0\nv_lshlrev_b32 v54, 4, v51\nv_add_u32 v52, {sA}, v54\nv_mov_b32 v53, {sA}')
        a(f'v_lshl_add_u32 v51, v51, 3, {sA}\nv_mov_b32 v55, 0xffff')
        a(f'v_and_b32 v50, 1, v0\nv_lshlrev_b32 v50, 4, v50\nv_lshrrev_b32 v49, v50, {sT[0]}\nv_sub_u32 v50, 16, v50')
        a(f's_lshl_b32 {sB}, {sb}, 17\ns_lshl_b32 {sA}, s2, 9\ns_add_u32 {sB}, {sB}, {sA}\ns_add_u32 {sB}, {sB}, {OP}')

    def wait_flush(lab):
        a(f's_cmp_lg_u32 {sBAT}, 3\ns_cbranch_scc1 {lab}d')
        stamp(2)
        lds_wait(lab, 'v10', 'v3', F_FL, 4, FSLP)
        bstamp(6)

    def batch_end(lab, incs):
        a('s_mov_b64 exec, -1')
        a(f's_add_u32 {sBAT}, {sBAT}, 1')
        a('v_add_u32 v3, 4, v3')
        for r, d in incs:
            a(f's_add_u32 {r}, {r}, {d}' if r[0] == 's' else f'v_add_u32 {r}, {d}, {r}')
        a(f's_cmp_lt_u32 {sBAT}, 4\ns_cbranch_scc1 {lab}')
        a('s_branch L_fin')

    a('L_role:')
    for i in range(WSL):
        a('s_sleep 127')
    a(f's_lshl_b32 {sA}, {sJ}, 2\ns_add_u32 {sA}, {sA}, {sH}\ns_and_b32 {sA}, {sA}, 31\ns_mov_b32 {sROLE}, 0')
    a(f's_mul_i32 {sC}, {sWAVE}, {REG}')
    a('v_lshrrev_b32 v5, 4, v0\nv_bfe_u32 v6, v0, 2, 2\nv_and_b32 v7, 3, v0')
    a(f's_cmp_ge_u32 {sA}, 13\ns_cbranch_scc1 L_s5')
    a(f's_cmp_ge_u32 {sA}, 10\ns_cbranch_scc1 L_ffn')

    a(f's_mov_b32 {sD}, {sJ}')
    a(f's_mul_i32 {sOUTA}, {sD}, 2560\ns_lshl_b32 {sB}, {sA}, 8\ns_add_u32 {sOUTA}, {sOUTA}, {sB}')
    a(f's_lshl_b32 {sB}, {sWAVE}, 6\ns_add_u32 {sOUTA}, {sOUTA}, {sB}\ns_add_u32 {sOUTA}, {sOUTA}, {HP}')
    a(f's_lshl_b32 {sD}, {sD}, 2\ns_add_u32 {sD}, {sD}, {sWAVE}')
    a(f's_lshl_b32 {sIN}, {sD}, 12\ns_add_u32 {sIN}, {sIN}, {OP + (1 << 17)}')
    a(f's_mul_i32 {sB}, {sD}, {192 * 1280}\ns_lshl_b32 {sA}, {sA}, 7\ns_add_u32 {sB}, {sB}, {sA}')
    a('v_lshrrev_b32 v2, 3, v0\nv_mul_u32_u24 v2, 1280, v2\nv_and_b32 v1, 7, v0\nv_lshl_add_u32 v2, v1, 4, v2')
    dma_loop('L_dwo', SWO, 24, 8 * 1280)
    weights_ready('L_wr2')
    a('v_lshlrev_b32 v10, 10, v5\nv_lshl_add_u32 v10, v6, 7, v10\nv_lshl_add_u32 v10, v7, 3, v10')
    a(f's_lshl_b32 {sA}, {sWAVE}, 5\nv_add_u32 v10, {sA}, v10\nv_add_u32 v11, 49152, v10')
    tr_reads([(128 + 4 * s_ + 2 * q, 'v10' if s_ < 12 else 'v11', (s_ % 12) * 4096 + q * 512) for s_ in range(24) for q in range(2)])
    stamp(5)
    a('v_lshlrev_b32 v8, 4, v0\nv_and_b32 v10, 31, v0\nv_lshrrev_b32 v11, 5, v0\nv_lshl_add_u32 v10, v10, 1, v11')
    a(f's_mul_i32 {sA}, {sWAVE}, 384\ns_add_u32 {sA}, {sA}, {L_ACT}')
    a(f'v_lshl_add_u32 v2, v10, 2, {sA}\nv_lshl_add_u32 v7, v10, 1, {sA}')
    a(f'v_and_b32 v10, 1, v0\nv_lshlrev_b32 v11, 4, v10\nv_lshrrev_b32 v224, v11, {sT[0]}\nv_mov_b32 v225, 0xffff')
    a('v_mov_b32 v226, 0x07060302\nv_mov_b32 v227, 0x03020706\nv_cmp_eq_u32 vcc, 1, v10\nv_cndmask_b32 v226, v226, v227, vcc')
    a('v_bfe_u32 v1, v0, 1, 2\nv_lshlrev_b32 v1, 9, v1\nv_add_u32 v1, v1, v11')
    a(f'v_lshlrev_b32 v5, 4, v5\nv_add_u32 v6, {L_ACT}, v5')
    batch_top('L_s2b')
    a(f's_cmp_ge_u32 {sBAT}, 2\ns_cselect_b32 {sA}, 2048, 0\ns_add_u32 {sA}, {sA}, {sIN}')
    wait_flush('L_s2w')
    if pp2:
        a(f's_bitcmp0_b32 {pp2}, {sBAT}\ns_cbranch_scc1 L_og')
        a('L_op:')
        a(f'buffer_load_dword v20, v1, {SWS}, {sIN} offen offset:12 sc1')
        a(f'buffer_load_dword v21, v1, {SWS}, {sA} offen offset:12 sc1')
        a('s_waitcnt vmcnt(0)')
        check(20, 2, 'v10', 'L_op', 'L_opd', tags=['v224'], mask='v225')
    a('L_og:')
    for m in range(4):
        a(f'buffer_load_dwordx4 v[{20 + 4 * m}:{23 + 4 * m}], v8, {SWS}, {sIN if m < 2 else sA} offen offset:{(m % 2) * 1024} sc1')
    a('s_waitcnt vmcnt(0)')
    for m in range(4):
        a(f'v_mov_b32_dpp v{12 + m}, v{23 + 4 * m} quad_perm:[1,0,3,2] {DPPM}')
    check(23, 4, 'v10', 'L_og', 'L_ogd', tags=['v224'], mask='v225', step=4)
    bstamp(3)
    UP = lambda m, k: 36 + 6 * m + k

    def unp(m):
        for k in range(3):
            a(f'v_lshlrev_b32 v{UP(m, 2 * k)}, 16, v{20 + 4 * m + k}\nv_and_b32 v{UP(m, 2 * k + 1)}, {sHI}, v{20 + 4 * m + k}')
    for m in range(4):
        a(f'v_perm_b32 v{60 + 2 * m}, v{12 + m}, v{23 + 4 * m}, v226')
    a('v_max3_f32 v10, v60, v62, v64\nv_max_f32 v10, v10, v66\nv_mov_b32 v11, v10')
    unp(0)
    a('v_permlane32_swap_b32 v10, v11\nv_max_f32 v10, v10, v11')
    for m in range(4):
        a(f'v_sub_f32 v{60 + 2 * m}, v{60 + 2 * m}, v10')
    for m in range(4):
        a(f'v_exp_f32 v{60 + 2 * m}, v{60 + 2 * m}')
    unp(1)
    a('v_add_f32 v10, v60, v62\nv_add_f32 v11, v64, v66\nv_add_f32 v10, v10, v11\nv_mov_b32 v11, v10')
    unp(2)
    a('v_permlane32_swap_b32 v10, v11\nv_add_f32 v10, v10, v11\nv_rcp_f32 v10, v10')
    unp(3)
    for m in range(4):
        for k in range(3):
            d, x, w = f'v[{12 + 2 * k}:{13 + 2 * k}]', f'v[{UP(m, 2 * k)}:{UP(m, 2 * k + 1)}]', f'v[{60 + 2 * m}:{61 + 2 * m}]'
            a(f'v_pk_fma_f32 {d}, {x}, {w}, {d} op_sel_hi:[1,0,1]' if m else f'v_pk_mul_f32 {d}, {x}, {w} op_sel_hi:[1,0]')
    a('v_permlane32_swap_b32 v12, v14\nv_permlane32_swap_b32 v13, v15\nv_permlane32_swap_b32 v16, v17')
    a('v_add_f32 v12, v12, v14\nv_add_f32 v13, v13, v15\nv_add_f32 v16, v16, v17')
    a('v_mul_f32 v12, v10, v12\nv_mul_f32 v13, v10, v13\nv_mul_f32 v16, v10, v16')
    a('v_cvt_pk_bf16_f32 v12, v12, v13\nv_cvt_pk_bf16_f32 v16, v16, v16')
    a('ds_write_b32 v2, v12\nds_write_b16 v7, v16 offset:256')
    lds_inc('v3', F_ST, 'v4')
    lds_wait('L_s2s', 'v10', 'v3', F_ST, 4, 0)
    for s_ in range(12):
        a(f'ds_read_b128 v[{32 + 4 * s_}:{35 + 4 * s_}], v6 offset:{s_ * 64}')
    for s_ in range(24):
        a(f's_waitcnt lgkmcnt({11 if s_ < 12 else 23 - s_})')
        d = f'v[{12 + 4 * (s_ % 2)}:{15 + 4 * (s_ % 2)}]'
        a(f'v_mfma_f32_16x16x32_bf16 {d}, v[{128 + 4 * s_}:{131 + 4 * s_}], v[{32 + 4 * s_}:{35 + 4 * s_}], {d if s_ >= 2 else 0}')
        if s_ < 12:
            a(f'ds_read_b128 v[{80 + 4 * s_}:{83 + 4 * s_}], v6 offset:{(s_ + 12) * 64}')
    set_exec(0x00010001)
    for k in range(4):
        a(f'v_add_f32 v{12 + k}, v{12 + k}, v{16 + k}')
    tag(12, 4, 'v9')
    a(f'buffer_store_dwordx4 v[12:15], v5, {SWS}, {sOUTA} offen sc1')
    bstamp(4)
    a(f's_mov_b32 {sA}, {1 << 17}\ns_cmp_eq_u32 {sBAT}, 0\ns_cselect_b32 {sA}, 2048, {sA}\ns_cmp_eq_u32 {sBAT}, 1\ns_cselect_b32 {sA}, {(1 << 17) - 2048}, {sA}')
    batch_end('L_s2b', [(sIN, sA), (sOUTA, HPB), ('v2', 1536), ('v6', 1536), ('v7', 1536)])

    a('L_ffn:')
    a(f's_mov_b32 {sROLE}, 1')
    a(f's_mul_i32 {sB}, {sJ}, 3\ns_add_u32 {sA}, {sA}, {sB}\ns_sub_u32 {sA}, {sA}, 10')
    a('v_lshrrev_b32 v2, 3, v0\nv_mul_u32_u24 v2, 3072, v2\nv_and_b32 v1, 7, v0\nv_lshl_add_u32 v2, v1, 4, v2')
    a(f's_lshl_b32 {sB}, {sA}, 7\ns_mul_i32 {sD}, {sWAVE}, {160 * 3072}\ns_add_u32 {sB}, {sB}, {sD}')
    a(f's_mul_i32 {sC}, {sWAVE}, 20480')
    dma_loop('L_dw1', SW1, 20, 8 * 3072)
    a(f's_lshl_b32 {sA}, {sA}, 2\ns_add_u32 {sA}, {sA}, {sWAVE}')
    a(f's_lshl_b32 {sD}, {sA}, 5\nv_lshlrev_b32 v10, 3, v5')
    a(f'buffer_load_dwordx2 v[246:247], v10, {SB1}, {sD} offen')
    a(f's_lshl_b32 {sOUTA}, {sA}, 6\ns_add_u32 {sOUTA}, {sOUTA}, {AP}')
    weights_ready('L_wr4')
    a('v_lshlrev_b32 v10, 10, v5\nv_lshl_add_u32 v10, v6, 7, v10\nv_lshl_add_u32 v10, v7, 3, v10')
    a(f's_lshl_b32 {sA}, {sWAVE}, 5\nv_add_u32 v10, {sA}, v10\nv_add_u32 v11, 49152, v10')
    tr_reads([(144 + 4 * s_ + 2 * q, 'v10' if s_ < 12 else 'v11', (s_ % 12) * 4096 + q * 512) for s_ in range(20) for q in range(2)])
    XR, CS, B1R = 234, 240, 244
    for k in range(4):
        a(f'v_mov_b32 v{24 + k}, 0x3f803f80')
    for s_ in range(20):
        a(f'v_mfma_f32_16x16x32_bf16 v[{CS}:{CS + 3}], v[{144 + 4 * s_}:{147 + 4 * s_}], v[24:27], {f"v[{CS}:{CS + 3}]" if s_ else 0}')
    a(f'v_lshlrev_b32 v{B1R}, 16, v246\nv_and_b32 v{B1R + 1}, {sHI}, v246')
    a(f'v_lshlrev_b32 v{B1R + 2}, 16, v247\nv_and_b32 v{B1R + 3}, {sHI}, v247')
    stamp(5)
    a(f'v_lshlrev_b32 v8, 4, v5\ns_and_b32 {sACT}, {sT[0]}, 0xffff')
    a('v_lshrrev_b32 v1, 3, v0\nv_mul_u32_u24 v1, 2560, v1\nv_and_b32 v10, 7, v0\nv_lshl_add_u32 v1, v10, 4, v1')
    a('v_lshlrev_b32 v7, 3, v10\nv_lshl_add_u32 v7, v5, 1, v7')
    a(f's_mul_i32 {sXO}, {sWAVE}, 320\ns_add_u32 {sA}, {sXO}, {L_ACT}\nv_add_u32 v2, {sA}, v7')
    a(f's_lshl_b32 {sIN}, {sXO}, 1\ns_add_u32 {sIN}, {sIN}, {HP}')
    a(f'v_lshlrev_b32 v6, 4, v5\nv_add_u32 v6, {L_ACT}, v6')
    a(f'v_lshlrev_b32 v5, 2, v0\nv_add_u32 v5, {L_ACT}, v5')
    a(f's_mov_b32 {sC}, 0x3f803f80')
    batch_top('L_s4b')
    for i in range(5):
        a(f'v_mov_b32 v{XR + i}, 0\nbuffer_load_short_d16_hi v{XR + i}, v7, {SX}, {sXO} offen offset:{i * 64}')
    wait_flush('L_s4w')
    if pp4:
        a(f's_bitcmp0_b32 {pp4}, {sBAT}\ns_cbranch_scc1 L_hg')
        for i in range(hsl):
            a('s_sleep 127')
        a('L_hp:')
        a(f'buffer_load_dwordx4 v[24:27], v1, {SWS}, {sIN} offen sc1 {pnt}')
        a('s_waitcnt vmcnt(0)')
        check(24, 4, 'v10', 'L_hp', 'L_hpd')
    a('L_hg:')
    for i in range(5):
        a(f'buffer_load_dwordx4 v[{24 + 4 * i}:{27 + 4 * i}], v1, {SWS}, {sIN} offen offset:{i * 128} sc1 {pnt}')
    a('s_waitcnt vmcnt(0)')
    check(24, 20, 'v10', 'L_hg', 'L_hgd')
    bstamp(3)
    G = lambda i, e: f'v{24 + 4 * i + e}'
    for i in range(5):
        a(f'v_permlane16_swap_b32 {G(i, 0)}, {G(i, 1)}\nv_permlane16_swap_b32 {G(i, 2)}, {G(i, 3)}')
    for i in range(5):
        a(f'v_add_f32 {G(i, 0)}, {G(i, 0)}, {G(i, 1)}\nv_add_f32 {G(i, 2)}, {G(i, 2)}, {G(i, 3)}')
    for i in range(5):
        a(f'v_permlane32_swap_b32 {G(i, 0)}, {G(i, 2)}')
    for i in range(5):
        a(f'v_add_f32 {G(i, 0)}, {G(i, 0)}, {G(i, 2)}')
    for i in range(5):
        a(f'v_add_f32_dpp {G(i, 0)}, {G(i, 0)}, {G(i, 0)} row_ror:8 {DPPM}')
    for i in range(5):
        a(f'v_cvt_pk_bf16_f32 {G(i, 0)}, 0, {G(i, 0)}')
    for i in range(5):
        a(f'v_add_f32 {G(i, 0)}, {G(i, 0)}, v{XR + i}')
    for i in range(5):
        a(f'v_cvt_pk_bf16_f32 {G(i, 0)}, {G(i, 0)}, {G(i, 0)}')
        a(f'ds_write_b16 v2, {G(i, 0)} offset:{i * 64}')
    lds_inc('v3', F_ST, 'v4')
    lds_wait('L_s4s', 'v10', 'v3', F_ST, 4, 0)
    bstamp(1)
    for i in range(5):
        a(f'ds_read_b32 v{XR + i}, v5 offset:{i * 256}')
    for s_ in range(10):
        a(f'ds_read_b128 v[{24 + 4 * s_}:{27 + 4 * s_}], v6 offset:{s_ * 64}')
    st = Asm()
    sv, a_main = a, a
    a = st
    U = 10
    for i in range(5):
        a(f'v_dot2_f32_bf16 v20, v{XR + i}, {sC}, {"v20" if i else 0}')
    for i in range(5):
        a(f'v_lshlrev_b32 v{U + 2 * i}, 16, v{XR + i}\nv_and_b32 v{U + 2 * i + 1}, {sHI}, v{XR + i}')
    allreduce('v_add_f32', 'v20', 'v21')
    a(f'v_mul_f32 v20, {f2u(1 / 640)}, v20')
    for i in range(5):
        a(f'v_pk_add_f32 v[{U + 2 * i}:{U + 2 * i + 1}], v[{U + 2 * i}:{U + 2 * i + 1}], v[20:21] op_sel_hi:[1,0] neg_lo:[0,1] neg_hi:[0,1]')
    for i in range(5):
        d = f'v[{U + 2 * i}:{U + 2 * i + 1}]'
        a(f'v_pk_mul_f32 v[22:23], {d}, {d}' if i == 0 else f'v_pk_fma_f32 v[22:23], {d}, {d}, v[22:23]')
    a('v_add_f32 v22, v22, v23')
    a('v_cvt_pk_bf16_f32 v20, 0, v20')
    allreduce('v_add_f32', 'v22', 'v23')
    a(f'v_mul_f32 v22, {f2u(1 / 640)}, v22\nv_cvt_pk_bf16_f32 v22, 0, v22')
    a(f'v_add_f32 v22, {f2u(1e-5)}, v22\nv_cvt_pk_bf16_f32 v22, 0, v22')
    a('v_sqrt_f32 v22, v22\nv_cvt_pk_bf16_f32 v22, 0, v22\nv_rcp_f32 v22, v22')
    a = a_main
    sl = list(st.l)
    per = (len(sl) + 19) // 20
    D0, D1 = 248, 252
    a('s_waitcnt lgkmcnt(10)')
    for s_ in range(20):
        for x in sl[s_ * per:(s_ + 1) * per]:
            a(x)
        a(f's_waitcnt lgkmcnt({9 if s_ < 10 else 19 - s_})')
        d = f'v[{D0 + 4 * (s_ % 2)}:{D0 + 3 + 4 * (s_ % 2)}]'
        a(f'v_mfma_f32_16x16x32_bf16 {d}, v[{144 + 4 * s_}:{147 + 4 * s_}], v[{24 + 4 * s_}:{27 + 4 * s_}], {d if s_ >= 2 else 0}')
        if s_ < 10:
            a(f'ds_read_b128 v[{64 + 4 * s_}:{67 + 4 * s_}], v6 offset:{(s_ + 10) * 64}')
    Z = lambda k: f'v{10 + k}'
    Y = lambda k: f'v{14 + k}'
    c2 = -2.0 * 0.7978845608028654 * 1.4426950408889634
    steps = [lambda k: f'v_add_f32 {Z(k)}, v{D0 + k}, v{D1 + k}',
             lambda k: f'v_fma_f32 {Z(k)}, -v20, v{CS + k}, {Z(k)}',
             lambda k: f'v_mul_f32 {Z(k)}, v22, {Z(k)}',
             lambda k: f'v_cvt_pk_bf16_f32 {Z(k)}, 0, {Z(k)}',
             lambda k: f'v_add_f32 {Z(k)}, {Z(k)}, v{B1R + k}',
             lambda k: f'v_cvt_pk_bf16_f32 {Z(k)}, 0, {Z(k)}',
             lambda k: f'v_mul_f32 {Y(k)}, {Z(k)}, {Z(k)}',
             lambda k: f'v_fmaak_f32 {Y(k)}, v18, {Y(k)}, {f2u(c2)}',
             lambda k: f'v_mul_f32 {Y(k)}, {Y(k)}, {Z(k)}',
             lambda k: f'v_exp_f32 {Y(k)}, {Y(k)}',
             lambda k: f'v_add_f32 {Y(k)}, 1.0, {Y(k)}',
             lambda k: f'v_rcp_f32 {Y(k)}, {Y(k)}',
             lambda k: f'v_mul_f32 {Z(k)}, {Z(k)}, {Y(k)}']
    a(f'v_mov_b32 v18, {f2u(c2 * 0.044715)}')
    for f in steps:
        for k in range(4):
            a(f(k))
    set_exec(0x00010001)
    for k in range(4):
        a(f'v_cvt_pk_bf16_f32 {Z(k)}, 0, {Z(k)}')
    for k in range(4):
        a(f'v_or_b32 v{24 + k}, {sT[2] if k % 2 else sACT}, {Z(k)}')
    a(f'buffer_store_dwordx4 v[24:27], v8, {SWS}, {sOUTA} offen sc1')
    bstamp(4)
    batch_end('L_s4b', [(sIN, HPB), (sOUTA, APB), (sXO, 1280), ('v2', 1536), ('v5', 1536), ('v6', 1536)])

    a('L_s5:')
    a(f's_sub_u32 {sA}, {sA}, 13\ns_lshr_b32 {sB}, {sA}, 1\ns_lshl_b32 {sB}, {sB}, 3\ns_add_u32 {sB}, {sB}, {sJ}')
    a(f's_cmp_ge_u32 {sB}, 10\ns_cbranch_scc1 L_idle')
    a(f's_mov_b32 {sROLE}, 2')
    a(f's_and_b32 {sA}, {sA}, 1\ns_lshl_b32 {sB}, {sB}, 1\ns_add_u32 {sA}, {sA}, {sB}')
    a(f's_lshl_b32 {sXO}, {sA}, 6\ns_lshl_b32 {sIN}, {sA}, 7\ns_add_u32 {sIN}, {sIN}, {HP}')
    a(f's_mul_i32 {sACT}, {sWAVE}, 1536\ns_add_u32 {sACT}, {sACT}, {AP}')
    a('v_lshrrev_b32 v2, 2, v0\nv_mul_u32_u24 v2, 1280, v2\nv_lshl_add_u32 v2, v7, 4, v2')
    a(f's_mul_i32 {sB}, {sWAVE}, {384 * 1280}\ns_add_u32 {sB}, {sB}, {sXO}')
    a('v_lshlrev_b32 v10, 9, v5\nv_lshl_add_u32 v10, v6, 6, v10\nv_lshl_add_u32 v10, v7, 3, v10')
    a(f'v_add_u32 v12, {sC}, v10')
    dma_loop('L_dw2', SW2, 24, 16 * 1280)
    a('v_lshrrev_b32 v1, 3, v0\nv_mul_u32_u24 v1, 2560, v1\nv_and_b32 v10, 7, v0\nv_lshl_add_u32 v1, v10, 4, v1')
    a('v_lshlrev_b32 v7, 3, v10\nv_lshl_add_u32 v7, v5, 1, v7')
    a(f'buffer_load_ushort v65, v7, {SB2}, {sXO} offen')
    a('v_and_b32 v2, 15, v0\nv_min_u32 v2, 11, v2\nv_lshl_add_u32 v2, v2, 2, v5\nv_lshlrev_b32 v2, 5, v2')
    a(f's_lshl_b32 {sA}, {sWAVE}, 7\ns_add_u32 {sA}, {sA}, {L_ACT}')
    a(f'v_lshlrev_b32 v5, 4, v5\nv_add_u32 v5, {sA}, v5')
    a(f'v_lshlrev_b32 v6, 1, v7\nv_add_u32 v6, {L_ACT}, v6')
    a(f'v_mov_b32 v8, 0xffff\ns_mov_b32 {sC}, 0x07060302')
    a('s_waitcnt vmcnt(0)')
    tr_reads([(128 + 8 * s_ + 4 * T + 2 * q, 'v12', s_ * 2048 + q * 256 + T * 32) for s_ in range(12) for T in range(2) for q in range(2)])
    a('v_lshlrev_b32 v65, 16, v65')
    stamp(5)

    def red_rows(b):
        a(f'v_permlane16_swap_b32 v{b}, v{b + 1}\nv_permlane16_swap_b32 v{b + 2}, v{b + 3}')
        a(f'v_add_f32 v{b}, v{b}, v{b + 1}\nv_add_f32 v{b + 2}, v{b + 2}, v{b + 3}')
        a(f'v_permlane32_swap_b32 v{b}, v{b + 2}')
        a(f'v_add_f32 v{b}, v{b}, v{b + 2}')
        a(f'v_add_f32_dpp v{b}, v{b}, v{b} row_ror:8 {DPPM}')

    batch_top('L_s5b')
    wait_flush('L_s5w')
    a(f's_cmp_lg_u32 {sWAVE}, 0\ns_cbranch_scc1 L_h5w')
    a(f'buffer_load_ushort v64, v7, {SX}, {sXO} offen')
    if hsl:
        a(f's_cmp_lg_u32 {sBAT}, 0\ns_cbranch_scc1 L_h5')
        for i in range(hsl):
            a('s_sleep 127')
    a('L_h5:')
    a(f'buffer_load_dwordx4 v[20:23], v1, {SWS}, {sIN} offen sc1 {pnt}')
    a('s_waitcnt vmcnt(0)')
    check(20, 4, 'v10', 'L_h5', 'L_h5d')
    lds_inc('v3', F_H, 'v4')
    bstamp(3)
    red_rows(20)
    a('v_lshlrev_b32 v64, 16, v64\nv_cvt_pk_bf16_f32 v20, 0, v20\nv_add_f32 v64, v64, v20\nv_cvt_pk_bf16_f32 v64, 0, v64')
    lds_wait('L_h5w', 'v10', 'v3', F_H, 1, FSLP)
    shadow_sleep('L_y5', ysl)
    a('L_y5:')
    a(f'buffer_load_dwordx4 v[20:23], v2, {SWS}, {sACT} offen sc1 {pnt}')
    a(f'buffer_load_dwordx4 v[24:27], v2, {SWS}, {sACT} offen offset:16 sc1 {pnt}')
    a('s_waitcnt vmcnt(0)')
    for k in range(4):
        a(f'v_perm_b32 v{28 + k}, v{21 + 2 * k}, v{20 + 2 * k}, {sC}')
    check(20, 8, 'v10', 'L_y5', 'L_y5d', tags=[sT[0], sT[2]], mask='v8')
    bstamp(4)

    def bc(s_):
        for k in range(4):
            a(f'v_mov_b32_dpp v{68 + 4 * s_ + k}, v{28 + k} row_newbcast:{s_} {DPPM}')
    bc(0)
    for s_ in range(12):
        if s_ < 11:
            bc(s_ + 1)
        for T in range(2):
            d = f'v[{12 + 4 * T}:{15 + 4 * T}]'
            w = 128 + 8 * s_ + 4 * T
            a(f'v_mfma_f32_16x16x32_bf16 {d}, v[{w}:{w + 3}], v[{68 + 4 * s_}:{71 + 4 * s_}], {d if s_ else 0}')
    set_exec(0x00010001)
    a('ds_write_b128 v5, v[12:15]\nds_write_b128 v5, v[16:19] offset:64')
    lds_inc('v3', F_ST, 'v4')
    a(f's_cmp_lg_u32 {sWAVE}, 0\ns_cbranch_scc1 L_s5e')
    lds_wait('L_s5s', 'v10', 'v3', F_ST, 4, 0)
    a('ds_read2_b32 v[20:21], v6 offset0:0 offset1:32\nds_read2_b32 v[22:23], v6 offset0:64 offset1:96')
    set_exec(0x00ff00ff)
    a('s_waitcnt lgkmcnt(0)')
    a('v_add_f32 v20, v20, v21\nv_add_f32 v22, v22, v23\nv_add_f32 v20, v20, v22')
    a('v_cvt_pk_bf16_f32 v20, 0, v20\nv_add_f32 v20, v20, v65\nv_cvt_pk_bf16_f32 v20, 0, v20')
    a('v_add_f32 v20, v20, v64\nv_cvt_pk_bf16_f32 v20, v20, v20')
    a(f'buffer_store_short v20, v7, {SOUT}, {sXO} offen')
    if dbt:
        a(f's_cmp_lg_u32 {sBAT}, 3\ns_cbranch_scc1 L_s5e')
        dstamp(10)
        a('s_mov_b64 exec, 1\nv_mov_b32 v254, s62\nv_sub_u32 v254, 0, v254')
        a(f'buffer_atomic_umax v254, v255, {SDBG}, 0 offen offset:16 sc1')
    a('L_s5e:')
    batch_end('L_s5b', [(sIN, HPB), (sACT, APB), (sXO, 1280), ('v5', 512), ('v6', 512)])

    a('L_idle:')
    a(f's_mov_b32 {sROLE}, 3')
    a(f's_cmp_lg_u32 {sWAVE}, 3\ns_cbranch_scc1 L_fin')
    a('L_pre:')
    a(f's_mov_b32 {sBAT}, 0\ns_mov_b32 {sPH}, 1')
    lds_wait('L_pre1', 'v10', 'v3', F_FL + 4, 4, 16)
    a(f's_cmp_lg_u32 {sWAVE}, 3\ns_cbranch_scc1 L_pre4')
    a('L_pre3:')
    s1_setup(sPH)
    a('s_branch L_s1')
    a('L_pre4:')
    a(f's_bitcmp1_b32 {early}, {sROLE}\ns_cbranch_scc1 L_disp')
    a('L_pre2:')
    a(f'v_mov_b32 v11, {L_FLAG}\ns_mov_b32 {sPH}, 2')
    lds_wait('L_pre5', 'v10', 'v11', F_FL + 8, 4, 16)
    a(f's_cmp_eq_u32 {sWAVE}, 3\ns_cbranch_scc1 L_pre3')
    a('L_disp:')
    for k, lab in enumerate(('L_s2bc', 'L_s4bc', 'L_s5bc')):
        a(f's_cmp_eq_u32 {sROLE}, {k}\ns_cbranch_scc1 {lab}')
    a('s_branch L_fin')

    Q, ACC, AD, S, P, TM, RING, EXT0, EXT1, AD2 = 8, 20, 44, 52, 56, 64, 68, 116, 164, 212
    vMC, vL = 'v6', 'v7'
    s = [f'v{S + t}' for t in range(4)]
    t0, t1, t2, t3 = [f'v{TM + i}' for i in range(4)]

    def ld_tile(t, srd, soff, base=RING):
        for i in range(3):
            r = base + t * 12 + i * 4
            a(f'buffer_load_dwordx4 v[{r}:{r + 3}], v{1 + t // 2}, {srd}, {soff} offen offset:{(t % 2) * 3072 + i * 128} {pol}')

    def reset_state():
        for i in range(24):
            a(f'v_mov_b32 v{ACC + i}, 0')
        a(f'v_mov_b32 {vL}, 0\nv_mov_b32 {vMC}, 0xff7fffff')

    def load_q():
        for i in range(3):
            a(f'ds_read_b128 v[{Q + 4 * i}:{Q + 4 * i + 3}], v5 offset:{i * 128}')

    def kdot(t, base, ad):
        for k in range(12):
            acc = f'v{ad + 2 * t + k % 2}'
            a(f'v_dot2_f32_bf16 {acc}, v{base + t * 12 + k}, v{Q + k}, {acc if k >= 2 else 0}')

    def vdot(t, base):
        for k in range(12):
            for hl in range(2):
                a(f'v_dot2c_f32_bf16 v{ACC + (k // 4) * 8 + (k % 4) * 2 + hl}, v{base + t * 12 + k}, v{P + 2 * t + hl}')

    def softmax4(ad):
        for t in range(4):
            a(f'v_add_f32 {s[t]}, v{ad + 2 * t}, v{ad + 2 * t + 1}')
        for mode in ('quad_perm:[1,0,3,2]', 'quad_perm:[2,3,0,1]', 'row_half_mirror'):
            for t in range(4):
                a(f'v_add_f32_dpp {s[t]}, {s[t]}, {s[t]} {mode} {DPPM}')
        for rnd in range(2):
            a(f'v_cvt_pk_bf16_f32 {t0}, {s[0]}, {s[1]}\nv_cvt_pk_bf16_f32 {t1}, {s[2]}, {s[3]}')
            a(f'v_lshlrev_b32 {s[0]}, 16, {t0}\nv_and_b32 {s[1]}, {sHI}, {t0}')
            a(f'v_lshlrev_b32 {s[2]}, 16, {t1}\nv_and_b32 {s[3]}, {sHI}, {t1}')
            if rnd == 0:
                for t in range(4):
                    a(f'v_mul_f32 {s[t]}, {f2u(192 ** -0.5)}, {s[t]}')
        a(f'v_max3_f32 {t0}, {s[0]}, {s[1]}, {s[2]}\nv_max_f32 {t0}, {t0}, {s[3]}')
        a(f'v_mul_f32 {t0}, {sLOG2E}, {t0}\nv_max_f32 {t0}, {t0}, {vMC}')
        a(f'v_sub_f32 {t2}, {vMC}, {t0}\nv_mov_b32 {vMC}, {t0}')
        for t in range(4):
            a(f'v_fma_f32 {s[t]}, {s[t]}, {sLOG2E}, -{t0}')
        a(f'v_exp_f32 {t2}, {t2}')
        for t in range(4):
            a(f'v_exp_f32 {s[t]}, {s[t]}')
        for i in range(12):
            a(f'v_pk_mul_f32 v[{ACC + 2 * i}:{ACC + 2 * i + 1}], v[{ACC + 2 * i}:{ACC + 2 * i + 1}], v[{TM + 2}:{TM + 3}] op_sel_hi:[1,0]')
        for t in range(4):
            a(f'v_cvt_pk_bf16_f32 v{P + 2 * t}, {s[t]}, 0')
        for t in range(4):
            a(f'v_lshlrev_b32 v{P + 2 * t + 1}, 16, v{P + 2 * t}')
        a(f'v_fma_f32 {vL}, {vL}, {t2}, v{P + 1}')
        a(f'v_add_f32 {t0}, v{P + 3}, v{P + 5}\nv_add_f32 {vL}, {vL}, v{P + 7}\nv_add_f32 {vL}, {vL}, {t0}')

    def ld_one(slot, srd, soff):
        for i in range(3):
            r = RING + slot * 12 + i * 4
            a(f'buffer_load_dwordx4 v[{r}:{r + 3}], v1, {srd}, {soff} offen offset:{i * 128} {pol}')

    def claim(v, off):
        a(f'v_mov_b32 {v}, 1\ns_mov_b64 exec, 1')
        a(f'buffer_atomic_add {v}, v3, {SWS}, 0 offen offset:{off} sc0 sc1')
        a('s_mov_b64 exec, -1')

    def softmax1(t):
        x = s[0]
        a(f'v_add_f32 {x}, v{AD + 2 * t}, v{AD + 2 * t + 1}')
        for mode in ('quad_perm:[1,0,3,2]', 'quad_perm:[2,3,0,1]', 'row_half_mirror'):
            a(f'v_add_f32_dpp {x}, {x}, {x} {mode} {DPPM}')
        a(f'v_cvt_pk_bf16_f32 {x}, 0, {x}\nv_mul_f32 {x}, {f2u(192 ** -0.5)}, {x}\nv_cvt_pk_bf16_f32 {x}, 0, {x}')
        a(f'v_mul_f32 {t0}, {sLOG2E}, {x}\nv_max_f32 {t0}, {t0}, {vMC}')
        a(f'v_sub_f32 {t2}, {vMC}, {t0}\nv_mov_b32 {vMC}, {t0}')
        a(f'v_fma_f32 {x}, {x}, {sLOG2E}, -{t0}')
        a(f'v_exp_f32 {t2}, {t2}\nv_exp_f32 {x}, {x}')
        for i in range(12):
            a(f'v_pk_mul_f32 v[{ACC + 2 * i}:{ACC + 2 * i + 1}], v[{ACC + 2 * i}:{ACC + 2 * i + 1}], v[{TM + 2}:{TM + 3}] op_sel_hi:[1,0]')
        p = P + 2 * (t + 1)
        a(f'v_cvt_pk_bf16_f32 v{p}, {x}, 0\nv_cvt_pk_bf16_f32 v{p + 1}, 0, {x}')
        a(f'v_fma_f32 {vL}, {vL}, {t2}, v{p + 1}')

    assert SMALL % 4 == 0
    NBIG = 1024 - 16 - SMALL // 4
    assert 16 <= NSTAT <= 24
    vCA, vCB, vFL, vB, vT, vE, vE2, vONE = 'v220', 'v221', 'v222', 'v223', 'v224', 'v225', 'v226', 'v227'
    sTA, sTB, sLD = 's76', 's77', 's78'

    def draw(off, n=vONE):
        a(f's_mov_b64 exec, 1\nds_add_rtn_u32 {vT}, {vB}, {n} offset:{off}\ns_mov_b64 exec, -1')

    def publish(v, add):
        a(f's_mov_b64 exec, 1\nv_lshlrev_b32 {v}, 2, {v}\nv_add_u32 {v}, {add}, {v}\nds_write_b32 {vE}, {v}\ns_mov_b64 exec, -1')

    spins = []

    def resolve(lab, st):
        a(f's_cmp_eq_u32 {sA}, 0\ns_cbranch_scc1 {lab}')
        a(f'{lab}r:')
        a(f's_and_b32 {sB}, {st}, 3\ns_add_u32 {sA}, {sA}, {sB}\ns_sub_u32 {sA}, {sA}, 1')
        spins.append(lab)

    a('L_stream:')
    a('v_lshrrev_b32 v1, 3, v0\nv_mul_u32_u24 v1, 384, v1\nv_and_b32 v5, 7, v0\nv_lshlrev_b32 v5, 4, v5\nv_add_u32 v1, v1, v5')
    a('v_add_u32 v2, 6144, v1')
    a(f's_sub_u32 {sA}, {sWAVE}, 4')
    a(f's_mul_i32 {sHB}, {sH}, {PROB}')
    a(f's_lshl_b32 {sC}, {sJ}, 2\ns_add_u32 {sC}, {sC}, {sA}\ns_mul_i32 {sC}, {sC}, {ITEM}\nv_mov_b32 v4, 0')
    a(f's_lshr_b32 {sCB}, {sJ}, 2\ns_mul_i32 {sB}, {sCB}, {BSTR - 16 * ITEM}')
    a(f's_add_u32 {sNEXT}, {sHB}, {sC}\ns_add_u32 {sNEXT}, {sNEXT}, {sB}')
    a(f's_add_u32 {sCUR}, {sNEXT}, {16 * ITEM}')
    a(f's_lshr_b32 {sC}, {sC}, 1\ns_add_u32 {sSB}, {sHB}, {sC}\ns_add_u32 {sSB}, {sSB}, {3 * BSTR + (NBIG - 768) * ITEM}')
    a(f's_lshl_b32 {sC}, {sH}, 8\ns_add_u32 {sC}, {sC}, {CT}\nv_mov_b32 v3, {sC}')
    a(f's_mul_i32 {sB}, {sCB}, 384\ns_add_u32 {sB}, {sB}, {L_Q}')
    a(f'v_add_u32 v5, {sB}, v5\nv_mov_b32 {vFL}, {L_FLAG + 4}\nv_mov_b32 {vB}, {L_FLAG}\nv_mov_b32 {vONE}, 1')
    a(f's_mul_i32 {sPB}, {sA}, {4 * PARTP}\ns_add_u32 {sPB}, {sPB}, {L_PART + PARTP}')
    a(f's_mov_b32 {sMODE}, 2')
    a('s_waitcnt lgkmcnt(0)')
    a('s_barrier')
    if PSL:
        a(f's_sleep {PSL}')
    for t in range(4):
        ld_tile(t, SK, sNEXT, EXT0)
    reset_state()
    for t in range(4):
        a(f's_waitcnt vmcnt({PWIN})')
        ld_tile(t, SV, sNEXT, EXT1)
    for t in range(4):
        a(f's_waitcnt vmcnt({PWIN})')
        ld_tile(t, SK, sCUR)
    stamp(3)
    if not noq:
        lds_wait('L_wqs', t0, vB, F_Q, 3, 1)
    stamp(1)
    load_q()
    get_nonce('L_nps', t0)
    a('L_item:')
    draw(F_T1)
    for t in range(4):
        a('s_waitcnt vmcnt(9)')
        kdot(t, RING, AD)
        if t == 0:
            a(f's_waitcnt lgkmcnt(0)\nv_readfirstlane_b32 {sST}, {vT}')
            a(f'v_and_b32 {vE}, -4, {vT}\nv_add_u32 {vE}, {L_TAB + 8}, {vE}')
            a(f's_and_b32 {sLD}, {sST}, 3\ns_cmp_lt_u32 {sST}, {NSTAT * 4 - 8}\ns_cselect_b32 {sLD}, 1, {sLD}')
            a(f's_cmp_lg_u32 {sLD}, 0\ns_cbranch_scc1 L_noclaim')
            claim('v4', 0)
            a('L_noclaim:')
        ld_tile(t, SV, sCUR)
    a(f's_cmp_eq_u32 {sMODE}, 2\ns_cbranch_scc1 L_first')
    a('L_mid:')
    a(f's_cmp_lg_u32 {sLD}, 0\ns_cbranch_scc1 L_nopub')
    a('s_waitcnt vmcnt(12)')
    publish('v4', NSTAT * 32 + 1)
    a('L_nopub:')
    softmax4(AD)
    a('s_waitcnt vmcnt(9)')
    a(f's_mov_b64 exec, 1\nds_read_b32 {vE2}, {vE}\ns_mov_b64 exec, -1')
    vdot(0, RING)
    a(f's_waitcnt lgkmcnt(0)\nv_readfirstlane_b32 {sA}, {vE2}\ns_nop 1')
    resolve('L_sp0', sST)
    a(f's_cmp_ge_u32 {sA}, {NBIG}\ns_cbranch_scc1 L_trans')
    a(f's_lshr_b32 {sNB}, {sA}, 8\ns_mul_i32 {sB}, {sNB}, {BSTR - PROB}\ns_mul_i32 {sA}, {sA}, {ITEM}')
    a(f's_add_u32 {sCUR}, {sHB}, {sA}\ns_add_u32 {sCUR}, {sCUR}, {sB}')
    for t in range(4):
        if t:
            a('s_waitcnt vmcnt(9)')
            vdot(t, RING)
        ld_tile(t, SK, sCUR)
    a(f's_cmp_eq_u32 {sNB}, {sCB}\ns_cbranch_scc1 L_item')

    a('L_flush:')
    M, LL = f'v{TM}', f'v{TM + 1}'
    a(f'v_mov_b32 {M}, {vMC}')
    allreduce('v_max_f32', M, t3, low=False)
    a(f'v_sub_f32 {t2}, {vMC}, {M}\nv_exp_f32 {t2}, {t2}')
    a(f'v_and_b32 v{S}, 7, v0\nv_lshlrev_b32 v{S}, 5, v{S}\nv_lshrrev_b32 v{S + 1}, 4, v0\nv_lshl_add_u32 v{S}, v{S + 1}, 3, v{S}')
    a(f'v_add_u32 v{S}, {sPB}, v{S}\nv_mov_b32 v{S + 1}, {sPB}')
    a(f'v_mul_f32 {LL}, {vL}, {t2}')
    for i in range(12):
        a(f'v_pk_mul_f32 v[{ACC + 2 * i}:{ACC + 2 * i + 1}], v[{ACC + 2 * i}:{ACC + 2 * i + 1}], v[{TM + 2}:{TM + 3}] op_sel_hi:[1,0]')
    allreduce('v_add_f32', LL, t3, low=False)
    for sw, es, dl in (('v_permlane16_swap_b32', (0, 1, 4, 5), 2), ('v_permlane32_swap_b32', (0, 1), 4)):
        for i in range(3):
            for e in es:
                a(f'{sw} v{ACC + 8 * i + e}, v{ACC + 8 * i + e + dl}')
        for i in range(3):
            for e in es:
                a(f'v_add_f32 v{ACC + 8 * i + e}, v{ACC + 8 * i + e}, v{ACC + 8 * i + e + dl}')
    for i in range(3):
        for e in (0, 1):
            r = f'v{ACC + 8 * i + e}'
            a(f'v_add_f32_dpp {r}, {r}, {r} row_ror:8 {DPPM}')
    a(f'v_mov_b32 {t2}, 1')
    for i in range(3):
        a(f'ds_write_b64 v{S}, v[{ACC + 8 * i}:{ACC + 8 * i + 1}] offset:{i * 256}')
    a('s_mov_b64 exec, 1')
    a(f'ds_write_b64 v{S + 1}, v[{TM}:{TM + 1}] offset:768')
    a(f'ds_add_rtn_u32 {t2}, {vFL}, {t2} offset:{F_FL}')
    a('s_mov_b64 exec, -1')
    a(f's_cmp_lg_u32 {sCB}, 3\ns_cbranch_scc1 L_nos1')
    s1_setup(sCB)
    a('s_waitcnt lgkmcnt(0)')
    stamp(2)
    a(f'v_readfirstlane_b32 {sA}, {t2}')
    a('s_nop 1')
    a(f's_cmp_lg_u32 {sA}, 3\ns_cbranch_scc1 L_fin')
    a('L_s1:')
    for w in range(4):
        a(f'ds_read_b64 v[{10 + 2 * w}:{11 + 2 * w}], v53 offset:{w * 4 * PARTP + 768}')
    for w in range(4):
        a(f'ds_read_b128 v[{20 + 4 * w}:{23 + 4 * w}], v52 offset:{w * 4 * PARTP}')
        a(f'ds_read_b64 v[{36 + 2 * w}:{37 + 2 * w}], v51 offset:{w * 4 * PARTP + 512}')
    a('s_waitcnt lgkmcnt(8)')
    a('v_max3_f32 v18, v10, v12, v14\nv_max_f32 v18, v18, v16')
    for w in range(4):
        a(f'v_sub_f32 v{10 + 2 * w}, v{10 + 2 * w}, v18')
    for w in range(4):
        a(f'v_exp_f32 v{10 + 2 * w}, v{10 + 2 * w}')
    a('v_mul_f32 v19, v10, v11')
    for w in range(1, 4):
        a(f'v_fmac_f32 v19, v{10 + 2 * w}, v{11 + 2 * w}')
    a(f'v_max_f32 v19, {f2u(1e-30)}, v19\nv_rcp_f32 v44, v19\nv_log_f32 v19, v19')
    for w in range(4):
        a(f's_waitcnt lgkmcnt({6 - 2 * w})')
        for d, x in ((20, 20 + 4 * w), (22, 22 + 4 * w), (36, 36 + 2 * w)):
            d, x, e = f'v[{d}:{d + 1}]', f'v[{x}:{x + 1}]', f'v[{10 + 2 * w}:{11 + 2 * w}]'
            a(f'v_pk_fma_f32 {d}, {x}, {e}, {d} op_sel_hi:[1,0,1]' if w else f'v_pk_mul_f32 {d}, {x}, {e} op_sel_hi:[1,0]')
    a('v_add_f32 v18, v18, v19')
    for d in (20, 22, 36):
        a(f'v_pk_mul_f32 v[{d}:{d + 1}], v[{d}:{d + 1}], v[44:45] op_sel_hi:[1,0]')
    a('v_lshlrev_b32 v18, v50, v18\nv_bfi_b32 v59, v55, v49, v18')
    a('v_cvt_pk_bf16_f32 v56, v20, v21\nv_cvt_pk_bf16_f32 v57, v22, v23\nv_cvt_pk_bf16_f32 v58, v36, v37')
    a('s_mov_b32 exec_hi, 0')
    a(f'buffer_store_dwordx4 v[56:59], v54, {SWS}, {sB} offen sc1')
    a('s_mov_b32 exec_hi, -1')
    if diag:
        a(f's_cmp_lt_u32 {sWAVE}, 4\ns_cbranch_scc1 L_s1x')
        stamp(5)
        a('L_s1x:')
    a(f's_cmp_ge_u32 {sWAVE}, 4\ns_cbranch_scc1 L_fin')
    a(f's_cmp_eq_u32 {sPH}, 1\ns_cbranch_scc1 L_pre4')
    a('s_branch L_disp')
    a('L_nos1:')
    a(f's_cmp_eq_u32 {sCB}, 0\ns_cselect_b32 {sA}, 2, 1\ns_add_u32 {sCB}, {sCB}, {sA}\ns_mul_i32 {sA}, {sA}, 384')
    a('s_waitcnt lgkmcnt(0)')
    if pst:
        for b, k in ((2, 3), (3, 4)):
            a(f's_cmp_lg_u32 {sCB}, {b}\ns_cbranch_scc1 L_st{k}')
            stamp(k)
            a(f'L_st{k}:')
    a(f's_add_u32 {sPB}, {sPB}, {PARTP}')
    a(f'v_add_u32 v5, {sA}, v5\nv_add_u32 {vFL}, 4, {vFL}')
    reset_state()
    a(f's_cmp_lt_u32 {sCB}, {sNB}\ns_cbranch_scc1 L_flush')
    load_q()
    a('s_waitcnt lgkmcnt(0)')
    a(f's_cmp_eq_u32 {sMODE}, 0\ns_cbranch_scc1 L_item')
    a('s_branch L_small')

    a('L_first:')
    for t in range(4):
        kdot(t, EXT0, AD2)
    softmax4(AD2)
    for t in range(4):
        vdot(t, EXT1)
    a(f's_mov_b32 {sMODE}, 0')
    stamp(4)
    a('s_branch L_mid')

    a('L_trans:')
    a(f'v_mov_b32 {vE2}, 2')
    draw(F_T2, vE2)
    a(f's_mov_b32 {sCUR}, {sSB}\ns_add_u32 {sNEXT}, {sSB}, 3072')
    a(f's_add_u32 {sSB}, {sHB}, {3 * BSTR + (NBIG - 768 + 16) * ITEM}')
    a(f's_mov_b32 {sMODE}, 1\ns_mov_b32 {sNB}, 3')
    for t in range(4):
        if t:
            a('s_waitcnt vmcnt(9)')
            vdot(t, RING)
        ld_one(t, SV if t % 2 else SK, sNEXT if t >= 2 else sCUR)
        if t == 0:
            a(f's_waitcnt lgkmcnt(0)\nv_readfirstlane_b32 {sTA}, {vT}\ns_nop 1\ns_add_u32 {sTB}, {sTA}, 1')
        if t % 2 == 0:
            a(f's_and_b32 {sA}, {sTB if t else sTA}, 3\ns_cbranch_scc1 L_tr{t}')
            claim(vCB if t else vCA, 128)
            a(f'L_tr{t}:')
    stamp(6)
    a(f's_cmp_lg_u32 {sCB}, 3\ns_cbranch_scc1 L_flush')
    a('L_small:')
    a(f's_mov_b32 {sNB}, 4')
    for t, sX, vC, sK in ((0, sCUR, vCA, sTA), (2, sNEXT, vCB, sTB)):
        a(f'L_sm{t}:')
        a(f's_cmp_ge_u32 {sX}, {NB_KV}\ns_cbranch_scc1 L_skip{t}')
        a(f's_and_b32 {sA}, {sK}, -4\ns_add_u32 {sA}, {sA}, {L_TAB2}\nv_mov_b32 {vE}, {sA}')
        a('s_waitcnt vmcnt(9)')
        a(f's_and_b32 {sA}, {sK}, 3\ns_cbranch_scc1 L_np{t}x')
        publish(vC, 1)
        a(f'L_np{t}x:')
        a(f'ds_read_b32 {vE2}, {vE}')
        kdot(t, RING, AD)
        a(f's_waitcnt lgkmcnt(0)\nv_readfirstlane_b32 {sA}, {vE2}\ns_nop 1')
        resolve(f'L_sq{t}', sK)
        a(f's_mul_i32 {sB}, {sA}, 3072\ns_add_u32 {sB}, {sB}, {sSB}')
        a(f'v_mov_b32 {vT}, 1')
        a(f's_cmp_lt_u32 {sA}, {SMALL}\ns_cselect_b32 {sX}, {sB}, {NB_KV}\ns_cbranch_scc0 L_nd{t}')
        draw(F_T2)
        a(f'L_nd{t}:')
        ld_one(t, SK, sX)
        softmax1(t)
        a(f's_waitcnt lgkmcnt(0)\nv_readfirstlane_b32 {sK}, {vT}\ns_nop 1')
        a(f's_and_b32 {sA}, {sK}, 3\ns_cbranch_scc1 L_nc{t}')
        claim(vC, 128)
        a(f's_waitcnt vmcnt(10)\ns_branch L_nc{t}d')
        a(f'L_nc{t}:')
        a('s_waitcnt vmcnt(9)')
        a(f'L_nc{t}d:')
        vdot(t + 1, RING)
        ld_one(t + 1, SV, sX)
    a('s_branch L_sm0')
    for t, sX, sY in ((0, sCUR, sNEXT), (2, sNEXT, sCUR)):
        a(f'L_skip{t}:')
        a(f's_cmp_ge_u32 {sY}, {NB_KV}\ns_cbranch_scc1 L_flush')
        ld_one(t, SK, sX)
        ld_one(t + 1, SV, sX)
        a(f's_branch L_sm{2 - t}')
    for lab in spins:
        a(f'{lab}:')
        a(f's_mov_b64 exec, 1\nds_read_b32 {vE2}, {vE}\ns_mov_b64 exec, -1')
        a(f's_waitcnt lgkmcnt(0)\nv_readfirstlane_b32 {sA}, {vE2}\ns_nop 1')
        a(f's_cmp_eq_u32 {sA}, 0\ns_cbranch_scc1 {lab}')
        a(f's_branch {lab}r')

    a('L_fin:')
    if diag:
        a('s_waitcnt vmcnt(0)')
        stamp(7)
        a('s_mov_b64 exec, -1')
        a('s_load_dwordx2 s[8:9], s[0:1], 96')
        a('s_getreg_b32 s62, hwreg(20, 0, 4)')
        a('s_waitcnt lgkmcnt(0)')
        a('s_add_u32 s8, s8, 0x40000000\ns_addc_u32 s9, s9, 0\ns_mov_b32 s10, 0x200000')
        a(f's_lshl_b32 {sA}, s2, 3\ns_add_u32 {sA}, {sA}, {sWAVE}')
        a(f's_lshl_b32 {sB}, {sA}, 5\nv_mov_b32 v1, {sB}')
        a(f's_lshl_b32 {sB}, {sA}, 6\ns_add_u32 {sB}, {sB}, 0x100000\nv_mov_b32 v2, {sB}')
        a('v_mov_b32 v4, s84\nv_mov_b32 v5, s85\nv_mov_b32 v6, s98\nv_mov_b32 v7, s99')
        a(f'v_mov_b32 v8, s62\nv_mov_b32 v9, 0\nv_mov_b32 v10, s96\nv_mov_b32 v11, s97')
        for i in range(16):
            a(f'v_mov_b32 v{12 + i}, s{84 + i}')
        a('s_mov_b64 exec, 1')
        a('buffer_store_dwordx4 v[4:7], v1, s[8:11], 0 offen')
        a('buffer_store_dwordx4 v[8:11], v1, s[8:11], 0 offen offset:16')
        for i in range(4):
            a(f'buffer_store_dwordx4 v[{12 + 4 * i}:{15 + 4 * i}], v2, s[8:11], 0 offen offset:{16 * i}')
    a('L_end:')
    a('s_endpgm')

    ref = open(f'cdna_kernels/{NAME}.s.ref').read().split('\n')
    head = [x for x in ref if x.startswith(';') and '@launch' not in x and not x.startswith('; Override') and not x.startswith('; grid=')]
    out = '\n'.join(head) + f'\n; @launch grid=(256,1,1) block=(512,1,1) lds={LDS_SZ}\n'
    out += f'.amdgcn_target "amdgcn-amd-amdhsa--gfx950"\n.text\n.globl {KERN}\n.p2align 8\n.type {KERN},@function\n'
    out += a.text() + '\n'
    out += f'''.section .rodata,"a"
.p2align 6
.amdhsa_kernel {KERN}
  .amdhsa_next_free_vgpr 256
  .amdhsa_next_free_sgpr 102
  .amdhsa_accum_offset 256
  .amdhsa_group_segment_fixed_size 0
  .amdhsa_kernarg_size 104
  .amdhsa_user_sgpr_count 2
  .amdhsa_user_sgpr_kernarg_segment_ptr 1
  .amdhsa_system_sgpr_workgroup_id_x 1
.end_amdhsa_kernel
'''
    return out


if __name__ == '__main__':
    kw = eval('dict(' + (sys.argv[2] if len(sys.argv) > 2 else '') + ')')
    open(sys.argv[1], 'w').write(gen(**kw))
```

```python
import os, sys, struct
from asmlib import Asm

NAME = 'sequential_preLN__mha_block_cached__dense_activation_gelu__decode'
KERN = NAME + '_kernel'


def f2u(x):
    return '0x%08x' % struct.unpack('<I', struct.pack('<f', x))[0]


NB_KV = 402653184
PROB = 3145728
BSTR = 100663296
ITEM = 12288
QP, OP, HP, CT, AP, WS_SZ = 0x0, 0x100000, 0x200000, 0x1C0000, 0x380000, 0x400000
HPB, APB = 20480, 6144
REG = 24576
L_Q = 98304
L_PART = 99840
PARTP = 784
L_FLAG = 112384
F_Q, F_NONCE, F_W, F_T1, F_T2, F_FL, F_ST, F_H = 0, 4, 8, 12, 16, 16, 32, 48
L_ACT = 112448
L_TAB = 118592
L_TAB2 = L_TAB + 1024
LDS_SZ = 120128
SK, SV, SWS, SDBG, SX, SWQ, SWO, SW1, SW2, SOUT, SB1, SB2 = [f's[{i}:{i+3}]' for i in range(8, 56, 4)]
SRD = {'K': (8, 8, NB_KV), 'V': (12, 16, NB_KV), 'WS': (16, 96, WS_SZ), 'DBG': (20, 88, 256), 'X': (24, 0, 5120),
       'WQ': (28, 24, 7864320), 'WO': (32, 32, 7864320), 'W1': (36, 48, 1966080), 'W2': (40, 64, 1966080),
       'OUT': (44, 80, 5120), 'B1': (48, 56, 3072), 'B2': (52, 72, 1280)}
sWAVE, sH, sJ = 's3', 's4', 's5'
sCUR, sNEXT, sHB, sCB, sNB, sPB, sMODE, sSB = 's56', 's57', 's58', 's59', 's60', 's61', 's6', 's7'
sBAT, sROLE, sIN, sOUTA, sACT, sXO = 's56', 's57', 's58', 's59', 's60', 's61'
sT = ['s64', 's65', 's66', 's67']
sSPIN, sST, sHI, sLOG2E = 's68', 's69', 's70', 's71'
sA, sB, sC, sD = 's72', 's73', 's74', 's75'
sPH = 's79'
SPIN = 1 << 14
DPPM = 'row_mask:0xf bank_mask:0xf'


def gen(diag=False, pol='nt', pst=False, PWIN=3, WWIN=1, SMALL=64, SLP=32, FSLP=2, NSTAT=24, pp2=7, pp4=4, ysl=0, hsl=0, early=1, SLP0=100, QSL=0, dbt=False, pnt='', sb=3, noq=False, WSL=0, PSL=0, RH=4, RB=0, exp=0, QS2=0, PRE=0, lstamp=True, mk=7, D4=1, G4=6, D5=1, G5=6, RC2=8, RC4=8, YS3=16, PAR=True, CTA=0x340000, CTS=4352, STM='sc1', LDM='sc1', OUM='', ISS='bbbbbbbb', PS=True, HM=5):
    CT = CTA
    a = Asm()
    nstamp = [0]

    def stamp(i):
        if diag:
            a(f's_memrealtime s[{84 + 2 * i}:{85 + 2 * i}]')

    def bstamp(i):
        if diag and sb < 3:
            nstamp[0] += 1
            a(f's_cmp_lg_u32 {sBAT}, {sb}\ns_cbranch_scc1 L_bs{nstamp[0]}')
            stamp(i)
            a(f'L_bs{nstamp[0]}:')
        else:
            stamp(i)

    def dstamp(i, op='umax'):
        if dbt:
            a('s_memrealtime s[84:85]\ns_mov_b64 s[86:87], exec\ns_mov_b64 exec, 1\ns_waitcnt lgkmcnt(0)')
            a('v_mov_b32 v254, s84\nv_mov_b32 v255, 0')
            if op == 'umin':
                a('v_sub_u32 v254, 0, v254')
            a(f'buffer_atomic_umax v254, v255, {SDBG}, 0 offen offset:{4 * i} sc1')
            a('s_mov_b64 exec, s[86:87]')

    def allreduce(op, r, t, low=True):
        if low:
            a(f'{op}_dpp {r}, {r}, {r} quad_perm:[1,0,3,2] {DPPM}')
            a(f'{op}_dpp {r}, {r}, {r} quad_perm:[2,3,0,1] {DPPM}')
            a(f'{op}_dpp {r}, {r}, {r} row_half_mirror {DPPM}')
        a(f'{op}_dpp {r}, {r}, {r} row_ror:8 {DPPM}')
        for sw in ('v_permlane16_swap_b32', 'v_permlane32_swap_b32'):
            a(f'v_mov_b32 {t}, {r}')
            a(f'{sw} {r}, {t}')
            a(f'{op} {r}, {r}, {t}')

    def rbf(r):
        a(f'v_cvt_pk_bf16_f32 {r}, {r}, {r}')
        a(f'v_and_b32 {r}, {sHI}, {r}')

    def tag(base, n, vM):
        for i in range(n):
            a(f'v_bfi_b32 v{base + i}, {vM}, {sT[i % 4]}, v{base + i}')

    def check(base, n, chk, label, done, sleep=True, tags=None, mask='v9', step=1):
        tags = tags or sT
        c2 = f'v{int(chk[1:]) + 1}'
        a(f'v_xor_b32 {chk}, {tags[0]}, v{base}\nv_xor_b32 {c2}, {tags[1 % len(tags)]}, v{base + step}')
        for i in range(2, n):
            c = chk if i % 2 == 0 else c2
            a(f'v_bitop3_b32 {c}, {c}, v{base + i * step}, {tags[i % len(tags)]} bitop3:0xf6')
        a(f'v_bitop3_b32 {chk}, {chk}, {c2}, {mask} bitop3:0xa8')
        a(f'v_cmp_ne_u32 vcc, 0, {chk}')
        a(f's_cbranch_vccz {done}')
        a(f's_sub_u32 {sSPIN}, {sSPIN}, 1')
        a(f's_cbranch_scc1 {done}')
        if sleep:
            a(f's_cmp_eq_u32 {sBAT}, 3\ns_cbranch_scc1 {label}')
            a(f's_sleep {SLP}')
            if SLP0:
                a(f's_cmp_lg_u32 {sBAT}, 0\ns_cbranch_scc1 {label}\ns_sleep {SLP0}')
        a(f's_branch {label}')
        a(f'{done}:')
        a(f's_mov_b32 {sSPIN}, {SPIN}')

    def gather(lab, loads, tags, mask, depth=1, gap=0):
        M = ['s[8:9]', 's[10:11]', 's[12:13]', 's[14:15]', 's[28:29]']
        loads = [(x.replace('sc1', LDM), r) for x, r in loads]
        n = len(loads)
        a(f'{lab}:')
        for i in range(n):
            a(f's_mov_b64 {M[i]}, -1')
        if depth > 1:
            a(f's_cmp_lg_u32 {sBAT}, 3\ns_cbranch_scc1 {lab}l')
            for d in range(depth - 1):
                for x, _ in loads:
                    a(x)
                a(f's_sleep {gap}')
        a(f'{lab}l:')
        for i, (x, _) in enumerate(loads):
            a(f's_or_b64 exec, {M[i]}, 1' if depth > 1 else f's_mov_b64 exec, {M[i]}')
            a(x)
        a('s_mov_b64 exec, -1')
        if depth > 1:
            a(f's_waitcnt vmcnt({(depth - 1) * n})')
            a(f's_cmp_eq_u32 {sBAT}, 3\ns_cbranch_scc1 {lab}c')
        a('s_waitcnt vmcnt(0)')
        a(f'{lab}c:')
        for k in range(len(loads[0][1])):
            for i, (_, regs) in enumerate(loads):
                t = tags[k % len(tags)]
                a(f'v_bitop3_b32 v{10 + i}, v{10 + i}, v{regs[k]}, {t} bitop3:0xf6' if k else f'v_xor_b32 v{10 + i}, {t}, v{regs[0]}')
        for i in range(n):
            a(f'v_and_b32 v{10 + i}, {mask}, v{10 + i}')
        for i in range(n):
            a(f'v_cmp_ne_u32 {M[i]}, 0, v{10 + i}')
        a('s_nop 1')
        a(f's_or_b64 vcc, {M[0]}, {M[1]}')
        for i in range(2, n):
            a(f's_or_b64 vcc, vcc, {M[i]}')
        a(f's_cbranch_scc0 {lab}d')
        a(f's_sub_u32 {sSPIN}, {sSPIN}, 1\ns_cbranch_scc1 {lab}d')
        a(f's_cmp_eq_u32 {sBAT}, 3\ns_cbranch_scc1 {lab}l')
        a(f's_sleep {SLP}\ns_branch {lab}l')
        a(f'{lab}d:')
        a(f's_mov_b32 {sSPIN}, {SPIN}')

    def get_nonce(lab, t):
        a(f'{lab}:')
        a(f'v_mov_b32 {t}, {L_FLAG}')
        a(f'ds_read_b32 {t}, {t} offset:{F_NONCE}')
        a('s_waitcnt lgkmcnt(0)')
        a(f'v_readfirstlane_b32 {sT[0]}, {t}')
        a('s_nop 1')
        a(f's_cmp_eq_u32 {sT[0]}, 0\ns_cbranch_scc1 {lab}')
        for i in (1, 2, 3):
            a(f's_lshr_b32 {sT[i]}, {sT[0]}, {8 * i}')

    def lds_wait(lab, t, vaddr, off, val, slp):
        a(f'{lab}:')
        a(f'ds_read_b32 {t}, {vaddr} offset:{off}')
        a('s_waitcnt lgkmcnt(0)')
        a(f'v_cmp_ne_u32 vcc, {val}, {t}')
        if slp:
            a(f's_cbranch_vccz {lab}d')
            a(f's_sleep {slp}\ns_branch {lab}')
            a(f'{lab}d:')
        else:
            a(f's_cbranch_vccnz {lab}')

    def lds_inc(vaddr, off, one):
        a('s_mov_b64 exec, 1')
        a(f'ds_add_u32 {vaddr}, {one} offset:{off}')
        a('s_mov_b64 exec, -1')

    def pub_exec(n, soff, stride):
        a(f's_add_u32 {sA}, {soff}, {4 * stride}')
        a(f's_cmp_eq_u32 {sBAT}, {3 if n > 1 else 4}\ns_cselect_b64 exec, -1, 0xffff')

    def pub_store(n, v, vaddr, soff, lab):
        a(f'buffer_store_dword {v}, {vaddr}, {SWS}, {soff} offen {STM}')
        if n == 8:
            a(f's_cbranch_scc0 {lab}')
            a(f'buffer_store_dword {v}, {vaddr}, {SWS}, {sA} offen {STM}')
            a(f'{lab}:')

    def copy_off(n, stride, inc):
        if n == 1:
            return inc
        r = sB if stride == 4 * HPB else sD
        a(f's_and_b32 {r}, {sJ}, {n - 1}\ns_mul_i32 {r}, {r}, {stride}\ns_cmp_eq_u32 {sBAT}, 2\ns_cselect_b32 {r}, {r}, 0\ns_add_u32 {r}, {r}, {inc}')
        return r

    def set_exec(m):
        a(f's_mov_b32 exec_lo, {m:#x}\ns_mov_b32 exec_hi, {m:#x}')

    a(f'{KERN}:')
    a('s_cmp_ge_u32 s2, 256\ns_cbranch_scc1 L_end')
    for k in ('X', 'WQ', 'K', 'DBG', 'WS', 'V', 'WO', 'W1', 'W2', 'OUT', 'B1', 'B2'):
        r, off, _ = SRD[k]
        a(f's_load_dwordx2 s[{r}:{r + 1}], s[0:1], {off}')
    a('s_memrealtime s[62:63]')
    stamp(0)
    a('v_lshrrev_b32 v1, 6, v0\nv_and_b32 v0, 63, v0')
    a(f'v_readfirstlane_b32 {sWAVE}, v1')
    for k, (r, off, sz) in SRD.items():
        a(f's_mov_b32 s{r + 2}, {sz}\ns_mov_b32 s{r + 3}, 0x20000')
    a(f's_and_b32 {sJ}, s2, 7')
    if HM:
        a(f's_mul_i32 {sH}, {sJ}, {8 * HM}\ns_add_u32 s2, s2, {sH}\ns_and_b32 s2, s2, 255')
    a(f's_lshr_b32 {sH}, s2, 3')
    a(f's_mov_b32 {sHI}, 0xffff0000\ns_mov_b32 {sLOG2E}, {f2u(1.4426950408889634)}')
    a(f's_mov_b32 {sSPIN}, {SPIN}')
    a(f's_cmp_ge_u32 {sWAVE}, 4\ns_cbranch_scc1 L_stream')

    sP, sQO = 's80', 's81'
    a(f's_cmp_lg_u32 {sWAVE}, 3\ns_cbranch_scc1 L_h0')
    for k in range(4):
        a(f'v_mov_b32 v{12 + k}, 0')
    a(f'v_and_b32 v5, 15, v0\nv_lshlrev_b32 v5, 2, v5\nv_add_u32 v5, {L_FLAG}, v5')
    a('ds_write_b32 v5, v12')
    a(f'v_lshlrev_b32 v5, 4, v0\nv_lshlrev_b32 v6, 3, v0\nv_add_u32 v10, {L_TAB}, v5\nv_add_u32 v6, {L_TAB2}, v6')
    a('ds_write_b128 v10, v[12:15]\nds_write_b64 v6, v[12:13]')
    a(f's_lshr_b32 {sA}, {sJ}, 2\ns_mul_i32 {sA}, {sA}, 240\ns_lshl_b32 {sB}, {sJ}, 2\ns_add_u32 {sB}, {sB}, 1\ns_add_u32 {sA}, {sA}, {sB}')
    a(f'v_add_u32 v6, {sA}, v5\nv_lshlrev_b32 v5, 5, v0\nv_add_u32 v5, {sB}, v5')
    a('v_cmp_gt_u32 vcc, 16, v0\nv_cndmask_b32 v5, v5, v6, vcc')
    a(f'v_cmp_gt_u32 vcc, {NSTAT}, v0\nv_cndmask_b32 v5, 0, v5, vcc')
    a(f'v_lshlrev_b32 v6, 2, v0\nv_add_u32 v6, {L_TAB}, v6')
    a('ds_write_b32 v6, v5')
    a('s_cmp_lg_u32 s2, 0\ns_cbranch_scc1 L_h0')
    a('v_lshlrev_b32 v7, 6, v0\ns_waitcnt lgkmcnt(0)')
    a(f's_mul_i32 {sB}, s62, 0x9e3779b1\ns_or_b32 {sB}, {sB}, 1\nv_mov_b32 v5, {sB}')
    a('s_mov_b64 exec, 15')
    a(f'buffer_store_dword v5, v7, {SDBG}, 0 offen sc1')
    a('s_mov_b64 exec, -1')
    a('L_h0:')
    a('v_and_b32 v1, 3, v0\nv_mul_u32_u24 v1, 1280, v1\nv_lshrrev_b32 v2, 2, v0\nv_mul_u32_u24 v3, 80, v2\nv_add_u32 v3, v3, v1')
    a('v_lshrrev_b32 v4, 4, v0\nv_lshl_add_u32 v4, v4, 3, v1')
    a('v_lshrrev_b32 v5, 3, v0\nv_mul_u32_u24 v5, 12288, v5\nv_and_b32 v6, 7, v0\nv_lshl_add_u32 v5, v6, 4, v5')
    a(f's_add_u32 {sP}, {sJ}, {sH}\ns_and_b32 {sP}, {sP}, 7')
    a(f's_and_b32 {sD}, {sP}, 1\ns_lshl_b32 {sD}, {sD}, 2\ns_add_u32 {sD}, {sD}, {sWAVE}')
    a(f's_mul_i32 {sA}, {sD}, 160')
    a(f's_mul_i32 {sB}, {sD}, {80 * 12288}\ns_mul_i32 {sC}, {sH}, 384\ns_add_u32 {sB}, {sB}, {sC}')
    a(f's_lshr_b32 {sC}, {sP}, 1\ns_lshl_b32 {sC}, {sC}, 7\ns_add_u32 {sB}, {sB}, {sC}')
    a(f's_mul_i32 {sC}, {sWAVE}, {REG}\ns_mul_i32 {sQO}, {sH}, 6144')
    a('s_waitcnt lgkmcnt(0)')
    a(f's_cmp_ge_u32 {sP}, {0 if exp & 2 else 6}\ns_cbranch_scc1 L_nold')
    for i in range(5):
        a(f'buffer_load_dwordx4 v[{20 + 4 * i}:{23 + 4 * i}], v3, {SX}, 0 offen offset:{i * 16}')
    for i in range(5):
        a(f'buffer_load_dwordx2 v[{10 + 2 * i}:{11 + 2 * i}], v4, {SX}, {sA} offen offset:{i * 32}')
    for u in range(10):
        a(f's_mov_b32 m0, {sC}')
        a(f'buffer_load_dwordx4 v5, {SWQ}, {sB} offen nt lds')
        if u < 9:
            a(f's_add_u32 {sB}, {sB}, {8 * 12288}\ns_add_u32 {sC}, {sC}, 1024')
    a('L_nold:')
    a('s_barrier')
    a(f's_cmp_lg_u32 {sWAVE}, 3\ns_cbranch_scc1 L_h1')
    for i in (3, 0, 1, 2):
        a(f's_load_dword {sT[0]}, s[20:21], {64 * i}')
        a('s_waitcnt lgkmcnt(0)')
        a(f's_cmp_lg_u32 {sT[0]}, 0\ns_cbranch_scc1 L_ngot')
    a('v_mov_b32 v7, 0')
    a('L_nv:')
    a(f'buffer_load_dword v6, v7, {SDBG}, 0 offen sc1')
    a('s_waitcnt vmcnt(0)')
    a(f'v_readfirstlane_b32 {sT[0]}, v6')
    a(f's_sub_u32 {sSPIN}, {sSPIN}, 1\ns_cselect_b32 {sT[0]}, 1, {sT[0]}')
    a(f's_cmp_eq_u32 {sT[0]}, 0\ns_cbranch_scc1 L_nv')
    a(f's_mov_b32 {sSPIN}, {SPIN}')
    a('L_ngot:')
    a(f'v_mov_b32 v6, {sT[0]}\nv_mov_b32 v7, {L_FLAG}')
    a(f'ds_write_b32 v7, v6 offset:{F_NONCE}')
    a('L_h1:')
    a(f's_cmp_ge_u32 {sP}, 6\ns_cbranch_scc1 L_nop')
    a(f's_or_b32 {sB}, {sP}, {sWAVE}\ns_cbranch_scc1 L_noct')
    a(f's_mul_i32 {sB}, {sH}, {CTS}\ns_add_u32 {sB}, {sB}, {CT}')
    a('v_mov_b32 v6, 0\nv_lshlrev_b32 v7, 7, v0\ns_mov_b64 exec, 3')
    a(f'buffer_store_dword v6, v7, {SWS}, {sB} offen sc1')
    a('s_mov_b64 exec, -1')
    a('L_noct:')
    if exp & 2:
        a('s_branch L_fin')
    a('s_waitcnt vmcnt(10)')
    stamp(1)
    a(f's_mov_b32 {sD}, 0x3f803f80')
    for i in range(20):
        acc = f'v{6 + i % 2}'
        a(f'v_dot2_f32_bf16 {acc}, v{20 + i}, {sD}, {acc if i >= 2 else 0}')
    for i in range(20):
        a(f'v_lshlrev_b32 v{40 + 2 * i}, 16, v{20 + i}\nv_and_b32 v{41 + 2 * i}, {sHI}, v{20 + i}')
    a('v_add_f32 v6, v6, v7')

    def red4(r, t):
        a(f'v_add_f32_dpp {r}, {r}, {r} row_ror:4 {DPPM}')
        allreduce('v_add_f32', r, t, low=False)
    red4('v6', 'v7')
    a(f'v_mul_f32 v6, {f2u(1 / 640)}, v6')
    for i in range(20):
        a(f'v_pk_add_f32 v[{40 + 2 * i}:{41 + 2 * i}], v[{40 + 2 * i}:{41 + 2 * i}], v[6:7] op_sel_hi:[1,0] neg_lo:[0,1] neg_hi:[0,1]')
    for i in range(20):
        d = f'v[{40 + 2 * i}:{41 + 2 * i}]'
        acc = f'v[{20 + 2 * (i % 2)}:{21 + 2 * (i % 2)}]'
        a(f'v_pk_mul_f32 {acc}, {d}, {d}' if i < 2 else f'v_pk_fma_f32 {acc}, {d}, {d}, {acc}')
    rbf('v6')
    for i in range(10):
        a(f'v_lshlrev_b32 v{40 + 2 * i}, 16, v{10 + i}\nv_and_b32 v{41 + 2 * i}, {sHI}, v{10 + i}')
    a('v_add_f32 v20, v20, v21\nv_add_f32 v22, v22, v23\nv_add_f32 v8, v20, v22')
    red4('v8', 'v9')
    for i in range(10):
        a(f'v_pk_add_f32 v[{40 + 2 * i}:{41 + 2 * i}], v[{40 + 2 * i}:{41 + 2 * i}], v[6:7] op_sel_hi:[1,0] neg_lo:[0,1] neg_hi:[0,1]')
    a(f'v_mul_f32 v8, {f2u(1 / 640)}, v8')
    rbf('v8')
    a(f'v_add_f32 v8, {f2u(1e-5)}, v8')
    rbf('v8')
    a('v_sqrt_f32 v8, v8')
    for i in range(10):
        a(f'v_cvt_pk_bf16_f32 v{10 + i}, v{40 + 2 * i}, v{41 + 2 * i}')
    rbf('v8')
    a('v_rcp_f32 v8, v8')
    for i in range(10):
        a(f'v_lshlrev_b32 v{40 + 2 * i}, 16, v{10 + i}\nv_and_b32 v{41 + 2 * i}, {sHI}, v{10 + i}')
    for i in range(10):
        a(f'v_pk_mul_f32 v[{40 + 2 * i}:{41 + 2 * i}], v[{40 + 2 * i}:{41 + 2 * i}], v[8:9] op_sel_hi:[1,0]')
    for i in range(10):
        a(f'v_cvt_pk_bf16_f32 v{10 + i}, v{40 + 2 * i}, v{41 + 2 * i}')
    a(f'v_and_b32 v1, 3, v0\nv_lshlrev_b32 v5, 7, v2\nv_lshl_add_u32 v5, v1, 3, v5')
    a(f's_mul_i32 {sC}, {sWAVE}, {REG}\nv_add_u32 v5, {sC}, v5')
    a('v_mov_b32 v9, 0xff\nv_lshlrev_b32 v8, 4, v0')
    get_nonce('L_np0', 'v6')
    stamp(2)
    a('s_waitcnt vmcnt(0)')
    stamp(3)
    for qs in ((4,), (0, 1), (2, 3)):
        for T in range(4):
            for q in qs:
                r = 20 + T * 12 + q * 2
                a(f'ds_read_b64_tr_b16 v[{r}:{r + 1}], v5 offset:{q * 2048 + T * 32}')
    a(f's_lshl_b32 {sB}, {sP}, 10\ns_add_u32 {sB}, {sB}, {sQO}')
    a(f's_lshl_b32 {sC}, {sWAVE}, 10\nv_add_u32 v7, {L_ACT}, v8\nv_add_u32 v6, {sC}, v7')
    a(f'v_mov_b32 v3, {L_TAB2 + 508}\nv_mov_b32 v4, 1')
    a('s_waitcnt lgkmcnt(15)')
    for T in range(4):
        r, d = 20 + T * 12, 68 + T * 4
        a(f'v_mfma_f32_16x16x16_bf16 v[{d}:{d + 3}], v[18:19], v[{r + 8}:{r + 9}], 0')
    for kk in range(2):
        a(f's_waitcnt lgkmcnt({8 - 8 * kk})')
        for T in range(4):
            r, d = 20 + T * 12 + 4 * kk, 68 + T * 4
            a(f'v_mfma_f32_16x16x32_bf16 v[{d}:{d + 3}], v[{10 + 4 * kk}:{13 + 4 * kk}], v[{r}:{r + 3}], v[{d}:{d + 3}]')
    a('s_mov_b64 exec, 0xffff')
    for T in range(4):
        a(f'ds_write_b128 v6, v[{68 + T * 4}:{71 + T * 4}] offset:{T * 256}')
    a('s_mov_b64 exec, 1\nds_add_rtn_u32 v4, v3, v4\ns_mov_b64 exec, -1')
    a(f's_waitcnt lgkmcnt(0)\nv_readfirstlane_b32 {sA}, v4\ns_nop 1')
    a(f's_cmp_lg_u32 {sA}, 3\ns_cbranch_scc1 L_qc')
    for w in range(4):
        a(f'ds_read_b128 v[{20 + 4 * w}:{23 + 4 * w}], v7 offset:{w * 1024}')
    a('s_waitcnt lgkmcnt(2)')
    a('v_pk_add_f32 v[20:21], v[20:21], v[24:25]\nv_pk_add_f32 v[22:23], v[22:23], v[26:27]')
    a('s_waitcnt lgkmcnt(0)')
    a('v_pk_add_f32 v[28:29], v[28:29], v[32:33]\nv_pk_add_f32 v[30:31], v[30:31], v[34:35]')
    a('v_pk_add_f32 v[36:37], v[20:21], v[28:29]\nv_pk_add_f32 v[38:39], v[22:23], v[30:31]')
    tag(36, 4, 'v9')
    a(f'buffer_store_dwordx4 v[36:39], v8, {SWS}, {sB} offen sc1')
    stamp(4)
    a('s_branch L_qc')
    a('L_nop:')
    a('v_mov_b32 v9, 0xff\nv_lshlrev_b32 v8, 4, v0')
    get_nonce('L_np1', 'v6')
    if exp & 2:
        a('s_branch L_fin')
    if QSL:
        a(f's_sleep {QSL}')
    a('L_qc:')
    a(f'v_mov_b32 v3, {L_FLAG}\nv_mov_b32 v4, 1')
    a(f's_cmp_eq_u32 {sWAVE}, 3\ns_cbranch_scc1 L_role')
    a(f's_lshl_b32 {sB}, {sWAVE}, 11\ns_add_u32 {sB}, {sB}, {sQO}')
    if QS2:
        a(f's_sleep {QS2}')
    a('L_qg:')
    for m in range(2):
        a(f'buffer_load_dwordx4 v[{20 + 4 * m}:{23 + 4 * m}], v8, {SWS}, {sB} offen offset:{m * 1024} sc1')
    a('s_waitcnt vmcnt(0)')
    check(20, 8, 'v10', 'L_qg', 'L_qgd', sleep=False)
    a(f's_mov_b32 {sD}, 0x80')
    for i in range(8):
        a(f'v_bfi_b32 v{20 + i}, v9, {sD}, v{20 + i}')
    for i in range(4):
        a(f'v_add_f32 v{20 + i}, v{20 + i}, v{24 + i}')
    a('v_cvt_pk_bf16_f32 v20, v20, v21\nv_cvt_pk_bf16_f32 v22, v22, v23')
    a(f's_lshl_b32 {sC}, {sWAVE}, 7\ns_add_u32 {sC}, {sC}, {L_Q}')
    a(f'v_lshl_add_u32 v5, v0, 1, {sC}')
    a('ds_write_b16 v5, v20\nds_write_b16_d16_hi v5, v20 offset:384')
    a('ds_write_b16 v5, v22 offset:768\nds_write_b16_d16_hi v5, v22 offset:1152')
    lds_inc('v3', F_Q, 'v4')
    stamp(5)

    def dma_loop(lab, srd, n, gstep):
        a(f's_add_u32 {sD}, {sC}, {n * 1024}')
        a(f'{lab}:')
        a(f's_mov_b32 m0, {sC}')
        a(f's_add_u32 {sC}, {sC}, 1024')
        a(f'buffer_load_dwordx4 v2, {srd}, {sB} offen nt lds')
        a(f's_add_u32 {sB}, {sB}, {gstep}')
        a(f's_waitcnt vmcnt({WWIN})')
        a(f's_cmp_lt_u32 {sC}, {sD}\ns_cbranch_scc1 {lab}')

    def weights_ready(lab):
        a('s_waitcnt vmcnt(0)')
        lds_inc('v3', F_W, 'v4')
        lds_wait(lab, 'v10', 'v3', F_W, 4, 8)

    def tr_reads(lst):
        for n, (r, va, off) in enumerate(lst):
            if n and n % 12 == 0:
                a('s_waitcnt lgkmcnt(0)')
            a(f'ds_read_b64_tr_b16 v[{r}:{r + 1}], {va} offset:{off}')
        a('s_waitcnt lgkmcnt(0)')

    def batch_top(lab):
        a('s_branch L_pre')
        a(f'{lab}:')
        if early >> ('L_s2b', 'L_s4b', 'L_s5b').index(lab) & 1:
            a(f's_cmp_eq_u32 {sBAT}, 2\ns_cbranch_scc1 L_pre2')
        a(f'{lab}c:')

    def shadow_sleep(lab, n, force=False):
        if n or force:
            a(f's_cmp_eq_u32 {sBAT}, 3\ns_cbranch_scc1 {lab}')
        for i in range(n):
            a('s_sleep 127')

    def s1_setup(sb):
        a(f's_mul_i32 {sA}, {sb}, {PARTP}\ns_add_u32 {sA}, {sA}, {L_PART}')
        a(f'v_and_b32 v51, 31, v0\nv_lshlrev_b32 v54, 4, v51\nv_add_u32 v52, {sA}, v54\nv_mov_b32 v53, {sA}')
        a(f'v_lshl_add_u32 v51, v51, 3, {sA}\nv_mov_b32 v55, 0xffff')
        a(f'v_and_b32 v50, 1, v0\nv_lshlrev_b32 v50, 4, v50\nv_lshrrev_b32 v49, v50, {sT[0]}\nv_sub_u32 v50, 16, v50')
        a(f's_lshl_b32 {sB}, {sb}, 17\ns_lshl_b32 {sA}, s2, 9\ns_add_u32 {sB}, {sB}, {sA}\ns_add_u32 {sB}, {sB}, {OP}')

    def wait_flush(lab, split):
        a(f's_cmp_lg_u32 {sBAT}, 3\ns_cbranch_scc1 {lab}d')
        if PAR:
            for r, bit, off in split:
                if r[0] == 's':
                    a(f's_bitcmp1_b32 {sWAVE}, 0\ns_cselect_b32 {sB}, {off}, 0\ns_add_u32 {r}, {r}, {sB}')
                else:
                    a(f'v_bfe_u32 v10, v0, {bit}, 1\nv_mul_u32_u24 v10, {off}, v10\nv_add_u32 {r}, {r}, v10')
        stamp(2)
        lds_wait(lab, 'v10', 'v3', F_FL, 4, FSLP)
        bstamp(6)

    def batch_end(lab, incs):
        a('s_mov_b64 exec, -1')
        a(f's_add_u32 {sBAT}, {sBAT}, 1')
        a('v_add_u32 v3, 4, v3')
        for r, d in incs:
            a(f's_add_u32 {r}, {r}, {d}' if r[0] == 's' else f'v_add_u32 {r}, {d}, {r}')
        a(f's_cmp_lt_u32 {sBAT}, 4\ns_cbranch_scc1 {lab}')
        a('s_branch L_fin')

    a('L_role:')
    if exp & 1:
        a('s_branch L_fin')
    for i in range(WSL):
        a('s_sleep 127')
    a(f's_lshl_b32 {sA}, {sJ}, 2\ns_add_u32 {sA}, {sA}, {sH}\ns_and_b32 {sA}, {sA}, 31\ns_mov_b32 {sROLE}, 0')
    a(f's_mul_i32 {sC}, {sWAVE}, {REG}')
    a('v_lshrrev_b32 v5, 4, v0\nv_bfe_u32 v6, v0, 2, 2\nv_and_b32 v7, 3, v0')
    a('v_and_b32 v63, 15, v0\nv_lshlrev_b32 v63, 2, v63')
    a(f's_cmp_ge_u32 {sA}, 13\ns_cbranch_scc1 L_s5')
    a(f's_cmp_ge_u32 {sA}, 10\ns_cbranch_scc1 L_ffn')

    a(f's_mov_b32 {sD}, {sJ}')
    a(f's_mul_i32 {sOUTA}, {sD}, 2560\ns_lshl_b32 {sB}, {sA}, 8\ns_add_u32 {sOUTA}, {sOUTA}, {sB}')
    a(f's_lshl_b32 {sB}, {sWAVE}, 6\ns_add_u32 {sOUTA}, {sOUTA}, {sB}\ns_add_u32 {sOUTA}, {sOUTA}, {HP}')
    a(f's_lshl_b32 {sD}, {sD}, 2\ns_add_u32 {sD}, {sD}, {sWAVE}')
    a(f's_lshl_b32 {sIN}, {sD}, 12\ns_add_u32 {sIN}, {sIN}, {OP + (1 << 17)}')
    a(f's_mul_i32 {sB}, {sD}, {192 * 1280}\ns_lshl_b32 {sA}, {sA}, 7\ns_add_u32 {sB}, {sB}, {sA}')
    a('v_lshrrev_b32 v2, 3, v0\nv_mul_u32_u24 v2, 1280, v2\nv_and_b32 v1, 7, v0\nv_lshl_add_u32 v2, v1, 4, v2')
    dma_loop('L_dwo', SWO, 24, 8 * 1280)
    weights_ready('L_wr2')
    a('v_lshlrev_b32 v10, 10, v5\nv_lshl_add_u32 v10, v6, 7, v10\nv_lshl_add_u32 v10, v7, 3, v10')
    a(f's_lshl_b32 {sA}, {sWAVE}, 5\nv_add_u32 v10, {sA}, v10\nv_add_u32 v11, 49152, v10')
    tr_reads([(128 + 4 * s_ + 2 * q, 'v10' if s_ < 12 else 'v11', (s_ % 12) * 4096 + q * 512) for s_ in range(24) for q in range(2)])
    stamp(5)
    a('v_lshlrev_b32 v8, 4, v0\nv_and_b32 v10, 31, v0\nv_lshrrev_b32 v11, 5, v0\nv_lshl_add_u32 v10, v10, 1, v11')
    a(f's_mul_i32 {sA}, {sWAVE}, 384\ns_add_u32 {sA}, {sA}, {L_ACT}')
    a(f'v_lshl_add_u32 v2, v10, 2, {sA}\nv_lshl_add_u32 v7, v10, 1, {sA}')
    a(f'v_and_b32 v10, 1, v0\nv_lshlrev_b32 v11, 4, v10\nv_lshrrev_b32 v224, v11, {sT[0]}\nv_mov_b32 v225, 0xffff')
    a('v_mov_b32 v226, 0x07060302\nv_mov_b32 v227, 0x03020706\nv_cmp_eq_u32 vcc, 1, v10\nv_cndmask_b32 v226, v226, v227, vcc')
    a('v_bfe_u32 v1, v0, 1, 2\nv_lshlrev_b32 v1, 9, v1\nv_add_u32 v1, v1, v11')
    a(f'v_lshlrev_b32 v6, 4, v5\nv_add_u32 v6, {L_ACT}, v6')
    a(f'v_mul_u32_u24 v5, {4 * HPB}, v5\nv_and_b32 v10, 15, v0\nv_lshl_add_u32 v5, v10, 2, v5')
    a(f'v_lshlrev_b32 v10, 3, v0\nv_lshrrev_b32 v227, v10, {sT[0]}')
    batch_top('L_s2b')
    a(f's_cmp_ge_u32 {sBAT}, 2\ns_cselect_b32 {sA}, 2048, 0\ns_add_u32 {sA}, {sA}, {sIN}')
    wait_flush('L_s2w', [(sOUTA, 0, 32 * HPB)])
    if pp2:
        a(f's_bitcmp0_b32 {pp2}, {sBAT}\ns_cbranch_scc1 L_og')
        a('L_op:')
        a(f'buffer_load_dword v20, v1, {SWS}, {sIN} offen offset:12 sc1')
        a(f'buffer_load_dword v21, v1, {SWS}, {sA} offen offset:12 sc1')
        a('s_waitcnt vmcnt(0)')
        check(20, 2, 'v10', 'L_op', 'L_opd', tags=['v224'], mask='v225')
    if mk & 1:
        gather('L_og', [(f'buffer_load_dwordx4 v[{20 + 4 * m}:{23 + 4 * m}], v8, {SWS}, {sIN if m < 2 else sA} offen offset:{(m % 2) * 1024} sc1', [23 + 4 * m]) for m in range(4)], ['v224'], 'v225')
        for m in range(4):
            a(f'v_mov_b32_dpp v{12 + m}, v{23 + 4 * m} quad_perm:[1,0,3,2] {DPPM}')
    else:
        a('L_og:')
        for m in range(4):
            a(f'buffer_load_dwordx4 v[{20 + 4 * m}:{23 + 4 * m}], v8, {SWS}, {sIN if m < 2 else sA} offen offset:{(m % 2) * 1024} sc1')
        a('s_waitcnt vmcnt(0)')
        for m in range(4):
            a(f'v_mov_b32_dpp v{12 + m}, v{23 + 4 * m} quad_perm:[1,0,3,2] {DPPM}')
        check(23, 4, 'v10', 'L_og', 'L_ogd', tags=['v224'], mask='v225', step=4)
    bstamp(3)
    UP = lambda m, k: 36 + 6 * m + k

    def unp(m):
        for k in range(3):
            a(f'v_lshlrev_b32 v{UP(m, 2 * k)}, 16, v{20 + 4 * m + k}\nv_and_b32 v{UP(m, 2 * k + 1)}, {sHI}, v{20 + 4 * m + k}')
    for m in range(4):
        a(f'v_perm_b32 v{60 + 2 * m}, v{12 + m}, v{23 + 4 * m}, v226')
    a('v_max3_f32 v10, v60, v62, v64\nv_max_f32 v10, v10, v66\nv_mov_b32 v11, v10')
    unp(0)
    a('v_permlane32_swap_b32 v10, v11\nv_max_f32 v10, v10, v11')
    for m in range(4):
        a(f'v_sub_f32 v{60 + 2 * m}, v{60 + 2 * m}, v10')
    for m in range(4):
        a(f'v_exp_f32 v{60 + 2 * m}, v{60 + 2 * m}')
    unp(1)
    a('v_add_f32 v10, v60, v62\nv_add_f32 v11, v64, v66\nv_add_f32 v10, v10, v11\nv_mov_b32 v11, v10')
    unp(2)
    a('v_permlane32_swap_b32 v10, v11\nv_add_f32 v10, v10, v11\nv_rcp_f32 v10, v10')
    unp(3)
    for m in range(4):
        for k in range(3):
            d, x, w = f'v[{12 + 2 * k}:{13 + 2 * k}]', f'v[{UP(m, 2 * k)}:{UP(m, 2 * k + 1)}]', f'v[{60 + 2 * m}:{61 + 2 * m}]'
            a(f'v_pk_fma_f32 {d}, {x}, {w}, {d} op_sel_hi:[1,0,1]' if m else f'v_pk_mul_f32 {d}, {x}, {w} op_sel_hi:[1,0]')
    a('v_permlane32_swap_b32 v12, v14\nv_permlane32_swap_b32 v13, v15\nv_permlane32_swap_b32 v16, v17')
    a('v_add_f32 v12, v12, v14\nv_add_f32 v13, v13, v15\nv_add_f32 v16, v16, v17')
    a('v_mul_f32 v12, v10, v12\nv_mul_f32 v13, v10, v13\nv_mul_f32 v16, v10, v16')
    a('v_cvt_pk_bf16_f32 v12, v12, v13\nv_cvt_pk_bf16_f32 v16, v16, v16')
    a('ds_write_b32 v2, v12\nds_write_b16 v7, v16 offset:256')
    lds_inc('v3', F_ST, 'v4')
    lds_wait('L_s2s', 'v10', 'v3', F_ST, 4, 0)
    for s_ in range(12):
        a(f'ds_read_b128 v[{32 + 4 * s_}:{35 + 4 * s_}], v6 offset:{s_ * 64}')
    for s_ in range(24):
        a(f's_waitcnt lgkmcnt({11 if s_ < 12 else 23 - s_})')
        d = f'v[{12 + 4 * (s_ % 2)}:{15 + 4 * (s_ % 2)}]'
        a(f'v_mfma_f32_16x16x32_bf16 {d}, v[{32 + 4 * s_}:{35 + 4 * s_}], v[{128 + 4 * s_}:{131 + 4 * s_}], {d if s_ >= 2 else 0}')
        if s_ < 12:
            a(f'ds_read_b128 v[{80 + 4 * s_}:{83 + 4 * s_}], v6 offset:{(s_ + 12) * 64}')
    pub_exec(RC2, sOUTA, 4 * HPB)
    a('v_add_f32 v12, v12, v16\nv_bfi_b32 v12, v9, v227, v12')
    pub_store(RC2, 'v12', 'v5', sOUTA, 'L_s2p')
    bstamp(4)
    a(f's_mov_b32 {sA}, {1 << 17}\ns_cmp_eq_u32 {sBAT}, 0\ns_cselect_b32 {sA}, 2048, {sA}\ns_cmp_eq_u32 {sBAT}, 1\ns_cselect_b32 {sA}, {(1 << 17) - 2048}, {sA}')
    batch_end('L_s2b', [(sIN, sA), (sOUTA, HPB), ('v2', 1536), ('v6', 1536), ('v7', 1536)])

    a('L_ffn:')
    a(f's_mov_b32 {sROLE}, 1')
    a(f's_mul_i32 {sB}, {sJ}, 3\ns_add_u32 {sA}, {sA}, {sB}\ns_sub_u32 {sA}, {sA}, 10')
    a('v_lshrrev_b32 v2, 3, v0\nv_mul_u32_u24 v2, 3072, v2\nv_and_b32 v1, 7, v0\nv_lshl_add_u32 v2, v1, 4, v2')
    a(f's_lshl_b32 {sB}, {sA}, 7\ns_mul_i32 {sD}, {sWAVE}, {160 * 3072}\ns_add_u32 {sB}, {sB}, {sD}')
    a(f's_mul_i32 {sC}, {sWAVE}, 20480')
    dma_loop('L_dw1', SW1, 20, 8 * 3072)
    a(f's_lshl_b32 {sA}, {sA}, 2\ns_add_u32 {sA}, {sA}, {sWAVE}')
    a(f's_lshl_b32 {sD}, {sA}, 5\nv_and_b32 v8, 15, v0\nv_lshlrev_b32 v10, 1, v8')
    a(f'buffer_load_ushort v244, v10, {SB1}, {sD} offen')
    a(f's_lshl_b32 {sOUTA}, {sA}, 6\ns_add_u32 {sOUTA}, {sOUTA}, {AP}')
    weights_ready('L_wr4')
    a('v_lshlrev_b32 v10, 10, v5\nv_lshl_add_u32 v10, v6, 7, v10\nv_lshl_add_u32 v10, v7, 3, v10')
    a(f's_lshl_b32 {sA}, {sWAVE}, 5\nv_add_u32 v10, {sA}, v10\nv_add_u32 v11, 49152, v10')
    tr_reads([(144 + 4 * s_ + 2 * q, 'v10' if s_ < 12 else 'v11', (s_ % 12) * 4096 + q * 512) for s_ in range(20) for q in range(2)])
    XR, CS, B1R = 234, 240, 244
    for k in range(4):
        a(f'v_mov_b32 v{24 + k}, 0x3f803f80')
    for s_ in range(20):
        a(f'v_mfma_f32_16x16x32_bf16 v[{CS}:{CS + 3}], v[24:27], v[{144 + 4 * s_}:{147 + 4 * s_}], {f"v[{CS}:{CS + 3}]" if s_ else 0}')
    a(f'v_lshlrev_b32 v{B1R}, 16, v{B1R}')
    stamp(5)
    a(f'v_mul_u32_u24 v10, {4 * APB}, v5\nv_lshl_add_u32 v8, v8, 2, v10')
    a(f'v_lshlrev_b32 v10, 4, v0\nv_lshrrev_b32 v245, v10, {sT[0]}\nv_and_b32 v245, 0xffff, v245')
    a(f'v_mov_b32 v246, {f2u(-2.0 * 0.7978845608028654 * 1.4426950408889634 * 0.044715)}')
    a('v_lshrrev_b32 v1, 3, v0\nv_mul_u32_u24 v1, 2560, v1\nv_and_b32 v10, 7, v0\nv_lshl_add_u32 v1, v10, 4, v1')
    a('v_lshlrev_b32 v7, 3, v10\nv_lshl_add_u32 v7, v5, 1, v7')
    a(f's_mul_i32 {sXO}, {sWAVE}, 320\ns_add_u32 {sA}, {sXO}, {L_ACT}\nv_add_u32 v2, {sA}, v7')
    a(f's_lshl_b32 {sIN}, {sXO}, 1\ns_add_u32 {sIN}, {sIN}, {HP}')
    a(f'v_lshlrev_b32 v6, 4, v5\nv_add_u32 v6, {L_ACT}, v6')
    a(f'v_lshlrev_b32 v5, 2, v0\nv_add_u32 v5, {L_ACT}, v5')
    a(f's_mov_b32 {sC}, 0x3f803f80')
    batch_top('L_s4b')
    for i in range(5):
        a(f'v_mov_b32 v{XR + i}, 0\nbuffer_load_short_d16_hi v{XR + i}, v7, {SX}, {sXO} offen offset:{i * 64}')
    wait_flush('L_s4w', [(sOUTA, 0, 32 * APB), ('v1', 2, 32 * HPB)])
    if pp4:
        a(f's_bitcmp0_b32 {pp4}, {sBAT}\ns_cbranch_scc1 L_hg')
        for i in range(hsl):
            a('s_sleep 127')
        a('L_hp:')
        a(f'buffer_load_dwordx4 v[24:27], v1, {SWS}, {sIN} offen sc1 {pnt}')
        a('s_waitcnt vmcnt(0)')
        check(24, 4, 'v10', 'L_hp', 'L_hpd')
    GB = 104 if D4 > 1 else 24
    if mk & 2:
        gather('L_hg', [(f'buffer_load_dwordx4 v[{GB + 4 * i}:{GB + 3 + 4 * i}], v1, {SWS}, {sIN} offen offset:{i * 128} sc1', range(GB + 4 * i, GB + 4 * i + 4)) for i in range(5)], sT, 'v9', D4, G4)
    else:
        a('L_hg:')
        for i in range(5):
            a(f'buffer_load_dwordx4 v[{24 + 4 * i}:{27 + 4 * i}], v1, {SWS}, {sIN} offen offset:{i * 128} sc1 {pnt}')
        a('s_waitcnt vmcnt(0)')
        check(24, 20, 'v10', 'L_hg', 'L_hgd')
    bstamp(3)
    G = lambda i, e: f'v{24 + 4 * i + e}'
    if D4 > 1:
        for i in range(20):
            a(f'v_add_f32_dpp v{24 + i}, v{GB + i}, v{GB + i} row_ror:8 {DPPM}')
    for i in range(5):
        a(f'v_permlane16_swap_b32 {G(i, 0)}, {G(i, 1)}\nv_permlane16_swap_b32 {G(i, 2)}, {G(i, 3)}')
    for i in range(5):
        a(f'v_add_f32 {G(i, 0)}, {G(i, 0)}, {G(i, 1)}\nv_add_f32 {G(i, 2)}, {G(i, 2)}, {G(i, 3)}')
    for i in range(5):
        a(f'v_permlane32_swap_b32 {G(i, 0)}, {G(i, 2)}')
    for i in range(5):
        a(f'v_add_f32 {G(i, 0)}, {G(i, 0)}, {G(i, 2)}')
    for i in range(5 if D4 == 1 else 0):
        a(f'v_add_f32_dpp {G(i, 0)}, {G(i, 0)}, {G(i, 0)} row_ror:8 {DPPM}')
    for i in range(5):
        a(f'v_cvt_pk_bf16_f32 {G(i, 0)}, 0, {G(i, 0)}')
    for i in range(5):
        a(f'v_add_f32 {G(i, 0)}, {G(i, 0)}, v{XR + i}')
    for i in range(5):
        a(f'v_cvt_pk_bf16_f32 {G(i, 0)}, {G(i, 0)}, {G(i, 0)}')
        a(f'ds_write_b16 v2, {G(i, 0)} offset:{i * 64}')
    lds_inc('v3', F_ST, 'v4')
    lds_wait('L_s4s', 'v10', 'v3', F_ST, 4, 0)
    bstamp(1)
    for i in range(5):
        a(f'ds_read_b32 v{XR + i}, v5 offset:{i * 256}')
    for s_ in range(10):
        a(f'ds_read_b128 v[{24 + 4 * s_}:{27 + 4 * s_}], v6 offset:{s_ * 64}')
    st = Asm()
    sv, a_main = a, a
    a = st
    U = 10
    for i in range(5):
        a(f'v_dot2_f32_bf16 v20, v{XR + i}, {sC}, {"v20" if i else 0}')
    for i in range(5):
        a(f'v_lshlrev_b32 v{U + 2 * i}, 16, v{XR + i}\nv_and_b32 v{U + 2 * i + 1}, {sHI}, v{XR + i}')
    allreduce('v_add_f32', 'v20', 'v21')
    a(f'v_mul_f32 v20, {f2u(1 / 640)}, v20')
    for i in range(5):
        a(f'v_pk_add_f32 v[{U + 2 * i}:{U + 2 * i + 1}], v[{U + 2 * i}:{U + 2 * i + 1}], v[20:21] op_sel_hi:[1,0] neg_lo:[0,1] neg_hi:[0,1]')
    for i in range(5):
        d = f'v[{U + 2 * i}:{U + 2 * i + 1}]'
        a(f'v_pk_mul_f32 v[22:23], {d}, {d}' if i == 0 else f'v_pk_fma_f32 v[22:23], {d}, {d}, v[22:23]')
    a('v_add_f32 v22, v22, v23')
    a('v_cvt_pk_bf16_f32 v20, 0, v20')
    allreduce('v_add_f32', 'v22', 'v23')
    a(f'v_mul_f32 v22, {f2u(1 / 640)}, v22\nv_cvt_pk_bf16_f32 v22, 0, v22')
    a(f'v_add_f32 v22, {f2u(1e-5)}, v22\nv_cvt_pk_bf16_f32 v22, 0, v22')
    a('v_sqrt_f32 v22, v22\nv_cvt_pk_bf16_f32 v22, 0, v22\nv_rcp_f32 v22, v22')
    a = a_main
    sl = list(st.l)
    per = (len(sl) + 19) // 20
    D0, D1 = 248, 252
    a('s_waitcnt lgkmcnt(10)')
    for s_ in range(20):
        for x in sl[s_ * per:(s_ + 1) * per]:
            a(x)
        a(f's_waitcnt lgkmcnt({9 if s_ < 10 else 19 - s_})')
        d = f'v[{D0 + 4 * (s_ % 2)}:{D0 + 3 + 4 * (s_ % 2)}]'
        a(f'v_mfma_f32_16x16x32_bf16 {d}, v[{24 + 4 * s_}:{27 + 4 * s_}], v[{144 + 4 * s_}:{147 + 4 * s_}], {d if s_ >= 2 else 0}')
        if s_ < 10:
            a(f'ds_read_b128 v[{64 + 4 * s_}:{67 + 4 * s_}], v6 offset:{(s_ + 10) * 64}')
    c2 = -2.0 * 0.7978845608028654 * 1.4426950408889634
    pub_exec(RC4, sOUTA, 4 * APB)
    a(f'v_fma_f32 v10, -v20, v{CS}, v{D0}\nv_add_f32 v10, v10, v{D1}\nv_mul_f32 v10, v22, v10')
    a(f'v_cvt_pk_bf16_f32 v10, 0, v10\nv_add_f32 v10, v10, v{B1R}\nv_cvt_pk_bf16_f32 v10, 0, v10')
    a(f'v_mul_f32 v11, v10, v10\nv_fmaak_f32 v11, v246, v11, {f2u(c2)}\nv_mul_f32 v11, v11, v10')
    a('v_exp_f32 v11, v11\nv_add_f32 v11, 1.0, v11\nv_rcp_f32 v11, v11\nv_mul_f32 v10, v10, v11')
    a('v_cvt_pk_bf16_f32 v10, 0, v10\nv_or_b32 v10, v245, v10')
    pub_store(RC4, 'v10', 'v8', sOUTA, 'L_s4p')
    bstamp(4)
    batch_end('L_s4b', [(sIN, copy_off(RC2, 4 * HPB, HPB)), (sOUTA, APB), (sXO, 1280), ('v2', 1536), ('v5', 1536), ('v6', 1536)])

    a('L_s5:')
    a(f's_sub_u32 {sA}, {sA}, 13\ns_lshl_b32 {sB}, {sJ}, 1\ns_cmp_lt_u32 {sA}, 2\ns_cbranch_scc1 L_s5a')
    a(f's_sub_u32 {sA}, {sA}, 2\ns_and_b32 {sD}, {sA}, -5\ns_and_b32 {sB}, {sJ}, -3\ns_or_b32 {sB}, {sB}, {sD}\ns_cbranch_scc1 L_idle')
    a(f's_lshr_b32 {sA}, {sA}, 2\ns_add_u32 {sB}, {sJ}, 16')
    a('L_s5a:')
    a(f's_mov_b32 {sROLE}, 2\ns_add_u32 {sA}, {sA}, {sB}')
    a(f's_lshl_b32 {sXO}, {sA}, 6\ns_lshl_b32 {sIN}, {sA}, 7\ns_add_u32 {sIN}, {sIN}, {HP}')
    a(f's_mul_i32 {sACT}, {sWAVE}, 1536\ns_add_u32 {sACT}, {sACT}, {AP}')
    a('v_lshrrev_b32 v2, 2, v0\nv_mul_u32_u24 v2, 1280, v2\nv_lshl_add_u32 v2, v7, 4, v2')
    a(f's_mul_i32 {sB}, {sWAVE}, {384 * 1280}\ns_add_u32 {sB}, {sB}, {sXO}')
    a('v_lshlrev_b32 v10, 9, v5\nv_lshl_add_u32 v10, v6, 6, v10\nv_lshl_add_u32 v10, v7, 3, v10')
    a(f'v_add_u32 v12, {sC}, v10')
    dma_loop('L_dw2', SW2, 24, 16 * 1280)
    a('v_lshrrev_b32 v1, 3, v0\nv_mul_u32_u24 v1, 2560, v1\nv_and_b32 v10, 7, v0\nv_lshl_add_u32 v1, v10, 4, v1')
    a('v_lshlrev_b32 v7, 3, v10\nv_lshl_add_u32 v7, v5, 1, v7')
    a(f'buffer_load_dword v67, v63, {SB2}, {sXO} offen')
    a('v_and_b32 v2, 15, v0\nv_min_u32 v2, 11, v2\nv_lshl_add_u32 v2, v2, 2, v5\nv_lshlrev_b32 v2, 5, v2')
    a(f's_lshl_b32 {sA}, {sWAVE}, 7\ns_add_u32 {sA}, {sA}, {L_ACT}')
    a(f'v_add_u32 v5, {sA}, v63')
    a(f'v_lshlrev_b32 v6, 1, v63\nv_add_u32 v6, {L_ACT}, v6')
    a(f'v_lshlrev_b32 v62, 1, v7\nv_add_u32 v62, {L_ACT + 4096}, v62\nv_add_u32 v61, 4096, v6')
    a(f'v_mov_b32 v8, 0xffff\ns_mov_b32 {sC}, 0x07060302')
    a('s_waitcnt vmcnt(0)')
    tr_reads([(128 + 8 * s_ + 4 * T + 2 * q, 'v12', s_ * 2048 + q * 256 + T * 32) for s_ in range(12) for T in range(2) for q in range(2)])
    a(f'v_lshlrev_b32 v66, 16, v67\nv_and_b32 v67, {sHI}, v67')
    stamp(5)

    def red_rows(b):
        a(f'v_permlane16_swap_b32 v{b}, v{b + 1}\nv_permlane16_swap_b32 v{b + 2}, v{b + 3}')
        a(f'v_add_f32 v{b}, v{b}, v{b + 1}\nv_add_f32 v{b + 2}, v{b + 2}, v{b + 3}')
        a(f'v_permlane32_swap_b32 v{b}, v{b + 2}')
        a(f'v_add_f32 v{b}, v{b}, v{b + 2}')
        a(f'v_add_f32_dpp v{b}, v{b}, v{b} row_ror:8 {DPPM}')

    batch_top('L_s5b')
    wait_flush('L_s5w', [('v2', 5, 32 * APB), ('v1', 2, 32 * HPB)])
    a(f's_cmp_lg_u32 {sWAVE}, 0\ns_cbranch_scc1 L_h5w')
    a(f'buffer_load_ushort v64, v7, {SX}, {sXO} offen')
    if hsl:
        a(f's_cmp_lg_u32 {sBAT}, 0\ns_cbranch_scc1 L_h5')
        for i in range(hsl):
            a('s_sleep 127')
    a('L_h5:')
    a(f'buffer_load_dwordx4 v[20:23], v1, {SWS}, {sIN} offen sc1 {pnt}')
    a('s_waitcnt vmcnt(0)')
    check(20, 4, 'v10', 'L_h5', 'L_h5d')
    lds_inc('v3', F_H, 'v4')
    bstamp(3)
    red_rows(20)
    a('v_lshlrev_b32 v64, 16, v64\nv_cvt_pk_bf16_f32 v20, 0, v20\nv_add_f32 v64, v64, v20\nv_cvt_pk_bf16_f32 v64, 0, v64')
    a('ds_write_b32 v62, v64\nds_read_b64 v[64:65], v61')
    lds_wait('L_h5w', 'v10', 'v3', F_H, 1, FSLP)
    if YS3:
        a(f's_sleep {YS3}')
    if mk & 4:
        gather('L_y5', [(f'buffer_load_dwordx4 v[{32 + 4 * i}:{35 + 4 * i}], v2, {SWS}, {sACT} offen offset:{16 * i} sc1', range(32 + 4 * i, 36 + 4 * i)) for i in range(2)], [sT[0], sT[2]], 'v8', D5, G5)
        for k in range(4):
            a(f'v_perm_b32 v{28 + k}, v{33 + 2 * k}, v{32 + 2 * k}, {sC}')
    else:
        a('L_y5:')
        a(f'buffer_load_dwordx4 v[20:23], v2, {SWS}, {sACT} offen sc1 {pnt}')
        a(f'buffer_load_dwordx4 v[24:27], v2, {SWS}, {sACT} offen offset:16 sc1 {pnt}')
        a('s_waitcnt vmcnt(0)')
        for k in range(4):
            a(f'v_perm_b32 v{28 + k}, v{21 + 2 * k}, v{20 + 2 * k}, {sC}')
        check(20, 8, 'v10', 'L_y5', 'L_y5d', tags=[sT[0], sT[2]], mask='v8')
    bstamp(4)

    def bc(s_):
        for k in range(4):
            a(f'v_mov_b32_dpp v{68 + 4 * s_ + k}, v{28 + k} row_newbcast:{s_} {DPPM}')
    bc(0)
    for s_ in range(12):
        if s_ < 11:
            bc(s_ + 1)
        for T in range(2):
            d = f'v[{12 + 4 * T}:{15 + 4 * T}]'
            w = 128 + 8 * s_ + 4 * T
            a(f'v_mfma_f32_16x16x32_bf16 {d}, v[{68 + 4 * s_}:{71 + 4 * s_}], v[{w}:{w + 3}], {d if s_ else 0}')
    a('s_mov_b64 exec, 0xffff')
    a('ds_write2_b32 v5, v12, v16 offset0:0 offset1:16')
    lds_inc('v3', F_ST, 'v4')
    a(f's_cmp_lg_u32 {sWAVE}, 0\ns_cbranch_scc1 L_s5e')
    lds_wait('L_s5s', 'v10', 'v3', F_ST, 4, 0)
    a('s_mov_b64 exec, 0xffff')
    a('ds_read2_b64 v[20:23], v6 offset0:0 offset1:16\nds_read2_b64 v[24:27], v6 offset0:32 offset1:48')
    a('s_waitcnt lgkmcnt(1)\nv_pk_add_f32 v[20:21], v[20:21], v[22:23]')
    a('s_waitcnt lgkmcnt(0)\nv_pk_add_f32 v[24:25], v[24:25], v[26:27]\nv_pk_add_f32 v[20:21], v[20:21], v[24:25]')
    a('v_cvt_pk_bf16_f32 v20, 0, v20\nv_cvt_pk_bf16_f32 v21, 0, v21\nv_pk_add_f32 v[20:21], v[20:21], v[66:67]')
    a('v_cvt_pk_bf16_f32 v20, 0, v20\nv_cvt_pk_bf16_f32 v21, 0, v21\nv_pk_add_f32 v[20:21], v[20:21], v[64:65]')
    a('v_cvt_pk_bf16_f32 v20, v20, v21')
    a(f'buffer_store_dword v20, v63, {SOUT}, {sXO} offen {OUM}')
    if dbt:
        a(f's_cmp_lg_u32 {sBAT}, 3\ns_cbranch_scc1 L_s5e')
        dstamp(10)
        a('s_mov_b64 exec, 1\nv_mov_b32 v254, s62\nv_sub_u32 v254, 0, v254')
        a(f'buffer_atomic_umax v254, v255, {SDBG}, 0 offen offset:16 sc1')
    a('L_s5e:')
    batch_end('L_s5b', [(sIN, copy_off(RC2, 4 * HPB, HPB)), (sACT, copy_off(RC4, 4 * APB, APB)), (sXO, 1280), ('v5', 512), ('v6', 512)])

    a('L_idle:')
    a(f's_mov_b32 {sROLE}, 3')
    a(f's_cmp_lg_u32 {sWAVE}, 3\ns_cbranch_scc1 L_fin')
    a('L_pre:')
    if exp & 4:
        a('s_branch L_fin')
    a(f's_mov_b32 {sBAT}, 0\ns_mov_b32 {sPH}, 1')
    lds_wait('L_pre1', 'v10', 'v3', F_FL + 4, 4, 16)
    a(f's_cmp_lg_u32 {sWAVE}, 3\ns_cbranch_scc1 L_pre4')
    a('L_pre3:')
    s1_setup(sPH)
    a('s_branch L_s1')
    a('L_pre4:')
    a(f's_bitcmp1_b32 {early}, {sROLE}\ns_cbranch_scc1 L_disp')
    a('L_pre2:')
    a(f'v_mov_b32 v11, {L_FLAG}\ns_mov_b32 {sPH}, 2')
    lds_wait('L_pre5', 'v10', 'v11', F_FL + 8, 4, 16)
    a(f's_cmp_eq_u32 {sWAVE}, 3\ns_cbranch_scc1 L_pre3')
    a('L_disp:')
    for k, lab in enumerate(('L_s2bc', 'L_s4bc', 'L_s5bc')):
        a(f's_cmp_eq_u32 {sROLE}, {k}\ns_cbranch_scc1 {lab}')
    a('s_branch L_fin')

    Q, ACC, AD, S, P, TM, RING, EXT0, EXT1, AD2 = 8, 20, 44, 52, 56, 64, 68, 116, 164, 212
    vMC, vL = 'v6', 'v7'
    s = [f'v{S + t}' for t in range(4)]
    t0, t1, t2, t3 = [f'v{TM + i}' for i in range(4)]

    def ld_tile(t, srd, soff, base=RING):
        for i in range(3):
            r = base + t * 12 + i * 4
            a(f'buffer_load_dwordx4 v[{r}:{r + 3}], v{1 + t // 2}, {srd}, {soff} offen offset:{(t % 2) * 3072 + i * 128} {pol}')

    def reset_state():
        for i in range(24):
            a(f'v_mov_b32 v{ACC + i}, 0')
        a(f'v_mov_b32 {vL}, 0\nv_mov_b32 {vMC}, 0xff7fffff')

    def load_q():
        for i in range(3):
            a(f'ds_read_b128 v[{Q + 4 * i}:{Q + 4 * i + 3}], v5 offset:{i * 128}')

    def kdot(t, base, ad):
        for k in range(12):
            acc = f'v{ad + 2 * t + k % 2}'
            a(f'v_dot2_f32_bf16 {acc}, v{base + t * 12 + k}, v{Q + k}, {acc if k >= 2 else 0}')

    def vdot(t, base):
        for k in range(12):
            for hl in range(2):
                a(f'v_dot2c_f32_bf16 v{ACC + (k // 4) * 8 + (k % 4) * 2 + hl}, v{base + t * 12 + k}, v{P + 2 * t + hl}')

    def softmax4(ad):
        for t in range(4):
            a(f'v_add_f32 {s[t]}, v{ad + 2 * t}, v{ad + 2 * t + 1}')
        for mode in ('quad_perm:[1,0,3,2]', 'quad_perm:[2,3,0,1]', 'row_half_mirror'):
            for t in range(4):
                a(f'v_add_f32_dpp {s[t]}, {s[t]}, {s[t]} {mode} {DPPM}')
        for rnd in range(2):
            a(f'v_cvt_pk_bf16_f32 {t0}, {s[0]}, {s[1]}\nv_cvt_pk_bf16_f32 {t1}, {s[2]}, {s[3]}')
            a(f'v_lshlrev_b32 {s[0]}, 16, {t0}\nv_and_b32 {s[1]}, {sHI}, {t0}')
            a(f'v_lshlrev_b32 {s[2]}, 16, {t1}\nv_and_b32 {s[3]}, {sHI}, {t1}')
            if rnd == 0:
                for t in range(4):
                    a(f'v_mul_f32 {s[t]}, {f2u(192 ** -0.5)}, {s[t]}')
        a(f'v_max3_f32 {t0}, {s[0]}, {s[1]}, {s[2]}\nv_max_f32 {t0}, {t0}, {s[3]}')
        a(f'v_mul_f32 {t0}, {sLOG2E}, {t0}\nv_max_f32 {t0}, {t0}, {vMC}')
        a(f'v_sub_f32 {t2}, {vMC}, {t0}\nv_mov_b32 {vMC}, {t0}')
        for t in range(4):
            a(f'v_fma_f32 {s[t]}, {s[t]}, {sLOG2E}, -{t0}')
        a(f'v_exp_f32 {t2}, {t2}')
        for t in range(4):
            a(f'v_exp_f32 {s[t]}, {s[t]}')
        for i in range(12):
            a(f'v_pk_mul_f32 v[{ACC + 2 * i}:{ACC + 2 * i + 1}], v[{ACC + 2 * i}:{ACC + 2 * i + 1}], v[{TM + 2}:{TM + 3}] op_sel_hi:[1,0]')
        for t in range(4):
            a(f'v_cvt_pk_bf16_f32 v{P + 2 * t}, {s[t]}, 0')
        for t in range(4):
            a(f'v_lshlrev_b32 v{P + 2 * t + 1}, 16, v{P + 2 * t}')
        a(f'v_fma_f32 {vL}, {vL}, {t2}, v{P + 1}')
        a(f'v_add_f32 {t0}, v{P + 3}, v{P + 5}\nv_add_f32 {vL}, {vL}, v{P + 7}\nv_add_f32 {vL}, {vL}, {t0}')

    def ld_one(slot, srd, soff):
        for i in range(3):
            r = RING + slot * 12 + i * 4
            a(f'buffer_load_dwordx4 v[{r}:{r + 3}], v1, {srd}, {soff} offen offset:{i * 128} {pol}')

    def claim(v, off):
        a(f'v_mov_b32 {v}, 1\ns_mov_b64 exec, 1')
        a(f'buffer_atomic_add {v}, v3, {SWS}, 0 offen offset:{off} sc0 sc1')
        a('s_mov_b64 exec, -1')

    def softmax1(t):
        x = s[0]
        a(f'v_add_f32 {x}, v{AD + 2 * t}, v{AD + 2 * t + 1}')
        for mode in ('quad_perm:[1,0,3,2]', 'quad_perm:[2,3,0,1]', 'row_half_mirror'):
            a(f'v_add_f32_dpp {x}, {x}, {x} {mode} {DPPM}')
        a(f'v_cvt_pk_bf16_f32 {x}, 0, {x}\nv_mul_f32 {x}, {f2u(192 ** -0.5)}, {x}\nv_cvt_pk_bf16_f32 {x}, 0, {x}')
        a(f'v_mul_f32 {t0}, {sLOG2E}, {x}\nv_max_f32 {t0}, {t0}, {vMC}')
        a(f'v_sub_f32 {t2}, {vMC}, {t0}\nv_mov_b32 {vMC}, {t0}')
        a(f'v_fma_f32 {x}, {x}, {sLOG2E}, -{t0}')
        a(f'v_exp_f32 {t2}, {t2}\nv_exp_f32 {x}, {x}')
        for i in range(12):
            a(f'v_pk_mul_f32 v[{ACC + 2 * i}:{ACC + 2 * i + 1}], v[{ACC + 2 * i}:{ACC + 2 * i + 1}], v[{TM + 2}:{TM + 3}] op_sel_hi:[1,0]')
        p = P + 2 * (t + 1)
        a(f'v_cvt_pk_bf16_f32 v{p}, {x}, 0\nv_cvt_pk_bf16_f32 v{p + 1}, 0, {x}')
        a(f'v_fma_f32 {vL}, {vL}, {t2}, v{p + 1}')

    assert SMALL % 4 == 0
    NBIG = 1024 - 8 - SMALL // 4
    assert 16 <= NSTAT and NSTAT * 32 <= NBIG
    vCA, vCB, vFL, vB, vT, vE, vE2, vONE = 'v220', 'v221', 'v222', 'v223', 'v224', 'v225', 'v226', 'v227'
    sTA, sTB, sLD, sROT = 's76', 's77', 's78', 's79'

    def item_addr(dst, sid, snb):
        a(f's_lshr_b32 {snb}, {sid}, 8\ns_add_u32 {sid}, {sid}, {sROT}')
        if RB:
            a(f's_mul_i32 {sB}, {snb}, {RB}\ns_add_u32 {sid}, {sid}, {sB}')
        a(f's_and_b32 {sid}, {sid}, 255\ns_mul_i32 {sid}, {sid}, {ITEM}\ns_mul_i32 {sB}, {snb}, {BSTR}')
        a(f's_add_u32 {dst}, {sHB}, {sid}\ns_add_u32 {dst}, {dst}, {sB}')


    def draw(off, n=vONE):
        a(f's_mov_b64 exec, 1\nds_add_rtn_u32 {vT}, {vB}, {n} offset:{off}\ns_mov_b64 exec, -1')

    def publish(v, add):
        a(f's_mov_b64 exec, 1\nv_lshlrev_b32 {v}, 2, {v}\nv_add_u32 {v}, {add}, {v}\nds_write_b32 {vE}, {v}\ns_mov_b64 exec, -1')

    spins = []

    def resolve(lab, st):
        a(f's_cmp_eq_u32 {sA}, 0\ns_cbranch_scc1 {lab}')
        a(f'{lab}r:')
        a(f's_and_b32 {sB}, {st}, 3\ns_add_u32 {sA}, {sA}, {sB}\ns_sub_u32 {sA}, {sA}, 1')
        spins.append(lab)

    a('L_stream:')
    a('v_lshrrev_b32 v1, 3, v0\nv_mul_u32_u24 v1, 384, v1\nv_and_b32 v5, 7, v0\nv_lshlrev_b32 v5, 4, v5\nv_add_u32 v1, v1, v5')
    a('v_add_u32 v2, 6144, v1')
    a(f's_sub_u32 {sA}, {sWAVE}, 4')
    a(f's_mul_i32 {sHB}, {sH}, {PROB}')
    a(f's_lshl_b32 {sC}, {sJ}, 2\ns_add_u32 {sC}, {sC}, {sA}\nv_mov_b32 v4, 0\ns_mul_i32 {sROT}, {sH}, {RH}')
    a(f's_lshr_b32 {sD}, {sJ}, 2\ns_mul_i32 {sD}, {sD}, 240\ns_add_u32 {sD}, {sD}, {sC}\ns_add_u32 {sST}, {sD}, 16')
    item_addr(sNEXT, sD, sCB)
    item_addr(sCUR, sST, sCB)
    a(f's_mov_b32 {sSB}, {sC}')
    a(f's_mul_i32 {sC}, {sH}, {CTS}\ns_add_u32 {sC}, {sC}, {CT}\nv_mov_b32 v3, {sC}')
    a(f's_mul_i32 {sB}, {sCB}, 384\ns_add_u32 {sB}, {sB}, {L_Q}')
    a(f'v_add_u32 v5, {sB}, v5\nv_mov_b32 {vFL}, {L_FLAG + 4}\nv_mov_b32 {vB}, {L_FLAG}\nv_mov_b32 {vONE}, 1')
    a(f's_mul_i32 {sPB}, {sA}, {4 * PARTP}\ns_add_u32 {sPB}, {sPB}, {L_PART + PARTP}')
    a(f's_mov_b32 {sMODE}, 2')
    a('s_waitcnt lgkmcnt(0)')
    for t in range(5):
        if t == PRE:
            a('s_barrier')
            if PSL:
                a(f's_sleep {PSL}')
        if t < 4:
            if 3 * t > PWIN:
                a(f's_waitcnt vmcnt({PWIN})')
            ld_tile(t, SK, sNEXT, EXT0)
    reset_state()
    for t in range(4):
        a(f's_waitcnt vmcnt({PWIN})')
        ld_tile(t, SV, sNEXT, EXT1)
    for t in range(4):
        a(f's_waitcnt vmcnt({PWIN})')
        ld_tile(t, SK, sCUR)
    stamp(3)
    if not noq:
        lds_wait('L_wqs', t0, vB, F_Q, 3, 1)
    stamp(1)
    load_q()
    get_nonce('L_nps', t0)

    def take_ticket():
        a(f's_waitcnt lgkmcnt(0)\nv_readfirstlane_b32 {sST}, {vT}')
        a(f'v_and_b32 {vE}, -4, {vT}\nv_add_u32 {vE}, {L_TAB + 12}, {vE}')

    def step(n, comp, issue):
        if ISS[n] == 'b':
            issue()
        comp()
        if ISS[n] == 'a':
            issue()

    for t in range(4):
        a('s_waitcnt vmcnt(9)')
        kdot(t, RING, AD)
        ld_tile(t, SV, sCUR)
    a(f's_mov_b32 {sLD}, 1\ns_mov_b32 {sST}, {sWAVE}\nv_mov_b32 {vE}, {L_TAB + 8}')
    for t in range(4):
        kdot(t, EXT0, AD2)
    softmax4(AD2)
    for t in range(4):
        vdot(t, EXT1)
    stamp(4)
    a('s_branch L_mid')

    a('L_item:')
    for t in range(4):
        if t == 2:
            draw(F_T1)
        if t == 3:
            a(f's_waitcnt vmcnt(4)\ns_cmp_eq_u32 {sLD}, 0\ns_cbranch_scc1 L_k3')
        a('s_waitcnt vmcnt(3)')
        if t == 3:
            a('L_k3:')

        def issue():
            if t == 2:
                take_ticket()
                a(f's_and_b32 {sLD}, {sST}, 3\ns_cmp_lt_u32 {sST}, {NSTAT * 4 - 12}\ns_cselect_b32 {sLD}, 1, {sLD}')
                a(f's_cmp_lg_u32 {sLD}, 0\ns_cbranch_scc1 L_noclaim')
                claim('v4', 0)
                a('L_noclaim:')
            ld_tile((t + 2) % 4, SK if t < 2 else SV, sCUR)
        step(t, lambda: kdot(t, RING, AD), issue)
    if PS:
        ld_tile(2, SV, sCUR)
    a('L_mid:')
    softmax4(AD)
    for t in range(4):
        a(f's_waitcnt vmcnt({6 if PS and t == 0 else 3})')
        if t == 0:
            a(f's_cmp_lg_u32 {sLD}, 0\ns_cbranch_scc1 L_nopub')
            publish('v4', NSTAT * 32 + 1)
            a('L_nopub:')
        if t == 2:
            a(f's_mov_b64 exec, 1\nds_read_b32 {vE2}, {vE}\ns_mov_b64 exec, -1')

        def issue():
            if t < 2:
                if not (PS and t == 0):
                    a(f's_cmp_eq_u32 {sMODE}, 2\ns_cbranch_scc1 L_v{t}')
                    ld_tile(t + 2, SV, sCUR)
                    a(f'L_v{t}:')
                return
            if t == 2:
                a(f's_waitcnt lgkmcnt(0)\nv_readfirstlane_b32 {sA}, {vE2}\ns_mov_b32 {sMODE}, 0\ns_nop 0')
                resolve('L_sp0', sST)
                a(f's_cmp_ge_u32 {sA}, {NBIG}\ns_cbranch_scc1 L_trans')
                item_addr(sCUR, sA, sNB)
            ld_tile(t - 2, SK, sCUR)
        step(4 + t, lambda: vdot(t, RING), issue)
    a(f's_cmp_eq_u32 {sNB}, {sCB}\ns_cbranch_scc1 L_item')

    a('L_flush:')
    M, LL = f'v{TM}', f'v{TM + 1}'
    a(f'v_mov_b32 {M}, {vMC}')
    allreduce('v_max_f32', M, t3, low=False)
    a(f'v_sub_f32 {t2}, {vMC}, {M}\nv_exp_f32 {t2}, {t2}')
    a(f'v_and_b32 v{S}, 7, v0\nv_lshlrev_b32 v{S}, 5, v{S}\nv_lshrrev_b32 v{S + 1}, 4, v0\nv_lshl_add_u32 v{S}, v{S + 1}, 3, v{S}')
    a(f'v_add_u32 v{S}, {sPB}, v{S}\nv_mov_b32 v{S + 1}, {sPB}')
    a(f'v_mul_f32 {LL}, {vL}, {t2}')
    for i in range(12):
        a(f'v_pk_mul_f32 v[{ACC + 2 * i}:{ACC + 2 * i + 1}], v[{ACC + 2 * i}:{ACC + 2 * i + 1}], v[{TM + 2}:{TM + 3}] op_sel_hi:[1,0]')
    allreduce('v_add_f32', LL, t3, low=False)
    for sw, es, dl in (('v_permlane16_swap_b32', (0, 1, 4, 5), 2), ('v_permlane32_swap_b32', (0, 1), 4)):
        for i in range(3):
            for e in es:
                a(f'{sw} v{ACC + 8 * i + e}, v{ACC + 8 * i + e + dl}')
        for i in range(3):
            for e in es:
                a(f'v_add_f32 v{ACC + 8 * i + e}, v{ACC + 8 * i + e}, v{ACC + 8 * i + e + dl}')
    for i in range(3):
        for e in (0, 1):
            r = f'v{ACC + 8 * i + e}'
            a(f'v_add_f32_dpp {r}, {r}, {r} row_ror:8 {DPPM}')
    a(f'v_mov_b32 {t2}, 1')
    for i in range(3):
        a(f'ds_write_b64 v{S}, v[{ACC + 8 * i}:{ACC + 8 * i + 1}] offset:{i * 256}')
    a('s_mov_b64 exec, 1')
    a(f'ds_write_b64 v{S + 1}, v[{TM}:{TM + 1}] offset:768')
    a(f'ds_add_rtn_u32 {t2}, {vFL}, {t2} offset:{F_FL}')
    a('s_mov_b64 exec, -1')
    a(f's_cmp_lg_u32 {sCB}, 3\ns_cbranch_scc1 L_nos1')
    s1_setup(sCB)
    a('s_waitcnt lgkmcnt(0)')
    stamp(2)
    a(f'v_readfirstlane_b32 {sA}, {t2}')
    a('s_nop 1')
    a(f's_cmp_lg_u32 {sA}, 3\ns_cbranch_scc1 L_fin')
    a('L_s1:')
    for w in range(4):
        a(f'ds_read_b64 v[{10 + 2 * w}:{11 + 2 * w}], v53 offset:{w * 4 * PARTP + 768}')
    for w in range(4):
        a(f'ds_read_b128 v[{20 + 4 * w}:{23 + 4 * w}], v52 offset:{w * 4 * PARTP}')
        a(f'ds_read_b64 v[{36 + 2 * w}:{37 + 2 * w}], v51 offset:{w * 4 * PARTP + 512}')
    a('s_waitcnt lgkmcnt(8)')
    a('v_max3_f32 v18, v10, v12, v14\nv_max_f32 v18, v18, v16')
    for w in range(4):
        a(f'v_sub_f32 v{10 + 2 * w}, v{10 + 2 * w}, v18')
    for w in range(4):
        a(f'v_exp_f32 v{10 + 2 * w}, v{10 + 2 * w}')
    a('v_mul_f32 v19, v10, v11')
    for w in range(1, 4):
        a(f'v_fmac_f32 v19, v{10 + 2 * w}, v{11 + 2 * w}')
    a(f'v_max_f32 v19, {f2u(1e-30)}, v19\nv_rcp_f32 v44, v19\nv_log_f32 v19, v19')
    for w in range(4):
        a(f's_waitcnt lgkmcnt({6 - 2 * w})')
        for d, x in ((20, 20 + 4 * w), (22, 22 + 4 * w), (36, 36 + 2 * w)):
            d, x, e = f'v[{d}:{d + 1}]', f'v[{x}:{x + 1}]', f'v[{10 + 2 * w}:{11 + 2 * w}]'
            a(f'v_pk_fma_f32 {d}, {x}, {e}, {d} op_sel_hi:[1,0,1]' if w else f'v_pk_mul_f32 {d}, {x}, {e} op_sel_hi:[1,0]')
    a('v_add_f32 v18, v18, v19')
    for d in (20, 22, 36):
        a(f'v_pk_mul_f32 v[{d}:{d + 1}], v[{d}:{d + 1}], v[44:45] op_sel_hi:[1,0]')
    a('v_lshlrev_b32 v18, v50, v18\nv_bfi_b32 v59, v55, v49, v18')
    a('v_cvt_pk_bf16_f32 v56, v20, v21\nv_cvt_pk_bf16_f32 v57, v22, v23\nv_cvt_pk_bf16_f32 v58, v36, v37')
    a('s_mov_b32 exec_hi, 0')
    a(f'buffer_store_dwordx4 v[56:59], v54, {SWS}, {sB} offen {STM}')
    a('s_mov_b32 exec_hi, -1')
    if diag:
        a(f's_cmp_lt_u32 {sWAVE}, 4\ns_cbranch_scc1 L_s1x')
        stamp(5)
        a('L_s1x:')
    a(f's_cmp_ge_u32 {sWAVE}, 4\ns_cbranch_scc1 L_fin')
    a(f's_cmp_eq_u32 {sPH}, 1\ns_cbranch_scc1 L_pre4')
    a('s_branch L_disp')
    a('L_nos1:')
    a(f's_cmp_eq_u32 {sCB}, 0\ns_cselect_b32 {sA}, 2, 1\ns_add_u32 {sCB}, {sCB}, {sA}\ns_mul_i32 {sA}, {sA}, 384')
    a('s_waitcnt lgkmcnt(0)')
    if pst:
        for b, k in ((2, 3), (3, 4)):
            a(f's_cmp_lg_u32 {sCB}, {b}\ns_cbranch_scc1 L_st{k}')
            stamp(k)
            a(f'L_st{k}:')
    a(f's_add_u32 {sPB}, {sPB}, {PARTP}')
    a(f'v_add_u32 v5, {sA}, v5\nv_add_u32 {vFL}, 4, {vFL}')
    reset_state()
    a(f's_cmp_lt_u32 {sCB}, {sNB}\ns_cbranch_scc1 L_flush')
    load_q()
    a('s_waitcnt lgkmcnt(0)')
    a(f's_cmp_eq_u32 {sMODE}, 0\ns_cbranch_scc1 L_item')
    a('s_branch L_small')

    def small_claim(lab):
        a(f's_waitcnt lgkmcnt(0)\nv_readfirstlane_b32 {sTA}, {vT}\ns_nop 1')
        a(f's_and_b32 {sA}, {sTA}, 3\ns_cbranch_scc1 {lab}')
        claim(vCA, 128)
        a(f's_waitcnt vmcnt(4)\ns_branch {lab}d')
        a(f'{lab}:')
        a('s_waitcnt vmcnt(3)')
        a(f'{lab}d:')

    a('L_trans:')
    draw(F_T2)
    a(f's_add_u32 {sROT}, {sROT}, {NBIG - 768 + 3 * RB}\ns_lshl_b32 {sROT}, {sROT}, 2')
    a(f's_add_u32 {sA}, {sSB}, {sROT}\ns_and_b32 {sA}, {sA}, 1023\ns_mul_i32 {sA}, {sA}, 3072')
    a(f's_add_u32 {sSB}, {sHB}, {3 * BSTR}\ns_add_u32 {sROT}, {sROT}, 32')
    a(f's_add_u32 {sCUR}, {sSB}, {sA}')
    a(f's_mov_b32 {sMODE}, 1\ns_mov_b32 {sNB}, 3')
    ld_one(0, SK, sCUR)
    if ISS[6] == 'b':
        vdot(2, RING)
    small_claim('L_tr')
    step(7, lambda: vdot(3, RING), lambda: ld_one(1, SV, sCUR))
    stamp(6)
    a(f's_cmp_lg_u32 {sCB}, 3\ns_cbranch_scc1 L_flush')
    a('L_small:')
    a(f's_and_b32 {sA}, {sTA}, -4\ns_add_u32 {sA}, {sA}, {L_TAB2}\nv_mov_b32 {vE}, {sA}')
    a('s_waitcnt vmcnt(3)')
    a(f's_and_b32 {sA}, {sTA}, 3\ns_cbranch_scc1 L_npx')
    publish(vCA, 1)
    a('L_npx:')
    a(f'ds_read_b32 {vE2}, {vE}')
    kdot(0, RING, AD)
    a(f's_waitcnt lgkmcnt(0)\nv_readfirstlane_b32 {sA}, {vE2}\ns_nop 1')
    resolve('L_sq', sTA)
    a(f's_cmp_ge_u32 {sA}, {SMALL}\ns_cbranch_scc1 L_last')
    draw(F_T2)
    a(f's_add_u32 {sB}, {sA}, {sROT}\ns_and_b32 {sB}, {sB}, 1023\ns_mul_i32 {sB}, {sB}, 3072\ns_add_u32 {sCUR}, {sB}, {sSB}')
    ld_one(0, SK, sCUR)
    softmax1(0)
    small_claim('L_nc')
    vdot(1, RING)
    ld_one(1, SV, sCUR)
    a('s_branch L_small')
    a('L_last:')
    softmax1(0)
    a('s_waitcnt vmcnt(0)')
    vdot(1, RING)
    a('s_branch L_flush')
    for lab in spins:
        a(f'{lab}:')
        a(f's_mov_b64 exec, 1\nds_read_b32 {vE2}, {vE}\ns_mov_b64 exec, -1')
        a(f's_waitcnt lgkmcnt(0)\nv_readfirstlane_b32 {sA}, {vE2}\ns_nop 1')
        a(f's_cmp_eq_u32 {sA}, 0\ns_cbranch_scc1 {lab}')
        a(f's_branch {lab}r')

    a('L_fin:')
    if diag:
        a('s_waitcnt vmcnt(0)')
        stamp(7)
        a('s_mov_b64 exec, -1')
        if lstamp:
            a(f'v_mov_b32 v3, {L_FLAG}')
            lds_wait('L_stw', 'v10', 'v3', F_FL + 12, 4, 64)
            a('s_sleep 127\ns_sleep 127')
        a('s_load_dwordx2 s[8:9], s[0:1], 96')
        a('s_getreg_b32 s62, hwreg(20, 0, 4)')
        a('s_waitcnt lgkmcnt(0)')
        a('s_add_u32 s8, s8, 0x40000000\ns_addc_u32 s9, s9, 0\ns_mov_b32 s10, 0x200000\ns_mov_b32 s11, 0x20000')
        a(f's_lshl_b32 {sA}, s2, 3\ns_add_u32 {sA}, {sA}, {sWAVE}')
        a(f's_lshl_b32 {sB}, {sA}, 5\nv_mov_b32 v1, {sB}')
        a(f's_lshl_b32 {sB}, {sA}, 6\ns_add_u32 {sB}, {sB}, 0x100000\nv_mov_b32 v2, {sB}')
        a('v_mov_b32 v4, s84\nv_mov_b32 v5, s85\nv_mov_b32 v6, s98\nv_mov_b32 v7, s99')
        a(f'v_mov_b32 v8, s62\nv_mov_b32 v9, 0\nv_mov_b32 v10, s96\nv_mov_b32 v11, s97')
        for i in range(16):
            a(f'v_mov_b32 v{12 + i}, s{84 + i}')
        a('s_mov_b64 exec, 1')
        a('buffer_store_dwordx4 v[4:7], v1, s[8:11], 0 offen')
        a('buffer_store_dwordx4 v[8:11], v1, s[8:11], 0 offen offset:16')
        for i in range(4):
            a(f'buffer_store_dwordx4 v[{12 + 4 * i}:{15 + 4 * i}], v2, s[8:11], 0 offen offset:{16 * i}')
    a('L_end:')
    a('s_endpgm')

    ref = open(f'cdna_kernels/{NAME}.s.ref').read().split('\n')
    head = [x for x in ref if x.startswith(';') and '@launch' not in x and not x.startswith('; Override') and not x.startswith('; grid=')]
    out = '\n'.join(head) + f'\n; @launch grid=(256,1,1) block=(512,1,1) lds={LDS_SZ}\n'
    out += f'.amdgcn_target "amdgcn-amd-amdhsa--gfx950"\n.text\n.globl {KERN}\n.p2align 8\n.type {KERN},@function\n'
    out += a.text() + '\n'
    out += f'''.section .rodata,"a"
.p2align 6
.amdhsa_kernel {KERN}
  .amdhsa_next_free_vgpr 256
  .amdhsa_next_free_sgpr 102
  .amdhsa_accum_offset 256
  .amdhsa_group_segment_fixed_size 0
  .amdhsa_kernarg_size 104
  .amdhsa_user_sgpr_count 2
  .amdhsa_user_sgpr_kernarg_segment_ptr 1
  .amdhsa_system_sgpr_workgroup_id_x 1
.end_amdhsa_kernel
'''
    return out


if __name__ == '__main__':
    kw = eval('dict(' + (sys.argv[2] if len(sys.argv) > 2 else '') + ')')
    open(sys.argv[1], 'w').write(gen(**kw))
```

```python
import os, sys, struct
from asmlib import Asm

NAME = 'sequential_preLN__mha_block_cached__dense_activation_gelu__decode'
KERN = NAME + '_kernel'


def f2u(x):
    return '0x%08x' % struct.unpack('<I', struct.pack('<f', x))[0]


NB_KV = 402653184
PROB = 3145728
BSTR = 100663296
ITEM = 12288
QP, OP, HP, CT, AP, WS_SZ = 0x0, 0x100000, 0x200000, 0x1C0000, 0x380000, 0x400000
HPB, APB = 20480, 6144
REG = 24576
L_Q = 98304
L_PART = 99840
PARTP = 784
L_FLAG = 112384
F_Q, F_NONCE, F_W, F_T1, F_T2, F_FL, F_ST, F_H = 0, 4, 8, 12, 16, 16, 32, 48
L_ACT = 112448
L_TAB = 118592
L_TAB2 = L_TAB + 1024
LDS_SZ = 120128
SK, SV, SWS, SDBG, SX, SWQ, SWO, SW1, SW2, SOUT, SB1, SB2 = [f's[{i}:{i+3}]' for i in range(8, 56, 4)]
SRD = {'K': (8, 8, NB_KV), 'V': (12, 16, NB_KV), 'WS': (16, 96, WS_SZ), 'DBG': (20, 88, 256), 'X': (24, 0, 5120),
       'WQ': (28, 24, 7864320), 'WO': (32, 32, 7864320), 'W1': (36, 48, 1966080), 'W2': (40, 64, 1966080),
       'OUT': (44, 80, 5120), 'B1': (48, 56, 3072), 'B2': (52, 72, 1280)}
sWAVE, sH, sJ = 's3', 's4', 's5'
sCUR, sNEXT, sHB, sCB, sNB, sPB, sMODE, sSB = 's56', 's57', 's58', 's59', 's60', 's61', 's6', 's7'
sBAT, sROLE, sIN, sOUTA, sACT, sXO = 's56', 's57', 's58', 's59', 's60', 's61'
sT = ['s64', 's65', 's66', 's67']
sSPIN, sST, sHI, sLOG2E = 's68', 's69', 's70', 's71'
sA, sB, sC, sD = 's72', 's73', 's74', 's75'
sPH = 's79'
SPIN = 1 << 14
DPPM = 'row_mask:0xf bank_mask:0xf'


def gen(diag=False, pol='nt', pst=False, PWIN=3, WWIN=1, SMALL=64, SLP=32, FSLP=2, NSTAT=24, pp2=7, pp4=4, ysl=0, hsl=0, early=1, SLP0=100, QSL=70, dbt=False, pnt='', sb=3, noq=False, WSL=0, PSL=0, RH=4, RB=0, exp=0, QS2=40, PRE=1, lstamp=True, mk=7, D4=1, G4=6, D5=1, G5=6, RC2=8, RC4=8, YS3=16, PAR=True, CTA=0x340000, CTS=4352, STM='sc1', LDM='sc1', OUM='', ISS='bbbbbbbb', PS=True, HM=5, FS=False, XC=True, PB=0, LM=True, EN=True, NWG=6, XS=True, P16=True, PO=0, QS3=0):
    CT = CTA
    a = Asm()
    nstamp = [0]

    def stamp(i):
        if diag:
            a(f's_memrealtime s[{84 + 2 * i}:{85 + 2 * i}]')

    def bstamp(i):
        if diag and sb < 3:
            nstamp[0] += 1
            a(f's_cmp_lg_u32 {sBAT}, {sb}\ns_cbranch_scc1 L_bs{nstamp[0]}')
            stamp(i)
            a(f'L_bs{nstamp[0]}:')
        else:
            stamp(i)

    def dstamp(i, op='umax'):
        if dbt:
            a('s_memrealtime s[84:85]\ns_mov_b64 s[86:87], exec\ns_mov_b64 exec, 1\ns_waitcnt lgkmcnt(0)')
            a('v_mov_b32 v254, s84\nv_mov_b32 v255, 0')
            if op == 'umin':
                a('v_sub_u32 v254, 0, v254')
            a(f'buffer_atomic_umax v254, v255, {SDBG}, 0 offen offset:{4 * i} sc1')
            a('s_mov_b64 exec, s[86:87]')

    def allreduce(op, r, t, low=True):
        if low:
            a(f'{op}_dpp {r}, {r}, {r} quad_perm:[1,0,3,2] {DPPM}')
            a(f'{op}_dpp {r}, {r}, {r} quad_perm:[2,3,0,1] {DPPM}')
            a(f'{op}_dpp {r}, {r}, {r} row_half_mirror {DPPM}')
        a(f'{op}_dpp {r}, {r}, {r} row_ror:8 {DPPM}')
        for sw in ('v_permlane16_swap_b32', 'v_permlane32_swap_b32'):
            a(f'v_mov_b32 {t}, {r}')
            a(f'{sw} {r}, {t}')
            a(f'{op} {r}, {r}, {t}')

    def rbf(r):
        a(f'v_cvt_pk_bf16_f32 {r}, {r}, {r}')
        a(f'v_and_b32 {r}, {sHI}, {r}')

    def tag(base, n, vM):
        for i in range(n):
            a(f'v_bfi_b32 v{base + i}, {vM}, {sT[i % 4]}, v{base + i}')

    def check(base, n, chk, label, done, sleep=True, tags=None, mask='v9', step=1):
        tags = tags or sT
        c2 = f'v{int(chk[1:]) + 1}'
        a(f'v_xor_b32 {chk}, {tags[0]}, v{base}\nv_xor_b32 {c2}, {tags[1 % len(tags)]}, v{base + step}')
        for i in range(2, n):
            c = chk if i % 2 == 0 else c2
            a(f'v_bitop3_b32 {c}, {c}, v{base + i * step}, {tags[i % len(tags)]} bitop3:0xf6')
        a(f'v_bitop3_b32 {chk}, {chk}, {c2}, {mask} bitop3:0xa8')
        a(f'v_cmp_ne_u32 vcc, 0, {chk}')
        a(f's_cbranch_vccz {done}')
        a(f's_sub_u32 {sSPIN}, {sSPIN}, 1')
        a(f's_cbranch_scc1 {done}')
        if sleep:
            a(f's_cmp_eq_u32 {sBAT}, 3\ns_cbranch_scc1 {label}')
            a(f's_sleep {SLP}')
            if SLP0:
                a(f's_cmp_lg_u32 {sBAT}, 0\ns_cbranch_scc1 {label}\ns_sleep {SLP0}')
        a(f's_branch {label}')
        a(f'{done}:')
        a(f's_mov_b32 {sSPIN}, {SPIN}')

    def gather(lab, loads, tags, mask, depth=1, gap=0):
        M = ['s[8:9]', 's[10:11]', 's[12:13]', 's[14:15]', 's[28:29]']
        loads = [(x.replace('sc1', LDM), r) for x, r in loads]
        n = len(loads)
        a(f'{lab}:')
        for i in range(n):
            a(f's_mov_b64 {M[i]}, -1')
        if depth > 1:
            a(f's_cmp_lg_u32 {sBAT}, 3\ns_cbranch_scc1 {lab}l')
            for d in range(depth - 1):
                for x, _ in loads:
                    a(x)
                a(f's_sleep {gap}')
        a(f'{lab}l:')
        for i, (x, _) in enumerate(loads):
            assert depth == 1
            a(f's_wqm_b64 exec, {M[i]}')
            a(x)
        a('s_mov_b64 exec, -1')
        if depth > 1:
            a(f's_waitcnt vmcnt({(depth - 1) * n})')
            a(f's_cmp_eq_u32 {sBAT}, 3\ns_cbranch_scc1 {lab}c')
        a('s_waitcnt vmcnt(0)')
        a(f'{lab}c:')
        for k in range(len(loads[0][1])):
            for i, (_, regs) in enumerate(loads):
                t = tags[k % len(tags)]
                a(f'v_bitop3_b32 v{10 + i}, v{10 + i}, v{regs[k]}, {t} bitop3:0xf6' if k else f'v_xor_b32 v{10 + i}, {t}, v{regs[0]}')
        for i in range(n):
            a(f'v_and_b32 v{10 + i}, {mask}, v{10 + i}')
        for i in range(n):
            a(f'v_cmp_ne_u32 {M[i]}, 0, v{10 + i}')
        a('s_nop 1')
        a(f's_or_b64 vcc, {M[0]}, {M[1]}')
        for i in range(2, n):
            a(f's_or_b64 vcc, vcc, {M[i]}')
        a(f's_cbranch_scc0 {lab}d')
        a(f's_sub_u32 {sSPIN}, {sSPIN}, 1\ns_cbranch_scc1 {lab}d')
        a(f's_cmp_eq_u32 {sBAT}, 3\ns_cbranch_scc1 {lab}l')
        a(f's_sleep {SLP}\ns_branch {lab}l')
        a(f'{lab}d:')
        a(f's_mov_b32 {sSPIN}, {SPIN}')

    def get_nonce(lab, t):
        a(f'{lab}:')
        a(f'v_mov_b32 {t}, {L_FLAG}')
        a(f'ds_read_b32 {t}, {t} offset:{F_NONCE}')
        a('s_waitcnt lgkmcnt(0)')
        a(f'v_readfirstlane_b32 {sT[0]}, {t}')
        a('s_nop 1')
        a(f's_cmp_eq_u32 {sT[0]}, 0\ns_cbranch_scc1 {lab}')
        for i in (1, 2, 3):
            a(f's_lshr_b32 {sT[i]}, {sT[0]}, {8 * i}')

    def lds_wait(lab, t, vaddr, off, val, slp):
        a(f'{lab}:')
        a(f'ds_read_b32 {t}, {vaddr} offset:{off}')
        a('s_waitcnt lgkmcnt(0)')
        a(f'v_cmp_ne_u32 vcc, {val}, {t}')
        if slp:
            a(f's_cbranch_vccz {lab}d')
            a(f's_sleep {slp}\ns_branch {lab}')
            a(f'{lab}d:')
        else:
            a(f's_cbranch_vccnz {lab}')

    def lds_inc(vaddr, off, one):
        a('s_mov_b64 exec, 1')
        a(f'ds_add_u32 {vaddr}, {one} offset:{off}')
        a('s_mov_b64 exec, -1')

    def pub_exec(n, soff, stride):
        a(f's_add_u32 {sA}, {soff}, {4 * stride}')
        a(f's_cmp_eq_u32 {sBAT}, {3 if n > 1 else 4}\ns_cselect_b64 exec, -1, 0xffff')

    def pub_store(n, v, vaddr, soff, lab):
        a(f'buffer_store_dword {v}, {vaddr}, {SWS}, {soff} offen {STM}')
        if n == 8:
            a(f's_cbranch_scc0 {lab}')
            a(f'buffer_store_dword {v}, {vaddr}, {SWS}, {sA} offen {STM}')
            a(f'{lab}:')

    def copy_off(n, stride, inc):
        if n == 1:
            return inc
        r = sB if stride == 4 * HPB else sD
        a(f's_and_b32 {r}, {sJ}, {n - 1}\ns_mul_i32 {r}, {r}, {stride}\ns_cmp_eq_u32 {sBAT}, 2\ns_cselect_b32 {r}, {r}, 0\ns_add_u32 {r}, {r}, {inc}')
        return r

    def set_exec(m):
        a(f's_mov_b32 exec_lo, {m:#x}\ns_mov_b32 exec_hi, {m:#x}')

    sP, sQO = 's80', 's81'

    def srd(*ks):
        for k in ks:
            r, off, sz = SRD[k]
            a(f's_mov_b32 s{r + 2}, {sz}\ns_mov_b32 s{r + 3}, 0x20000')

    def kload(*ks):
        for k in ks:
            r, off, _ = SRD[k]
            a(f's_load_dwordx2 s[{r}:{r + 1}], s[0:1], {off}')

    def consts():
        a(f's_mov_b32 {sHI}, 0xffff0000\ns_mov_b32 {sLOG2E}, {f2u(1.4426950408889634)}')
        a(f's_mov_b32 {sSPIN}, {SPIN}')

    def lds_init(v, sx, sy):
        z, p, q, r = v, f'v{v + 4}', f'v{v + 5}', f'v{v + 6}'
        for k in range(4):
            a(f'v_mov_b32 v{z + k}, 0')
        a(f'v_and_b32 {p}, 15, v0\nv_lshlrev_b32 {p}, 2, {p}\nv_add_u32 {p}, {L_FLAG}, {p}')
        a(f'ds_write_b32 {p}, v{z}')
        a(f'v_lshlrev_b32 {p}, 4, v0\nv_lshlrev_b32 {q}, 3, v0\nv_add_u32 {r}, {L_TAB}, {p}\nv_add_u32 {q}, {L_TAB2}, {q}')
        a(f'ds_write_b128 {r}, v[{z}:{z + 3}]\nds_write_b64 {q}, v[{z}:{z + 1}]')
        a(f's_lshr_b32 {sx}, {sJ}, 2\ns_mul_i32 {sx}, {sx}, 240\ns_lshl_b32 {sy}, {sJ}, 2\ns_add_u32 {sy}, {sy}, 1\ns_add_u32 {sx}, {sx}, {sy}')
        a(f'v_add_u32 {q}, {sx}, {p}\nv_lshlrev_b32 {p}, 5, v0\nv_add_u32 {p}, {sy}, {p}')
        a(f'v_cmp_gt_u32 vcc, 16, v0\nv_cndmask_b32 {p}, {p}, {q}, vcc')
        a(f'v_cmp_gt_u32 vcc, {NSTAT}, v0\nv_cndmask_b32 {p}, 0, {p}, vcc')
        a(f'v_lshlrev_b32 {q}, 2, v0\nv_add_u32 {q}, {L_TAB}, {q}')
        a(f'ds_write_b32 {q}, {p}')

    def nonce_store(sx, va, vb):
        a(f'v_lshlrev_b32 {va}, 6, v0\ns_waitcnt lgkmcnt(0)')
        a(f's_mul_i32 {sx}, s62, 0x9e3779b1\ns_or_b32 {sx}, {sx}, 1\nv_mov_b32 {vb}, {sx}')
        a('s_mov_b64 exec, 15')
        a(f'buffer_store_dword {vb}, {va}, {SDBG}, 0 offen sc1')
        a('s_mov_b64 exec, -1')

    a(f'{KERN}:')
    a('s_cmp_ge_u32 s2, 256\ns_cbranch_scc1 L_end')
    if EN:
        kload('X', 'WQ', 'K')
        a('v_lshrrev_b32 v1, 6, v0\nv_and_b32 v0, 63, v0')
        a(f'v_readfirstlane_b32 {sWAVE}, v1')
        stamp(0)
        a(f's_and_b32 {sJ}, s2, 7\ns_lshr_b32 {sH}, s2, 3')
        a(f's_cmp_ge_u32 {sWAVE}, 4\ns_cbranch_scc1 L_stream')
        srd('X', 'WQ')
    else:
        kload('X', 'WQ', 'K', 'DBG', 'WS', 'V', 'WO', 'W1', 'W2', 'OUT', 'B1', 'B2')
        a('s_memrealtime s[62:63]')
        stamp(0)
        a('v_lshrrev_b32 v1, 6, v0\nv_and_b32 v0, 63, v0')
        a(f'v_readfirstlane_b32 {sWAVE}, v1')
        srd(*SRD)
        a(f's_and_b32 {sJ}, s2, 7')
        if HM:
            a(f's_mul_i32 {sH}, {sJ}, {8 * HM}\ns_add_u32 s2, s2, {sH}\ns_and_b32 s2, s2, 255')
        a(f's_lshr_b32 {sH}, s2, 3')
        consts()
        a(f's_cmp_ge_u32 {sWAVE}, 4\ns_cbranch_scc1 L_stream')
        a(f's_cmp_lg_u32 {sWAVE}, 3\ns_cbranch_scc1 L_h0')
        lds_init(12, sA, sB)
        a('s_cmp_lg_u32 s2, 0\ns_cbranch_scc1 L_h0')
        nonce_store(sB, 'v7', 'v5')

    a('L_h0:')
    if XC:
        a('v_lshrrev_b32 v2, 2, v0\nv_and_b32 v1, 3, v2\nv_mul_u32_u24 v1, 1280, v1\nv_lshrrev_b32 v4, 4, v0')
        a('v_and_b32 v3, 3, v0\nv_lshl_add_u32 v3, v4, 2, v3\nv_lshl_add_u32 v3, v3, 4, v1\nv_lshl_add_u32 v4, v4, 3, v1')
    else:
        a('v_and_b32 v1, 3, v0\nv_mul_u32_u24 v1, 1280, v1\nv_lshrrev_b32 v2, 2, v0\nv_mul_u32_u24 v3, 80, v2\nv_add_u32 v3, v3, v1')
        a('v_lshrrev_b32 v4, 4, v0\nv_lshl_add_u32 v4, v4, 3, v1')
    a('v_lshrrev_b32 v5, 3, v0\nv_mul_u32_u24 v5, 12288, v5\nv_and_b32 v6, 7, v0\nv_lshl_add_u32 v5, v6, 4, v5')
    a(f's_add_u32 {sP}, {sJ}, {sH}\ns_and_b32 {sP}, {sP}, 7')
    a(f's_and_b32 {sD}, {sP}, 1\ns_lshl_b32 {sD}, {sD}, 2\ns_add_u32 {sD}, {sD}, {sWAVE}')
    a(f's_mul_i32 {sA}, {sD}, 160')
    a(f's_mul_i32 {sB}, {sD}, {80 * 12288}\ns_mul_i32 {sC}, {sH}, 384\ns_add_u32 {sB}, {sB}, {sC}')
    a(f's_lshr_b32 {sC}, {sP}, 1\ns_lshl_b32 {sC}, {sC}, 7\ns_add_u32 {sB}, {sB}, {sC}')
    a(f's_mul_i32 {sC}, {sWAVE}, {REG}\ns_mul_i32 {sQO}, {sH}, 6144')
    a('s_waitcnt lgkmcnt(0)')
    if PB == 1:
        a('s_barrier')
    a(f's_cmp_ge_u32 {sP}, {0 if exp & 2 else 6}\ns_cbranch_scc1 L_nold')
    if XS:
        a(f's_cmp_lg_u32 {sWAVE}, 3\ns_cbranch_scc1 L_nox')
    for i in range(5):
        a(f'buffer_load_dwordx4 v[{20 + 4 * i}:{23 + 4 * i}], v3, {SX}, 0 offen offset:{i * (256 if XC else 16)}')
    for i in range(0 if XS else 5):
        a(f'buffer_load_dwordx2 v[{10 + 2 * i}:{11 + 2 * i}], v4, {SX}, {sA} offen offset:{i * 32}')
    a('L_nox:')
    for u in range(10):
        if PB == 2 + u:
            a('s_barrier')
        a(f's_mov_b32 m0, {sC}')
        a(f'buffer_load_dwordx4 v5, {SWQ}, {sB} offen nt lds')
        if u < 9:
            a(f's_add_u32 {sB}, {sB}, {8 * 12288}\ns_add_u32 {sC}, {sC}, 1024')
    if PB >= 2:
        a('s_branch L_nob')
    a('L_nold:')
    if PB != 1:
        a('s_barrier')
    a('L_nob:')
    if EN:
        kload('DBG', 'WS', 'WO', 'W1', 'W2', 'OUT', 'B1', 'B2')
        srd('DBG', 'WS', 'WO', 'W1', 'W2', 'OUT', 'B1', 'B2')
        consts()
        a('s_waitcnt lgkmcnt(0)')
    a(f's_cmp_lg_u32 {sWAVE}, {1 if XS else 3}\ns_cbranch_scc1 L_h1')
    for i in (3, 0, 1, 2):
        a(f's_load_dword {sT[0]}, s[20:21], {64 * i}')
        a('s_waitcnt lgkmcnt(0)')
        a(f's_cmp_lg_u32 {sT[0]}, 0\ns_cbranch_scc1 L_ngot')
    a('v_mov_b32 v7, 0')
    a('L_nv:')
    a(f'buffer_load_dword v6, v7, {SDBG}, 0 offen sc1')
    a('s_waitcnt vmcnt(0)')
    a(f'v_readfirstlane_b32 {sT[0]}, v6')
    a(f's_sub_u32 {sSPIN}, {sSPIN}, 1\ns_cselect_b32 {sT[0]}, 1, {sT[0]}')
    a(f's_cmp_eq_u32 {sT[0]}, 0\ns_cbranch_scc1 L_nv')
    a(f's_mov_b32 {sSPIN}, {SPIN}')
    a('L_ngot:')
    a(f'v_mov_b32 v6, {sT[0]}\nv_mov_b32 v7, {L_FLAG}')
    a(f'ds_write_b32 v7, v6 offset:{F_NONCE}')
    a('L_h1:')
    a(f's_cmp_ge_u32 {sP}, 6\ns_cbranch_scc1 L_nop')
    a(f's_or_b32 {sB}, {sP}, {sWAVE}\ns_cbranch_scc1 L_noct')
    a(f's_mul_i32 {sB}, {sH}, {CTS}\ns_add_u32 {sB}, {sB}, {CT}')
    a('v_mov_b32 v6, 0\nv_lshlrev_b32 v7, 7, v0\ns_mov_b64 exec, 3')
    a(f'buffer_store_dword v6, v7, {SWS}, {sB} offen sc1')
    a('s_mov_b64 exec, -1')
    a('L_noct:')
    if exp & 2:
        a('s_branch L_fin')
    L_XF = L_TAB2 + 504
    if XS:
        a(f's_cmp_lg_u32 {sWAVE}, 3\ns_cbranch_scc1 L_xw')
    a('s_waitcnt vmcnt(10)')
    stamp(1)
    NX, XB = (20, 20) if XS else (10, 10)
    a(f's_mov_b32 {sD}, 0x3f803f80')
    for i in range(20):
        acc = f'v{6 + i % 2}'
        a(f'v_dot2_f32_bf16 {acc}, v{20 + i}, {sD}, {acc if i >= 2 else 0}')
    for i in range(20):
        a(f'v_lshlrev_b32 v{40 + 2 * i}, 16, v{20 + i}\nv_and_b32 v{41 + 2 * i}, {sHI}, v{20 + i}')
    a('v_add_f32 v6, v6, v7')

    def red4(r, t):
        if XC:
            a(f'v_add_f32_dpp {r}, {r}, {r} quad_perm:[1,0,3,2] {DPPM}')
            a(f'v_add_f32_dpp {r}, {r}, {r} quad_perm:[2,3,0,1] {DPPM}')
            for sw in ('v_permlane16_swap_b32', 'v_permlane32_swap_b32'):
                a(f'v_mov_b32 {t}, {r}\n{sw} {r}, {t}\nv_add_f32 {r}, {r}, {t}')
            return
        a(f'v_add_f32_dpp {r}, {r}, {r} row_ror:4 {DPPM}')
        allreduce('v_add_f32', r, t, low=False)
    red4('v6', 'v7')
    a(f'v_mul_f32 v6, {f2u(1 / 640)}, v6')
    DV, VA = (80, 10) if XS else (40, 20)
    for i in range(20):
        a(f'v_pk_add_f32 v[{DV + 2 * i}:{DV + 1 + 2 * i}], v[{40 + 2 * i}:{41 + 2 * i}], v[6:7] op_sel_hi:[1,0] neg_lo:[0,1] neg_hi:[0,1]')
    for i in range(20):
        d = f'v[{DV + 2 * i}:{DV + 1 + 2 * i}]'
        acc = f'v[{VA + 2 * (i % 2)}:{VA + 1 + 2 * (i % 2)}]'
        a(f'v_pk_mul_f32 {acc}, {d}, {d}' if i < 2 else f'v_pk_fma_f32 {acc}, {d}, {d}, {acc}')
    rbf('v6')
    for i in range(0 if XS else 10):
        a(f'v_lshlrev_b32 v{40 + 2 * i}, 16, v{10 + i}\nv_and_b32 v{41 + 2 * i}, {sHI}, v{10 + i}')
    a(f'v_add_f32 v{VA}, v{VA}, v{VA + 1}\nv_add_f32 v{VA + 2}, v{VA + 2}, v{VA + 3}\nv_add_f32 v8, v{VA}, v{VA + 2}')
    red4('v8', 'v9')
    for i in range(NX):
        a(f'v_pk_add_f32 v[{40 + 2 * i}:{41 + 2 * i}], v[{40 + 2 * i}:{41 + 2 * i}], v[6:7] op_sel_hi:[1,0] neg_lo:[0,1] neg_hi:[0,1]')
    a(f'v_mul_f32 v8, {f2u(1 / 640)}, v8')
    rbf('v8')
    a(f'v_add_f32 v8, {f2u(1e-5)}, v8')
    rbf('v8')
    a('v_sqrt_f32 v8, v8')
    for i in range(NX):
        a(f'v_cvt_pk_bf16_f32 v{XB + i}, v{40 + 2 * i}, v{41 + 2 * i}')
    rbf('v8')
    a('v_rcp_f32 v8, v8')
    for i in range(NX):
        a(f'v_lshlrev_b32 v{40 + 2 * i}, 16, v{XB + i}\nv_and_b32 v{41 + 2 * i}, {sHI}, v{XB + i}')
    for i in range(NX):
        a(f'v_pk_mul_f32 v[{40 + 2 * i}:{41 + 2 * i}], v[{40 + 2 * i}:{41 + 2 * i}], v[8:9] op_sel_hi:[1,0]')
    for i in range(NX):
        a(f'v_cvt_pk_bf16_f32 v{XB + i}, v{40 + 2 * i}, v{41 + 2 * i}')
    if XS:
        a(f'v_add_u32 v3, {L_PART}, v3\nv_mov_b32 v6, {L_XF}\nv_mov_b32 v7, 1')
        for i in range(5):
            a(f'ds_write_b128 v3, v[{20 + 4 * i}:{23 + 4 * i}] offset:{i * 256}')
        a('ds_write_b32 v6, v7')
        a('L_xw:')
        a(f's_add_u32 {sA}, {sA}, {L_PART}\nv_add_u32 v4, {sA}, v4\nv_mov_b32 v6, {L_XF}')
        lds_wait('L_xv', 'v7', 'v6', 0, 1, 1)
        for i in range(5):
            a(f'ds_read_b64 v[{10 + 2 * i}:{11 + 2 * i}], v4 offset:{i * 32}')
    a(f'v_and_b32 v1, 3, v0\nv_lshlrev_b32 v5, 7, v2\nv_lshl_add_u32 v5, v1, 3, v5')
    a(f's_mul_i32 {sC}, {sWAVE}, {REG}\nv_add_u32 v5, {sC}, v5')
    a('v_mov_b32 v9, 0xff\nv_lshlrev_b32 v8, 4, v0')
    get_nonce('L_np0', 'v6')
    stamp(2)
    a('s_waitcnt vmcnt(0)')
    stamp(3)
    for qs in ((4,), (0, 1), (2, 3)):
        for T in range(4):
            for q in qs:
                r = 20 + T * 12 + q * 2
                a(f'ds_read_b64_tr_b16 v[{r}:{r + 1}], v5 offset:{q * 2048 + T * 32}')
    a(f's_lshl_b32 {sB}, {sP}, 10\ns_add_u32 {sB}, {sB}, {sQO}')
    a(f's_lshl_b32 {sC}, {sWAVE}, 10\nv_add_u32 v7, {L_ACT}, v8\nv_add_u32 v6, {sC}, v7')
    if XC:
        a(f's_add_u32 {sC}, {sC}, {L_ACT}\nv_and_b32 v6, 0xf0, v8\nv_lshrrev_b32 v3, 4, v0\nv_lshl_add_u32 v6, v3, 2, v6\nv_add_u32 v6, {sC}, v6')
    a(f'v_mov_b32 v3, {L_TAB2 + 508}\nv_mov_b32 v4, 1')
    a('s_waitcnt lgkmcnt(15)')
    for T in range(4):
        r, d = 20 + T * 12, 68 + T * 4
        a(f'v_mfma_f32_16x16x16_bf16 v[{d}:{d + 3}], v[18:19], v[{r + 8}:{r + 9}], 0')
    for kk in range(2):
        a(f's_waitcnt lgkmcnt({8 - 8 * kk})')
        for T in range(4):
            r, d = 20 + T * 12 + 4 * kk, 68 + T * 4
            a(f'v_mfma_f32_16x16x32_bf16 v[{d}:{d + 3}], v[{10 + 4 * kk}:{13 + 4 * kk}], v[{r}:{r + 3}], v[{d}:{d + 3}]')
    if XC:
        a('ds_write2_b32 v6, v68, v72 offset0:0 offset1:64\nds_write2_b32 v6, v76, v80 offset0:128 offset1:192')
    else:
        a('s_mov_b64 exec, 0xffff')
        for T in range(4):
            a(f'ds_write_b128 v6, v[{68 + T * 4}:{71 + T * 4}] offset:{T * 256}')
    a('s_mov_b64 exec, 1\nds_add_rtn_u32 v4, v3, v4\ns_mov_b64 exec, -1')
    a(f's_waitcnt lgkmcnt(0)\nv_readfirstlane_b32 {sA}, v4\ns_nop 1')
    a(f's_cmp_lg_u32 {sA}, 3\ns_cbranch_scc1 L_qc')
    for w in range(4):
        a(f'ds_read_b128 v[{20 + 4 * w}:{23 + 4 * w}], v7 offset:{w * 1024}')
    a('s_waitcnt lgkmcnt(2)')
    a('v_pk_add_f32 v[20:21], v[20:21], v[24:25]\nv_pk_add_f32 v[22:23], v[22:23], v[26:27]')
    a('s_waitcnt lgkmcnt(0)')
    a('v_pk_add_f32 v[28:29], v[28:29], v[32:33]\nv_pk_add_f32 v[30:31], v[30:31], v[34:35]')
    a('v_pk_add_f32 v[36:37], v[20:21], v[28:29]\nv_pk_add_f32 v[38:39], v[22:23], v[30:31]')
    tag(36, 4, 'v9')
    a(f'buffer_store_dwordx4 v[36:39], v8, {SWS}, {sB} offen sc1')
    stamp(4)
    a('s_branch L_qc')
    a('L_nop:')
    a('v_mov_b32 v9, 0xff\nv_lshlrev_b32 v8, 4, v0')
    get_nonce('L_np1', 'v6')
    if exp & 2:
        a('s_branch L_fin')
    if QSL:
        a(f's_sleep {QSL}')
    a('L_qc:')
    a(f'v_mov_b32 v3, {L_FLAG}\nv_mov_b32 v4, 1')
    a(f's_cmp_eq_u32 {sWAVE}, 3\ns_cbranch_scc1 L_role')
    a(f's_lshl_b32 {sB}, {sWAVE}, 11\ns_add_u32 {sB}, {sB}, {sQO}')
    if QS2:
        a(f's_sleep {QS2}')
    if QS3:
        a(f's_branch L_qg\nL_qgs:\ns_sleep {QS3}')
    a('L_qg:')
    for m in range(2):
        a(f'buffer_load_dwordx4 v[{20 + 4 * m}:{23 + 4 * m}], v8, {SWS}, {sB} offen offset:{m * 1024} sc1')
    a('s_waitcnt vmcnt(0)')
    check(20, 8, 'v10', 'L_qg' + ('s' if QS3 else ''), 'L_qgd', sleep=False)
    a(f's_mov_b32 {sD}, 0x80')
    for i in range(8):
        a(f'v_bfi_b32 v{20 + i}, v9, {sD}, v{20 + i}')
    for i in range(4):
        a(f'v_add_f32 v{20 + i}, v{20 + i}, v{24 + i}')
    a('v_cvt_pk_bf16_f32 v20, v20, v21\nv_cvt_pk_bf16_f32 v22, v22, v23')
    a(f's_lshl_b32 {sC}, {sWAVE}, 7\ns_add_u32 {sC}, {sC}, {L_Q}')
    a(f'v_lshl_add_u32 v5, v0, 1, {sC}')
    a('ds_write_b16 v5, v20\nds_write_b16_d16_hi v5, v20 offset:384')
    a('ds_write_b16 v5, v22 offset:768\nds_write_b16_d16_hi v5, v22 offset:1152')
    lds_inc('v3', F_Q, 'v4')
    stamp(5)

    def dma_loop(lab, srd, n, gstep):
        a(f's_add_u32 {sD}, {sC}, {n * 1024}')
        a(f'{lab}:')
        a(f's_mov_b32 m0, {sC}')
        a(f's_add_u32 {sC}, {sC}, 1024')
        a(f'buffer_load_dwordx4 v2, {srd}, {sB} offen nt lds')
        a(f's_add_u32 {sB}, {sB}, {gstep}')
        a(f's_waitcnt vmcnt({WWIN})')
        a(f's_cmp_lt_u32 {sC}, {sD}\ns_cbranch_scc1 {lab}')

    def weights_ready(lab):
        a('s_waitcnt vmcnt(0)')
        lds_inc('v3', F_W, 'v4')
        lds_wait(lab, 'v10', 'v3', F_W, 4, 8)

    def tr_reads(lst):
        for n, (r, va, off) in enumerate(lst):
            if n and n % 12 == 0:
                a('s_waitcnt lgkmcnt(0)')
            a(f'ds_read_b64_tr_b16 v[{r}:{r + 1}], {va} offset:{off}')
        a('s_waitcnt lgkmcnt(0)')

    def batch_top(lab):
        a('s_branch L_pre')
        a(f'{lab}:')
        if early >> ('L_s2b', 'L_s4b', 'L_s5b').index(lab) & 1:
            a(f's_cmp_eq_u32 {sBAT}, 2\ns_cbranch_scc1 L_pre2')
        a(f'{lab}c:')

    def shadow_sleep(lab, n, force=False):
        if n or force:
            a(f's_cmp_eq_u32 {sBAT}, 3\ns_cbranch_scc1 {lab}')
        for i in range(n):
            a('s_sleep 127')

    def s1_setup(sb):
        a(f's_mul_i32 {sA}, {sb}, {PARTP}\ns_add_u32 {sA}, {sA}, {L_PART}')
        a(f'v_and_b32 v51, 31, v0\nv_lshlrev_b32 v54, 4, v51\nv_add_u32 v52, {sA}, v54\nv_mov_b32 v53, {sA}')
        a(f'v_lshl_add_u32 v51, v51, 3, {sA}\nv_mov_b32 v55, 0xffff')
        a(f'v_and_b32 v50, 1, v0\nv_lshlrev_b32 v50, 4, v50\nv_lshrrev_b32 v49, v50, {sT[0]}\nv_sub_u32 v50, 16, v50')
        a(f's_lshl_b32 {sB}, {sb}, 17\ns_lshl_b32 {sA}, s2, 9\ns_add_u32 {sB}, {sB}, {sA}\ns_add_u32 {sB}, {sB}, {OP}')

    def wait_flush(lab, split):
        a(f's_cmp_lg_u32 {sBAT}, 3\ns_cbranch_scc1 {lab}d')
        if PAR:
            for r, bit, off in split:
                if r[0] == 's':
                    a(f's_bitcmp1_b32 {sWAVE}, 0\ns_cselect_b32 {sB}, {off}, 0\ns_add_u32 {r}, {r}, {sB}')
                else:
                    a(f'v_bfe_u32 v10, v0, {bit}, 1\nv_mul_u32_u24 v10, {off}, v10\nv_add_u32 {r}, {r}, v10')
        stamp(2)
        lds_wait(lab, 'v10', 'v3', F_FL, 4, FSLP)
        bstamp(6)

    def batch_end(lab, incs):
        a('s_mov_b64 exec, -1')
        a(f's_add_u32 {sBAT}, {sBAT}, 1')
        a('v_add_u32 v3, 4, v3')
        for r, d in incs:
            a(f's_add_u32 {r}, {r}, {d}' if r[0] == 's' else f'v_add_u32 {r}, {d}, {r}')
        a(f's_cmp_lt_u32 {sBAT}, 4\ns_cbranch_scc1 {lab}')
        a('s_branch L_fin')

    a('L_role:')
    if exp & 1:
        a('s_branch L_fin')
    for i in range(WSL):
        a('s_sleep 127')
    a(f's_lshl_b32 {sA}, {sJ}, 2\ns_add_u32 {sA}, {sA}, {sH}\ns_and_b32 {sA}, {sA}, 31\ns_mov_b32 {sROLE}, 0')
    a(f's_mul_i32 {sC}, {sWAVE}, {REG}')
    a('v_lshrrev_b32 v5, 4, v0\nv_bfe_u32 v6, v0, 2, 2\nv_and_b32 v7, 3, v0')
    a('v_and_b32 v63, 15, v0\nv_lshlrev_b32 v63, 2, v63')
    a(f's_cmp_ge_u32 {sA}, 13\ns_cbranch_scc1 L_s5')
    a(f's_cmp_ge_u32 {sA}, 10\ns_cbranch_scc1 L_ffn')

    a(f's_mov_b32 {sD}, {sJ}')
    a(f's_mul_i32 {sOUTA}, {sD}, 2560\ns_lshl_b32 {sB}, {sA}, 8\ns_add_u32 {sOUTA}, {sOUTA}, {sB}')
    a(f's_lshl_b32 {sB}, {sWAVE}, 6\ns_add_u32 {sOUTA}, {sOUTA}, {sB}\ns_add_u32 {sOUTA}, {sOUTA}, {HP}')
    a(f's_lshl_b32 {sD}, {sD}, 2\ns_add_u32 {sD}, {sD}, {sWAVE}')
    a(f's_lshl_b32 {sIN}, {sD}, 12\ns_add_u32 {sIN}, {sIN}, {OP + (1 << 17)}')
    a(f's_mul_i32 {sB}, {sD}, {192 * 1280}\ns_lshl_b32 {sA}, {sA}, 7\ns_add_u32 {sB}, {sB}, {sA}')
    a('v_lshrrev_b32 v2, 3, v0\nv_mul_u32_u24 v2, 1280, v2\nv_and_b32 v1, 7, v0\nv_lshl_add_u32 v2, v1, 4, v2')
    dma_loop('L_dwo', SWO, 24, 8 * 1280)
    weights_ready('L_wr2')
    a('v_lshlrev_b32 v10, 10, v5\nv_lshl_add_u32 v10, v6, 7, v10\nv_lshl_add_u32 v10, v7, 3, v10')
    a(f's_lshl_b32 {sA}, {sWAVE}, 5\nv_add_u32 v10, {sA}, v10\nv_add_u32 v11, 49152, v10')
    tr_reads([(128 + 4 * s_ + 2 * q, 'v10' if s_ < 12 else 'v11', (s_ % 12) * 4096 + q * 512) for s_ in range(24) for q in range(2)])
    stamp(5)
    a('v_lshlrev_b32 v8, 4, v0\nv_and_b32 v10, 31, v0\nv_lshrrev_b32 v11, 5, v0\nv_lshl_add_u32 v10, v10, 1, v11')
    a(f's_mul_i32 {sA}, {sWAVE}, 384\ns_add_u32 {sA}, {sA}, {L_ACT}')
    a(f'v_lshl_add_u32 v2, v10, 2, {sA}\nv_lshl_add_u32 v7, v10, 1, {sA}')
    a(f'v_and_b32 v10, 1, v0\nv_lshlrev_b32 v11, 4, v10\nv_lshrrev_b32 v224, v11, {sT[0]}\nv_mov_b32 v225, 0xffff')
    a('v_mov_b32 v226, 0x07060302\nv_mov_b32 v227, 0x03020706\nv_cmp_eq_u32 vcc, 1, v10\nv_cndmask_b32 v226, v226, v227, vcc')
    a('v_bfe_u32 v1, v0, 1, 2\nv_lshlrev_b32 v1, 9, v1\nv_add_u32 v1, v1, v11')
    a(f'v_lshlrev_b32 v6, 4, v5\nv_add_u32 v6, {L_ACT}, v6')
    a(f'v_mul_u32_u24 v5, {4 * HPB}, v5\nv_and_b32 v10, 15, v0\nv_lshl_add_u32 v5, v10, 2, v5')
    a(f'v_lshlrev_b32 v10, 3, v0\nv_lshrrev_b32 v227, v10, {sT[0]}')
    batch_top('L_s2b')
    a(f's_cmp_ge_u32 {sBAT}, 2\ns_cselect_b32 {sA}, 2048, 0\ns_add_u32 {sA}, {sA}, {sIN}')
    wait_flush('L_s2w', [(sOUTA, 0, 32 * HPB)])
    if pp2:
        a(f's_bitcmp0_b32 {pp2}, {sBAT}\ns_cbranch_scc1 L_og')
        a('L_op:')
        a(f'buffer_load_dword v20, v1, {SWS}, {sIN} offen offset:12 sc1')
        a(f'buffer_load_dword v21, v1, {SWS}, {sA} offen offset:12 sc1')
        a('s_waitcnt vmcnt(0)')
        check(20, 2, 'v10', 'L_op', 'L_opd', tags=['v224'], mask='v225')
    if mk & 1:
        gather('L_og', [(f'buffer_load_dwordx4 v[{20 + 4 * m}:{23 + 4 * m}], v8, {SWS}, {sIN if m < 2 else sA} offen offset:{(m % 2) * 1024} sc1', [23 + 4 * m]) for m in range(4)], ['v224'], 'v225')
        for m in range(4):
            a(f'v_mov_b32_dpp v{12 + m}, v{23 + 4 * m} quad_perm:[1,0,3,2] {DPPM}')
    else:
        a('L_og:')
        for m in range(4):
            a(f'buffer_load_dwordx4 v[{20 + 4 * m}:{23 + 4 * m}], v8, {SWS}, {sIN if m < 2 else sA} offen offset:{(m % 2) * 1024} sc1')
        a('s_waitcnt vmcnt(0)')
        for m in range(4):
            a(f'v_mov_b32_dpp v{12 + m}, v{23 + 4 * m} quad_perm:[1,0,3,2] {DPPM}')
        check(23, 4, 'v10', 'L_og', 'L_ogd', tags=['v224'], mask='v225', step=4)
    bstamp(3)
    UP = lambda m, k: 36 + 6 * m + k

    def unp(m):
        for k in range(3):
            a(f'v_lshlrev_b32 v{UP(m, 2 * k)}, 16, v{20 + 4 * m + k}\nv_and_b32 v{UP(m, 2 * k + 1)}, {sHI}, v{20 + 4 * m + k}')
    for m in range(4):
        a(f'v_perm_b32 v{60 + 2 * m}, v{12 + m}, v{23 + 4 * m}, v226')
    a('v_max3_f32 v10, v60, v62, v64\nv_max_f32 v10, v10, v66\nv_mov_b32 v11, v10')
    unp(0)
    a('v_permlane32_swap_b32 v10, v11\nv_max_f32 v10, v10, v11')
    for m in range(4):
        a(f'v_sub_f32 v{60 + 2 * m}, v{60 + 2 * m}, v10')
    for m in range(4):
        a(f'v_exp_f32 v{60 + 2 * m}, v{60 + 2 * m}')
    unp(1)
    a('v_add_f32 v10, v60, v62\nv_add_f32 v11, v64, v66\nv_add_f32 v10, v10, v11\nv_mov_b32 v11, v10')
    unp(2)
    a('v_permlane32_swap_b32 v10, v11\nv_add_f32 v10, v10, v11\nv_rcp_f32 v10, v10')
    unp(3)
    for m in range(4):
        for k in range(3):
            d, x, w = f'v[{12 + 2 * k}:{13 + 2 * k}]', f'v[{UP(m, 2 * k)}:{UP(m, 2 * k + 1)}]', f'v[{60 + 2 * m}:{61 + 2 * m}]'
            a(f'v_pk_fma_f32 {d}, {x}, {w}, {d} op_sel_hi:[1,0,1]' if m else f'v_pk_mul_f32 {d}, {x}, {w} op_sel_hi:[1,0]')
    a('v_permlane32_swap_b32 v12, v14\nv_permlane32_swap_b32 v13, v15\nv_permlane32_swap_b32 v16, v17')
    a('v_add_f32 v12, v12, v14\nv_add_f32 v13, v13, v15\nv_add_f32 v16, v16, v17')
    a('v_mul_f32 v12, v10, v12\nv_mul_f32 v13, v10, v13\nv_mul_f32 v16, v10, v16')
    a('v_cvt_pk_bf16_f32 v12, v12, v13\nv_cvt_pk_bf16_f32 v16, v16, v16')
    a('ds_write_b32 v2, v12\nds_write_b16 v7, v16 offset:256')
    lds_inc('v3', F_ST, 'v4')
    lds_wait('L_s2s', 'v10', 'v3', F_ST, 4, 0)
    for s_ in range(12):
        a(f'ds_read_b128 v[{32 + 4 * s_}:{35 + 4 * s_}], v6 offset:{s_ * 64}')
    for s_ in range(24):
        a(f's_waitcnt lgkmcnt({11 if s_ < 12 else 23 - s_})')
        d = f'v[{12 + 4 * (s_ % 2)}:{15 + 4 * (s_ % 2)}]'
        a(f'v_mfma_f32_16x16x32_bf16 {d}, v[{32 + 4 * s_}:{35 + 4 * s_}], v[{128 + 4 * s_}:{131 + 4 * s_}], {d if s_ >= 2 else 0}')
        if s_ < 12:
            a(f'ds_read_b128 v[{80 + 4 * s_}:{83 + 4 * s_}], v6 offset:{(s_ + 12) * 64}')
    pub_exec(RC2, sOUTA, 4 * HPB)
    a('v_add_f32 v12, v12, v16\nv_bfi_b32 v12, v9, v227, v12')
    pub_store(RC2, 'v12', 'v5', sOUTA, 'L_s2p')
    bstamp(4)
    a(f's_mov_b32 {sA}, {1 << 17}\ns_cmp_eq_u32 {sBAT}, 0\ns_cselect_b32 {sA}, 2048, {sA}\ns_cmp_eq_u32 {sBAT}, 1\ns_cselect_b32 {sA}, {(1 << 17) - 2048}, {sA}')
    batch_end('L_s2b', [(sIN, sA), (sOUTA, HPB), ('v2', 1536), ('v6', 1536), ('v7', 1536)])

    a('L_ffn:')
    a(f's_mov_b32 {sROLE}, 1')
    a(f's_mul_i32 {sB}, {sJ}, 3\ns_add_u32 {sA}, {sA}, {sB}\ns_sub_u32 {sA}, {sA}, 10')
    a('v_lshrrev_b32 v2, 3, v0\nv_mul_u32_u24 v2, 3072, v2\nv_and_b32 v1, 7, v0\nv_lshl_add_u32 v2, v1, 4, v2')
    a(f's_lshl_b32 {sB}, {sA}, 7\ns_mul_i32 {sD}, {sWAVE}, {160 * 3072}\ns_add_u32 {sB}, {sB}, {sD}')
    a(f's_mul_i32 {sC}, {sWAVE}, 20480')
    dma_loop('L_dw1', SW1, 20, 8 * 3072)
    a(f's_lshl_b32 {sA}, {sA}, 2\ns_add_u32 {sA}, {sA}, {sWAVE}')
    a(f's_lshl_b32 {sD}, {sA}, 5\nv_and_b32 v8, 15, v0\nv_lshlrev_b32 v10, 1, v8')
    a(f'buffer_load_ushort v244, v10, {SB1}, {sD} offen')
    a(f's_lshl_b32 {sOUTA}, {sA}, 6\ns_add_u32 {sOUTA}, {sOUTA}, {AP}')
    weights_ready('L_wr4')
    a('v_lshlrev_b32 v10, 10, v5\nv_lshl_add_u32 v10, v6, 7, v10\nv_lshl_add_u32 v10, v7, 3, v10')
    a(f's_lshl_b32 {sA}, {sWAVE}, 5\nv_add_u32 v10, {sA}, v10\nv_add_u32 v11, 49152, v10')
    tr_reads([(144 + 4 * s_ + 2 * q, 'v10' if s_ < 12 else 'v11', (s_ % 12) * 4096 + q * 512) for s_ in range(20) for q in range(2)])
    XR, CS, B1R = 234, 240, 244
    for k in range(4):
        a(f'v_mov_b32 v{24 + k}, 0x3f803f80')
    for s_ in range(20):
        a(f'v_mfma_f32_16x16x32_bf16 v[{CS}:{CS + 3}], v[24:27], v[{144 + 4 * s_}:{147 + 4 * s_}], {f"v[{CS}:{CS + 3}]" if s_ else 0}')
    a(f'v_lshlrev_b32 v{B1R}, 16, v{B1R}')
    stamp(5)
    a(f'v_mul_u32_u24 v10, {4 * APB}, v5\nv_lshl_add_u32 v8, v8, 2, v10')
    a(f'v_lshlrev_b32 v10, 4, v0\nv_lshrrev_b32 v245, v10, {sT[0]}\nv_and_b32 v245, 0xffff, v245')
    a(f'v_mov_b32 v246, {f2u(-2.0 * 0.7978845608028654 * 1.4426950408889634 * 0.044715)}')
    a('v_lshrrev_b32 v1, 3, v0\nv_mul_u32_u24 v1, 2560, v1\nv_and_b32 v10, 7, v0\nv_lshl_add_u32 v1, v10, 4, v1')
    a('v_lshlrev_b32 v7, 3, v10\nv_lshl_add_u32 v7, v5, 1, v7')
    a(f's_mul_i32 {sXO}, {sWAVE}, 320\ns_add_u32 {sA}, {sXO}, {L_ACT}\nv_add_u32 v2, {sA}, v7')
    a(f's_lshl_b32 {sIN}, {sXO}, 1\ns_add_u32 {sIN}, {sIN}, {HP}')
    a(f'v_lshlrev_b32 v6, 4, v5\nv_add_u32 v6, {L_ACT}, v6')
    a(f'v_lshlrev_b32 v5, 2, v0\nv_add_u32 v5, {L_ACT}, v5')
    a(f's_mov_b32 {sC}, 0x3f803f80')
    batch_top('L_s4b')
    for i in range(5):
        a(f'v_mov_b32 v{XR + i}, 0\nbuffer_load_short_d16_hi v{XR + i}, v7, {SX}, {sXO} offen offset:{i * 64}')
    wait_flush('L_s4w', [(sOUTA, 0, 32 * APB), ('v1', 2, 32 * HPB)])
    if pp4:
        a(f's_bitcmp0_b32 {pp4}, {sBAT}\ns_cbranch_scc1 L_hg')
        for i in range(hsl):
            a('s_sleep 127')
        a('L_hp:')
        a(f'buffer_load_dwordx4 v[24:27], v1, {SWS}, {sIN} offen sc1 {pnt}')
        a('s_waitcnt vmcnt(0)')
        check(24, 4, 'v10', 'L_hp', 'L_hpd')
    GB = 104 if D4 > 1 else 24
    if mk & 2:
        gather('L_hg', [(f'buffer_load_dwordx4 v[{GB + 4 * i}:{GB + 3 + 4 * i}], v1, {SWS}, {sIN} offen offset:{i * 128} sc1', range(GB + 4 * i, GB + 4 * i + 4)) for i in range(5)], sT, 'v9', D4, G4)
    else:
        a('L_hg:')
        for i in range(5):
            a(f'buffer_load_dwordx4 v[{24 + 4 * i}:{27 + 4 * i}], v1, {SWS}, {sIN} offen offset:{i * 128} sc1 {pnt}')
        a('s_waitcnt vmcnt(0)')
        check(24, 20, 'v10', 'L_hg', 'L_hgd')
    bstamp(3)
    G = lambda i, e: f'v{24 + 4 * i + e}'
    if D4 > 1:
        for i in range(20):
            a(f'v_add_f32_dpp v{24 + i}, v{GB + i}, v{GB + i} row_ror:8 {DPPM}')
    for i in range(5):
        a(f'v_permlane16_swap_b32 {G(i, 0)}, {G(i, 1)}\nv_permlane16_swap_b32 {G(i, 2)}, {G(i, 3)}')
    for i in range(5):
        a(f'v_add_f32 {G(i, 0)}, {G(i, 0)}, {G(i, 1)}\nv_add_f32 {G(i, 2)}, {G(i, 2)}, {G(i, 3)}')
    for i in range(5):
        a(f'v_permlane32_swap_b32 {G(i, 0)}, {G(i, 2)}')
    for i in range(5):
        a(f'v_add_f32 {G(i, 0)}, {G(i, 0)}, {G(i, 2)}')
    for i in range(5 if D4 == 1 else 0):
        a(f'v_add_f32_dpp {G(i, 0)}, {G(i, 0)}, {G(i, 0)} row_ror:8 {DPPM}')
    for i in range(5):
        a(f'v_cvt_pk_bf16_f32 {G(i, 0)}, 0, {G(i, 0)}')
    for i in range(5):
        a(f'v_add_f32 {G(i, 0)}, {G(i, 0)}, v{XR + i}')
    for i in range(5):
        a(f'v_cvt_pk_bf16_f32 {G(i, 0)}, {G(i, 0)}, {G(i, 0)}')
        a(f'ds_write_b16 v2, {G(i, 0)} offset:{i * 64}')
    lds_inc('v3', F_ST, 'v4')
    lds_wait('L_s4s', 'v10', 'v3', F_ST, 4, 0)
    bstamp(1)
    for i in range(5):
        a(f'ds_read_b32 v{XR + i}, v5 offset:{i * 256}')
    for s_ in range(10):
        a(f'ds_read_b128 v[{24 + 4 * s_}:{27 + 4 * s_}], v6 offset:{s_ * 64}')
    st = Asm()
    sv, a_main = a, a
    a = st
    U = 10
    for i in range(5):
        a(f'v_dot2_f32_bf16 v20, v{XR + i}, {sC}, {"v20" if i else 0}')
    for i in range(5):
        a(f'v_lshlrev_b32 v{U + 2 * i}, 16, v{XR + i}\nv_and_b32 v{U + 2 * i + 1}, {sHI}, v{XR + i}')
    allreduce('v_add_f32', 'v20', 'v21')
    a(f'v_mul_f32 v20, {f2u(1 / 640)}, v20')
    for i in range(5):
        a(f'v_pk_add_f32 v[{U + 2 * i}:{U + 2 * i + 1}], v[{U + 2 * i}:{U + 2 * i + 1}], v[20:21] op_sel_hi:[1,0] neg_lo:[0,1] neg_hi:[0,1]')
    for i in range(5):
        d = f'v[{U + 2 * i}:{U + 2 * i + 1}]'
        a(f'v_pk_mul_f32 v[22:23], {d}, {d}' if i == 0 else f'v_pk_fma_f32 v[22:23], {d}, {d}, v[22:23]')
    a('v_add_f32 v22, v22, v23')
    a('v_cvt_pk_bf16_f32 v20, 0, v20')
    allreduce('v_add_f32', 'v22', 'v23')
    a(f'v_mul_f32 v22, {f2u(1 / 640)}, v22\nv_cvt_pk_bf16_f32 v22, 0, v22')
    a(f'v_add_f32 v22, {f2u(1e-5)}, v22\nv_cvt_pk_bf16_f32 v22, 0, v22')
    a('v_sqrt_f32 v22, v22\nv_cvt_pk_bf16_f32 v22, 0, v22\nv_rcp_f32 v22, v22')
    a = a_main
    sl = list(st.l)
    per = (len(sl) + 19) // 20
    D0, D1 = 248, 252
    a('s_waitcnt lgkmcnt(10)')
    for s_ in range(20):
        for x in sl[s_ * per:(s_ + 1) * per]:
            a(x)
        a(f's_waitcnt lgkmcnt({9 if s_ < 10 else 19 - s_})')
        d = f'v[{D0 + 4 * (s_ % 2)}:{D0 + 3 + 4 * (s_ % 2)}]'
        a(f'v_mfma_f32_16x16x32_bf16 {d}, v[{24 + 4 * s_}:{27 + 4 * s_}], v[{144 + 4 * s_}:{147 + 4 * s_}], {d if s_ >= 2 else 0}')
        if s_ < 10:
            a(f'ds_read_b128 v[{64 + 4 * s_}:{67 + 4 * s_}], v6 offset:{(s_ + 10) * 64}')
    c2 = -2.0 * 0.7978845608028654 * 1.4426950408889634
    pub_exec(RC4, sOUTA, 4 * APB)
    a(f'v_fma_f32 v10, -v20, v{CS}, v{D0}\nv_add_f32 v10, v10, v{D1}\nv_mul_f32 v10, v22, v10')
    a(f'v_cvt_pk_bf16_f32 v10, 0, v10\nv_add_f32 v10, v10, v{B1R}\nv_cvt_pk_bf16_f32 v10, 0, v10')
    a(f'v_mul_f32 v11, v10, v10\nv_fmaak_f32 v11, v246, v11, {f2u(c2)}\nv_mul_f32 v11, v11, v10')
    a('v_exp_f32 v11, v11\nv_add_f32 v11, 1.0, v11\nv_rcp_f32 v11, v11\nv_mul_f32 v10, v10, v11')
    a('v_cvt_pk_bf16_f32 v10, 0, v10\nv_or_b32 v10, v245, v10')
    pub_store(RC4, 'v10', 'v8', sOUTA, 'L_s4p')
    bstamp(4)
    batch_end('L_s4b', [(sIN, copy_off(RC2, 4 * HPB, HPB)), (sOUTA, APB), (sXO, 1280), ('v2', 1536), ('v5', 1536), ('v6', 1536)])

    a('L_s5:')
    a(f's_sub_u32 {sA}, {sA}, 13\ns_lshl_b32 {sB}, {sJ}, 1\ns_cmp_lt_u32 {sA}, 2\ns_cbranch_scc1 L_s5a')
    a(f's_sub_u32 {sA}, {sA}, 2\ns_and_b32 {sD}, {sA}, -5\ns_and_b32 {sB}, {sJ}, -3\ns_or_b32 {sB}, {sB}, {sD}\ns_cbranch_scc1 L_idle')
    a(f's_lshr_b32 {sA}, {sA}, 2\ns_add_u32 {sB}, {sJ}, 16')
    a('L_s5a:')
    a(f's_mov_b32 {sROLE}, 2\ns_add_u32 {sA}, {sA}, {sB}')
    a(f's_lshl_b32 {sXO}, {sA}, 6\ns_lshl_b32 {sIN}, {sA}, 7\ns_add_u32 {sIN}, {sIN}, {HP}')
    a(f's_mul_i32 {sACT}, {sWAVE}, 1536\ns_add_u32 {sACT}, {sACT}, {AP}')
    a('v_lshrrev_b32 v2, 2, v0\nv_mul_u32_u24 v2, 1280, v2\nv_lshl_add_u32 v2, v7, 4, v2')
    a(f's_mul_i32 {sB}, {sWAVE}, {384 * 1280}\ns_add_u32 {sB}, {sB}, {sXO}')
    a('v_lshlrev_b32 v10, 9, v5\nv_lshl_add_u32 v10, v6, 6, v10\nv_lshl_add_u32 v10, v7, 3, v10')
    a(f'v_add_u32 v12, {sC}, v10')
    dma_loop('L_dw2', SW2, 24, 16 * 1280)
    a('v_lshrrev_b32 v1, 3, v0\nv_mul_u32_u24 v1, 2560, v1\nv_and_b32 v10, 7, v0\nv_lshl_add_u32 v1, v10, 4, v1')
    a('v_lshlrev_b32 v7, 3, v10\nv_lshl_add_u32 v7, v5, 1, v7')
    a(f'buffer_load_dword v67, v63, {SB2}, {sXO} offen')
    a('v_and_b32 v2, 15, v0\nv_min_u32 v2, 11, v2\nv_lshl_add_u32 v2, v2, 2, v5\nv_lshlrev_b32 v2, 5, v2')
    a(f's_lshl_b32 {sA}, {sWAVE}, 7\ns_add_u32 {sA}, {sA}, {L_ACT}')
    a(f'v_add_u32 v5, {sA}, v63')
    a(f'v_lshlrev_b32 v6, 1, v63\nv_add_u32 v6, {L_ACT}, v6')
    a(f'v_lshlrev_b32 v62, 1, v7\nv_add_u32 v62, {L_ACT + 4096}, v62\nv_add_u32 v61, 4096, v6')
    a(f'v_mov_b32 v8, 0xffff\ns_mov_b32 {sC}, 0x07060302')
    a('s_waitcnt vmcnt(0)')
    tr_reads([(128 + 8 * s_ + 4 * T + 2 * q, 'v12', s_ * 2048 + q * 256 + T * 32) for s_ in range(12) for T in range(2) for q in range(2)])
    a(f'v_lshlrev_b32 v66, 16, v67\nv_and_b32 v67, {sHI}, v67')
    stamp(5)

    def red_rows(b):
        a(f'v_permlane16_swap_b32 v{b}, v{b + 1}\nv_permlane16_swap_b32 v{b + 2}, v{b + 3}')
        a(f'v_add_f32 v{b}, v{b}, v{b + 1}\nv_add_f32 v{b + 2}, v{b + 2}, v{b + 3}')
        a(f'v_permlane32_swap_b32 v{b}, v{b + 2}')
        a(f'v_add_f32 v{b}, v{b}, v{b + 2}')
        a(f'v_add_f32_dpp v{b}, v{b}, v{b} row_ror:8 {DPPM}')

    batch_top('L_s5b')
    wait_flush('L_s5w', [('v2', 5, 32 * APB), ('v1', 2, 32 * HPB)])
    a(f's_cmp_lg_u32 {sWAVE}, 0\ns_cbranch_scc1 L_h5w')
    a(f'buffer_load_ushort v64, v7, {SX}, {sXO} offen')
    if hsl:
        a(f's_cmp_lg_u32 {sBAT}, 0\ns_cbranch_scc1 L_h5')
        for i in range(hsl):
            a('s_sleep 127')
    a('L_h5:')
    a(f'buffer_load_dwordx4 v[20:23], v1, {SWS}, {sIN} offen sc1 {pnt}')
    a('s_waitcnt vmcnt(0)')
    check(20, 4, 'v10', 'L_h5', 'L_h5d')
    lds_inc('v3', F_H, 'v4')
    bstamp(3)
    red_rows(20)
    a('v_lshlrev_b32 v64, 16, v64\nv_cvt_pk_bf16_f32 v20, 0, v20\nv_add_f32 v64, v64, v20\nv_cvt_pk_bf16_f32 v64, 0, v64')
    a('ds_write_b32 v62, v64\nds_read_b64 v[64:65], v61')
    lds_wait('L_h5w', 'v10', 'v3', F_H, 1, FSLP)
    if YS3:
        a(f's_sleep {YS3}')
    if mk & 4:
        gather('L_y5', [(f'buffer_load_dwordx4 v[{32 + 4 * i}:{35 + 4 * i}], v2, {SWS}, {sACT} offen offset:{16 * i} sc1', range(32 + 4 * i, 36 + 4 * i)) for i in range(2)], [sT[0], sT[2]], 'v8', D5, G5)
        for k in range(4):
            a(f'v_perm_b32 v{28 + k}, v{33 + 2 * k}, v{32 + 2 * k}, {sC}')
    else:
        a('L_y5:')
        a(f'buffer_load_dwordx4 v[20:23], v2, {SWS}, {sACT} offen sc1 {pnt}')
        a(f'buffer_load_dwordx4 v[24:27], v2, {SWS}, {sACT} offen offset:16 sc1 {pnt}')
        a('s_waitcnt vmcnt(0)')
        for k in range(4):
            a(f'v_perm_b32 v{28 + k}, v{21 + 2 * k}, v{20 + 2 * k}, {sC}')
        check(20, 8, 'v10', 'L_y5', 'L_y5d', tags=[sT[0], sT[2]], mask='v8')
    bstamp(4)

    def bc(s_):
        for k in range(4):
            a(f'v_mov_b32_dpp v{68 + 4 * s_ + k}, v{28 + k} row_newbcast:{s_} {DPPM}')
    bc(0)
    for s_ in range(12):
        if s_ < 11:
            bc(s_ + 1)
        for T in range(2):
            d = f'v[{12 + 4 * T}:{15 + 4 * T}]'
            w = 128 + 8 * s_ + 4 * T
            a(f'v_mfma_f32_16x16x32_bf16 {d}, v[{68 + 4 * s_}:{71 + 4 * s_}], v[{w}:{w + 3}], {d if s_ else 0}')
    a('s_mov_b64 exec, 0xffff')
    a('ds_write2_b32 v5, v12, v16 offset0:0 offset1:16')
    lds_inc('v3', F_ST, 'v4')
    a(f's_cmp_lg_u32 {sWAVE}, 0\ns_cbranch_scc1 L_s5e')
    lds_wait('L_s5s', 'v10', 'v3', F_ST, 4, 0)
    a('s_mov_b64 exec, 0xffff')
    a('ds_read2_b64 v[20:23], v6 offset0:0 offset1:16\nds_read2_b64 v[24:27], v6 offset0:32 offset1:48')
    a('s_waitcnt lgkmcnt(1)\nv_pk_add_f32 v[20:21], v[20:21], v[22:23]')
    a('s_waitcnt lgkmcnt(0)\nv_pk_add_f32 v[24:25], v[24:25], v[26:27]\nv_pk_add_f32 v[20:21], v[20:21], v[24:25]')
    a('v_cvt_pk_bf16_f32 v20, 0, v20\nv_cvt_pk_bf16_f32 v21, 0, v21\nv_pk_add_f32 v[20:21], v[20:21], v[66:67]')
    a('v_cvt_pk_bf16_f32 v20, 0, v20\nv_cvt_pk_bf16_f32 v21, 0, v21\nv_pk_add_f32 v[20:21], v[20:21], v[64:65]')
    a('v_cvt_pk_bf16_f32 v20, v20, v21')
    a(f'buffer_store_dword v20, v63, {SOUT}, {sXO} offen {OUM}')
    if dbt:
        a(f's_cmp_lg_u32 {sBAT}, 3\ns_cbranch_scc1 L_s5e')
        dstamp(10)
        a('s_mov_b64 exec, 1\nv_mov_b32 v254, s62\nv_sub_u32 v254, 0, v254')
        a(f'buffer_atomic_umax v254, v255, {SDBG}, 0 offen offset:16 sc1')
    a('L_s5e:')
    batch_end('L_s5b', [(sIN, copy_off(RC2, 4 * HPB, HPB)), (sACT, copy_off(RC4, 4 * APB, APB)), (sXO, 1280), ('v5', 512), ('v6', 512)])

    a('L_idle:')
    a(f's_mov_b32 {sROLE}, 3')
    a(f's_cmp_lg_u32 {sWAVE}, 3\ns_cbranch_scc1 L_fin')
    a('L_pre:')
    if exp & 4:
        a('s_branch L_fin')
    a(f's_mov_b32 {sBAT}, 0\ns_mov_b32 {sPH}, 1')
    lds_wait('L_pre1', 'v10', 'v3', F_FL + 4, 4, 16)
    a(f's_cmp_lg_u32 {sWAVE}, 3\ns_cbranch_scc1 L_pre4')
    a('L_pre3:')
    s1_setup(sPH)
    a('s_branch L_s1')
    a('L_pre4:')
    a(f's_bitcmp1_b32 {early}, {sROLE}\ns_cbranch_scc1 L_disp')
    a('L_pre2:')
    a(f'v_mov_b32 v11, {L_FLAG}\ns_mov_b32 {sPH}, 2')
    lds_wait('L_pre5', 'v10', 'v11', F_FL + 8, 4, 16)
    a(f's_cmp_eq_u32 {sWAVE}, 3\ns_cbranch_scc1 L_pre3')
    a('L_disp:')
    for k, lab in enumerate(('L_s2bc', 'L_s4bc', 'L_s5bc')):
        a(f's_cmp_eq_u32 {sROLE}, {k}\ns_cbranch_scc1 {lab}')
    a('s_branch L_fin')

    Q, ACC, AD, S, P, TM, RING, EXT0, EXT1, AD2 = 8, 20, 44, 52, 56, 64, 68, 116, 164, 212
    vMC, vL = 'v6', 'v7'
    s = [f'v{S + t}' for t in range(4)]
    t0, t1, t2, t3 = [f'v{TM + i}' for i in range(4)]

    def ld_tile(t, srd, soff, base=RING):
        for i in range(3):
            r = base + t * 12 + i * 4
            a(f'buffer_load_dwordx4 v[{r}:{r + 3}], v{1 + t // 2}, {srd}, {soff} offen offset:{(t % 2) * 3072 + i * 128} {pol}')

    def reset_state():
        for i in range(24):
            a(f'v_mov_b32 v{ACC + i}, 0')
        a(f'v_mov_b32 {vL}, 0\nv_mov_b32 {vMC}, 0xff7fffff')

    def load_q():
        for i in range(3):
            a(f'ds_read_b128 v[{Q + 4 * i}:{Q + 4 * i + 3}], v5 offset:{i * 128}')

    def kdot(t, base, ad):
        for k in range(12):
            acc = f'v{ad + 2 * t + k % 2}'
            a(f'v_dot2_f32_bf16 {acc}, v{base + t * 12 + k}, v{Q + k}, {acc if k >= 2 else 0}')

    def vdot(t, base):
        for k in range(12):
            for hl in range(2):
                a(f'v_dot2c_f32_bf16 v{ACC + (k // 4) * 8 + (k % 4) * 2 + hl}, v{base + t * 12 + k}, v{P + 2 * t + hl}')

    def softmax4(ad):
        for t in range(4):
            a(f'v_add_f32 {s[t]}, v{ad + 2 * t}, v{ad + 2 * t + 1}')
        for mode in ('quad_perm:[1,0,3,2]', 'quad_perm:[2,3,0,1]', 'row_half_mirror'):
            for t in range(4):
                a(f'v_add_f32_dpp {s[t]}, {s[t]}, {s[t]} {mode} {DPPM}')
        for rnd in range(2):
            a(f'v_cvt_pk_bf16_f32 {t0}, {s[0]}, {s[1]}\nv_cvt_pk_bf16_f32 {t1}, {s[2]}, {s[3]}')
            a(f'v_lshlrev_b32 {s[0]}, 16, {t0}\nv_and_b32 {s[1]}, {sHI}, {t0}')
            a(f'v_lshlrev_b32 {s[2]}, 16, {t1}\nv_and_b32 {s[3]}, {sHI}, {t1}')
            if rnd == 0:
                for t in range(4):
                    a(f'v_mul_f32 {s[t]}, {f2u(192 ** -0.5)}, {s[t]}')
        a(f'v_max3_f32 {t0}, {s[0]}, {s[1]}, {s[2]}\nv_max_f32 {t0}, {t0}, {s[3]}')
        a(f'v_mul_f32 {t0}, {sLOG2E}, {t0}\nv_max_f32 {t0}, {t0}, {vMC}')
        a(f'v_sub_f32 {t2}, {vMC}, {t0}\nv_mov_b32 {vMC}, {t0}')
        for t in range(4):
            a(f'v_fma_f32 {s[t]}, {s[t]}, {sLOG2E}, -{t0}')
        a(f'v_exp_f32 {t2}, {t2}')
        for t in range(4):
            a(f'v_exp_f32 {s[t]}, {s[t]}')
        for i in range(12):
            a(f'v_pk_mul_f32 v[{ACC + 2 * i}:{ACC + 2 * i + 1}], v[{ACC + 2 * i}:{ACC + 2 * i + 1}], v[{TM + 2}:{TM + 3}] op_sel_hi:[1,0]')
        for t in range(4):
            a(f'v_cvt_pk_bf16_f32 v{P + 2 * t}, {s[t]}, 0')
        for t in range(4):
            a(f'v_lshlrev_b32 v{P + 2 * t + 1}, 16, v{P + 2 * t}')
        a(f'v_fma_f32 {vL}, {vL}, {t2}, v{P + 1}')
        a(f'v_add_f32 {t0}, v{P + 3}, v{P + 5}\nv_add_f32 {vL}, {vL}, v{P + 7}\nv_add_f32 {vL}, {vL}, {t0}')

    def ld_one(slot, srd, soff):
        for i in range(3):
            r = RING + slot * 12 + i * 4
            a(f'buffer_load_dwordx4 v[{r}:{r + 3}], v1, {srd}, {soff} offen offset:{i * 128} {pol}')

    def claim(v, off):
        a(f'v_mov_b32 {v}, 1\ns_mov_b64 exec, 1')
        a(f'buffer_atomic_add {v}, v3, {SWS}, 0 offen offset:{off} sc0 sc1')
        a('s_mov_b64 exec, -1')

    def softmax1(t):
        x = s[0]
        a(f'v_add_f32 {x}, v{AD + 2 * t}, v{AD + 2 * t + 1}')
        for mode in ('quad_perm:[1,0,3,2]', 'quad_perm:[2,3,0,1]', 'row_half_mirror'):
            a(f'v_add_f32_dpp {x}, {x}, {x} {mode} {DPPM}')
        a(f'v_cvt_pk_bf16_f32 {x}, 0, {x}\nv_mul_f32 {x}, {f2u(192 ** -0.5)}, {x}\nv_cvt_pk_bf16_f32 {x}, 0, {x}')
        a(f'v_mul_f32 {t0}, {sLOG2E}, {x}\nv_max_f32 {t0}, {t0}, {vMC}')
        a(f'v_sub_f32 {t2}, {vMC}, {t0}\nv_mov_b32 {vMC}, {t0}')
        a(f'v_fma_f32 {x}, {x}, {sLOG2E}, -{t0}')
        a(f'v_exp_f32 {t2}, {t2}\nv_exp_f32 {x}, {x}')
        for i in range(12):
            a(f'v_pk_mul_f32 v[{ACC + 2 * i}:{ACC + 2 * i + 1}], v[{ACC + 2 * i}:{ACC + 2 * i + 1}], v[{TM + 2}:{TM + 3}] op_sel_hi:[1,0]')
        p = P + 2 * (t + 1)
        a(f'v_cvt_pk_bf16_f32 v{p}, {x}, 0\nv_cvt_pk_bf16_f32 v{p + 1}, 0, {x}')
        a(f'v_fma_f32 {vL}, {vL}, {t2}, v{p + 1}')

    assert SMALL % 4 == 0
    NBIG = 1024 - 8 - SMALL // 4
    assert 16 <= NSTAT and NSTAT * 32 <= NBIG
    vCA, vCB, vFL, vB, vT, vE, vE2, vONE = 'v220', 'v221', 'v222', 'v223', 'v224', 'v225', 'v226', 'v227'
    sTA, sTB, sLD, sROT = 's76', 's77', 's78', 's79'

    def item_addr(dst, sid, snb):
        a(f's_lshr_b32 {snb}, {sid}, 8\ns_add_u32 {sid}, {sid}, {sROT}')
        if RB:
            a(f's_mul_i32 {sB}, {snb}, {RB}\ns_add_u32 {sid}, {sid}, {sB}')
        a(f's_and_b32 {sid}, {sid}, 255\ns_mul_i32 {sid}, {sid}, {ITEM}\ns_mul_i32 {sB}, {snb}, {BSTR}')
        a(f's_add_u32 {dst}, {sHB}, {sid}\ns_add_u32 {dst}, {dst}, {sB}')


    def draw(off, n=vONE):
        a(f's_mov_b64 exec, 1\nds_add_rtn_u32 {vT}, {vB}, {n} offset:{off}\ns_mov_b64 exec, -1')

    def publish(v, add):
        a(f's_mov_b64 exec, 1\nv_lshlrev_b32 {v}, 2, {v}\nv_add_u32 {v}, {add}, {v}\nds_write_b32 {vE}, {v}\ns_mov_b64 exec, -1')

    spins = []

    def resolve(lab, st):
        a(f's_cmp_eq_u32 {sA}, 0\ns_cbranch_scc1 {lab}')
        a(f'{lab}r:')
        a(f's_and_b32 {sB}, {st}, 3\ns_add_u32 {sA}, {sA}, {sB}\ns_sub_u32 {sA}, {sA}, 1')
        spins.append(lab)

    a('L_stream:')
    if EN:
        kload('V', 'DBG', 'WS')
        a('s_memrealtime s[62:63]')
        srd('K')
    a('v_lshrrev_b32 v1, 3, v0\nv_mul_u32_u24 v1, 384, v1\nv_and_b32 v5, 7, v0\nv_lshlrev_b32 v5, 4, v5\nv_add_u32 v1, v1, v5')
    a(f's_sub_u32 {sA}, {sWAVE}, 4')
    a(f's_mul_i32 {sHB}, {sH}, {PROB}')
    a(f's_lshl_b32 {sC}, {sJ}, 2\ns_add_u32 {sC}, {sC}, {sA}\ns_mul_i32 {sROT}, {sH}, {RH}')
    a(f's_lshr_b32 {sD}, {sJ}, 2\ns_mul_i32 {sD}, {sD}, 240\ns_add_u32 {sD}, {sD}, {sC}\ns_add_u32 {sST}, {sD}, 16')
    item_addr(sNEXT, sD, sCB)

    K0B = lambda t: (ACC if t < 2 else 228 - 24) if P16 else EXT0

    def rest():
        a('v_add_u32 v2, 6144, v1\nv_mov_b32 v4, 0')
        a(f's_add_u32 {sTB}, {sST}, 16')
        item_addr(sCUR, sST, sCB)
        a(f's_mov_b32 {sSB}, {sC}')
        a(f's_mul_i32 {sC}, {sH}, {CTS}\ns_add_u32 {sC}, {sC}, {CT}\nv_mov_b32 v3, {sC}')
        a(f's_mul_i32 {sB}, {sCB}, 384\ns_add_u32 {sB}, {sB}, {L_Q}')
        a(f'v_add_u32 v5, {sB}, v5\nv_mov_b32 {vFL}, {L_FLAG + 4}\nv_mov_b32 {vB}, {L_FLAG}\nv_mov_b32 {vONE}, 1')
        a(f's_mul_i32 {sPB}, {sA}, {4 * PARTP}\ns_add_u32 {sPB}, {sPB}, {L_PART + PARTP}')
        a(f's_mov_b32 {sMODE}, 2')
    if EN:
        a(f's_cmp_lg_u32 {sWAVE}, 7\ns_cbranch_scc1 L_noi')
        a(f's_cmp_lg_u32 s2, {NWG}\ns_cbranch_scc1 L_non')
        srd('DBG')
        nonce_store(sB, 'v8', 'v9')
        a('L_non:')
        lds_init(12, sB, sD)
        a('L_noi:')
    else:
        rest()
    a('s_waitcnt lgkmcnt(0)')
    if FS:
        stamp(3)
    pf = [(t, SK, sNEXT, K0B(t)) for t in range(4)]
    grp = [(SV, sNEXT, EXT1), (SK, sCUR, RING)]
    for srd_, so, base in (grp[::-1] if PO == 1 else grp) + ([(SV, sCUR, EXT0)] if P16 else []):
        pf += [(t, srd_, so, base) for t in range(4)]
    if PO == 2:
        pf.insert(1, pf.pop(4))
    for n, (t, srd_, so, base) in enumerate(pf):
        if n == PRE:
            a('s_barrier')
            if PSL:
                a(f's_sleep {PSL}')
        if EN and n == 1:
            srd('V')
        if EN and n == 2:
            rest()
            srd('WS')
            consts()
        if n == 4 and not P16:
            reset_state()
        if 3 * n > PWIN:
            a(f's_waitcnt vmcnt({PWIN})')
            if FS and n == 2:
                stamp(1)
        if FS and n == 0:
            stamp(4)
        ld_tile(t, srd_, so, base)
    if P16:
        item_addr(sCUR, sTB, sNB)
    if not FS:
        stamp(3)
    if not noq:
        lds_wait('L_wqs', t0, vB, F_Q, 3, 1)
    if not FS:
        stamp(1)
    load_q()
    get_nonce('L_nps', t0)

    def take_ticket():
        a(f's_waitcnt lgkmcnt(0)\nv_readfirstlane_b32 {sST}, {vT}')
        a(f'v_and_b32 {vE}, -4, {vT}\nv_add_u32 {vE}, {L_TAB + 12}, {vE}')

    def step(n, comp, issue):
        if ISS[n] == 'b':
            issue()
        comp()
        if ISS[n] == 'a':
            issue()

    if P16:
        def pace(t):
            a('s_waitcnt vmcnt(3)')
            ld_tile(t, SK, sCUR)
        kdot(0, RING, AD)
        pace(0)
        for t in range(1, 4):
            kdot(t, RING, AD)
        for t in range(4):
            kdot(t, K0B(t), AD2)
        reset_state()
        pace(1)
        softmax4(AD2)
        for t in range(4):
            vdot(t, EXT1)
        pace(2)
        softmax4(AD)
        for t in range(4):
            vdot(t, EXT0)
        pace(3)
        if not FS:
            stamp(4)
    else:
        for t in range(4):
            a('s_waitcnt vmcnt(9)')
            kdot(t, RING, AD)
            ld_tile(t, SV, sCUR)
        a(f's_mov_b32 {sLD}, 1\ns_mov_b32 {sST}, {sWAVE}\nv_mov_b32 {vE}, {L_TAB + 8}')
        for t in range(4):
            kdot(t, EXT0, AD2)
        softmax4(AD2)
        for t in range(4):
            vdot(t, EXT1)
        if not FS:
            stamp(4)
        a('s_branch L_mid')

    a('L_item:')
    for t in range(4):
        if t == 2:
            draw(F_T1)
        if t == 3:
            a(f's_waitcnt vmcnt(4)\ns_cmp_eq_u32 {sLD}, 0\ns_cbranch_scc1 L_k3')
        a('s_waitcnt vmcnt(3)')
        if t == 3:
            a('L_k3:')

        def issue():
            if t == 2:
                take_ticket()
                a(f's_and_b32 {sLD}, {sST}, 3\ns_cmp_lt_u32 {sST}, {NSTAT * 4 - 12}\ns_cselect_b32 {sLD}, 1, {sLD}')
                a(f's_cmp_lg_u32 {sLD}, 0\ns_cbranch_scc1 L_noclaim')
                claim('v4', 0)
                a('L_noclaim:')
            if P16 and t < 2:
                a(f's_cmp_eq_u32 {sMODE}, 2\ns_cbranch_scc1 L_k{t}')
            ld_tile((t + 2) % 4, SK if t < 2 else SV, sCUR)
            if P16 and t < 2:
                a(f'L_k{t}:')
        step(t, lambda: kdot(t, RING, AD), issue)
    if PS:
        ld_tile(2, SV, sCUR)
    a('L_mid:')
    softmax4(AD)
    for t in range(4):
        a(f's_waitcnt vmcnt({6 if PS and t == 0 else 3})')
        if t == 0:
            a(f's_cmp_lg_u32 {sLD}, 0\ns_cbranch_scc1 L_nopub')
            publish('v4', NSTAT * 32 + 1)
            a('L_nopub:')
        if t == 2:
            a(f's_mov_b64 exec, 1\nds_read_b32 {vE2}, {vE}\ns_mov_b64 exec, -1')

        def issue():
            if t < 2:
                if not (PS and t == 0):
                    if not P16:
                        a(f's_cmp_eq_u32 {sMODE}, 2\ns_cbranch_scc1 L_v{t}')
                    ld_tile(t + 2, SV, sCUR)
                    a(f'L_v{t}:')
                return
            if t == 2:
                a(f's_waitcnt lgkmcnt(0)\nv_readfirstlane_b32 {sA}, {vE2}\ns_mov_b32 {sMODE}, 0\ns_nop 0')
                resolve('L_sp0', sST)
                a(f's_cmp_ge_u32 {sA}, {NBIG}\ns_cbranch_scc1 L_trans')
                item_addr(sCUR, sA, sNB)
            ld_tile(t - 2, SK, sCUR)
        step(4 + t, lambda: vdot(t, RING), issue)
    a(f's_cmp_eq_u32 {sNB}, {sCB}\ns_cbranch_scc1 L_item')

    a('L_flush:')
    M, LL = f'v{TM}', f'v{TM + 1}'
    a(f'v_mov_b32 {M}, {vMC}')
    allreduce('v_max_f32', M, t3, low=False)
    a(f'v_sub_f32 {t2}, {vMC}, {M}\nv_exp_f32 {t2}, {t2}')
    a(f'v_and_b32 v{S}, 7, v0\nv_lshlrev_b32 v{S}, 5, v{S}\nv_lshrrev_b32 v{S + 1}, 4, v0\nv_lshl_add_u32 v{S}, v{S + 1}, 3, v{S}')
    a(f'v_add_u32 v{S}, {sPB}, v{S}\nv_mov_b32 v{S + 1}, {sPB}')
    a(f'v_mul_f32 {LL}, {vL}, {t2}')
    for i in range(12):
        a(f'v_pk_mul_f32 v[{ACC + 2 * i}:{ACC + 2 * i + 1}], v[{ACC + 2 * i}:{ACC + 2 * i + 1}], v[{TM + 2}:{TM + 3}] op_sel_hi:[1,0]')
    allreduce('v_add_f32', LL, t3, low=False)
    for sw, es, dl in (('v_permlane16_swap_b32', (0, 1, 4, 5), 2), ('v_permlane32_swap_b32', (0, 1), 4)):
        for i in range(3):
            for e in es:
                a(f'{sw} v{ACC + 8 * i + e}, v{ACC + 8 * i + e + dl}')
        for i in range(3):
            for e in es:
                a(f'v_add_f32 v{ACC + 8 * i + e}, v{ACC + 8 * i + e}, v{ACC + 8 * i + e + dl}')
    for i in range(3):
        for e in (0, 1):
            r = f'v{ACC + 8 * i + e}'
            a(f'v_add_f32_dpp {r}, {r}, {r} row_ror:8 {DPPM}')
    a(f'v_mov_b32 {t2}, 1')
    for i in range(3):
        a(f'ds_write_b64 v{S}, v[{ACC + 8 * i}:{ACC + 8 * i + 1}] offset:{i * 256}')
    a('s_mov_b64 exec, 1')
    a(f'ds_write_b64 v{S + 1}, v[{TM}:{TM + 1}] offset:768')
    a(f'ds_add_rtn_u32 {t2}, {vFL}, {t2} offset:{F_FL}')
    a('s_mov_b64 exec, -1')
    a(f's_cmp_lg_u32 {sCB}, 3\ns_cbranch_scc1 L_nos1')
    s1_setup(sCB)
    a('s_waitcnt lgkmcnt(0)')
    stamp(2)
    a(f'v_readfirstlane_b32 {sA}, {t2}')
    a('s_nop 1')
    a(f's_cmp_lg_u32 {sA}, 3\ns_cbranch_scc1 L_fin')
    a('L_s1:')
    for w in range(4):
        a(f'ds_read_b64 v[{10 + 2 * w}:{11 + 2 * w}], v53 offset:{w * 4 * PARTP + 768}')
    for w in range(4):
        a(f'ds_read_b128 v[{20 + 4 * w}:{23 + 4 * w}], v52 offset:{w * 4 * PARTP}')
        a(f'ds_read_b64 v[{36 + 2 * w}:{37 + 2 * w}], v51 offset:{w * 4 * PARTP + 512}')
    a('s_waitcnt lgkmcnt(8)')
    a('v_max3_f32 v18, v10, v12, v14\nv_max_f32 v18, v18, v16')
    for w in range(4):
        a(f'v_sub_f32 v{10 + 2 * w}, v{10 + 2 * w}, v18')
    for w in range(4):
        a(f'v_exp_f32 v{10 + 2 * w}, v{10 + 2 * w}')
    a('v_mul_f32 v19, v10, v11')
    for w in range(1, 4):
        a(f'v_fmac_f32 v19, v{10 + 2 * w}, v{11 + 2 * w}')
    a(f'v_max_f32 v19, {f2u(1e-30)}, v19\nv_rcp_f32 v44, v19\nv_log_f32 v19, v19')
    for w in range(4):
        a(f's_waitcnt lgkmcnt({6 - 2 * w})')
        for d, x in ((20, 20 + 4 * w), (22, 22 + 4 * w), (36, 36 + 2 * w)):
            d, x, e = f'v[{d}:{d + 1}]', f'v[{x}:{x + 1}]', f'v[{10 + 2 * w}:{11 + 2 * w}]'
            a(f'v_pk_fma_f32 {d}, {x}, {e}, {d} op_sel_hi:[1,0,1]' if w else f'v_pk_mul_f32 {d}, {x}, {e} op_sel_hi:[1,0]')
    a('v_add_f32 v18, v18, v19')
    for d in (20, 22, 36):
        a(f'v_pk_mul_f32 v[{d}:{d + 1}], v[{d}:{d + 1}], v[44:45] op_sel_hi:[1,0]')
    a('v_lshlrev_b32 v18, v50, v18\nv_bfi_b32 v59, v55, v49, v18')
    a('v_cvt_pk_bf16_f32 v56, v20, v21\nv_cvt_pk_bf16_f32 v57, v22, v23\nv_cvt_pk_bf16_f32 v58, v36, v37')
    a('s_mov_b32 exec_hi, 0')
    a(f'buffer_store_dwordx4 v[56:59], v54, {SWS}, {sB} offen {STM}')
    a('s_mov_b32 exec_hi, -1')
    if diag:
        a(f's_cmp_lt_u32 {sWAVE}, 4\ns_cbranch_scc1 L_s1x')
        stamp(5)
        a('L_s1x:')
    a(f's_cmp_ge_u32 {sWAVE}, 4\ns_cbranch_scc1 L_fin')
    a(f's_cmp_eq_u32 {sPH}, 1\ns_cbranch_scc1 L_pre4')
    a('s_branch L_disp')
    a('L_nos1:')
    a(f's_cmp_eq_u32 {sCB}, 0\ns_cselect_b32 {sA}, 2, 1\ns_add_u32 {sCB}, {sCB}, {sA}\ns_mul_i32 {sA}, {sA}, 384')
    a('s_waitcnt lgkmcnt(0)')
    if pst:
        for b, k in ((2, 3), (3, 4)):
            a(f's_cmp_lg_u32 {sCB}, {b}\ns_cbranch_scc1 L_st{k}')
            stamp(k)
            a(f'L_st{k}:')
    a(f's_add_u32 {sPB}, {sPB}, {PARTP}')
    a(f'v_add_u32 v5, {sA}, v5\nv_add_u32 {vFL}, 4, {vFL}')
    reset_state()
    a(f's_cmp_lt_u32 {sCB}, {sNB}\ns_cbranch_scc1 L_flush')
    load_q()
    a('s_waitcnt lgkmcnt(0)')
    a(f's_cmp_eq_u32 {sMODE}, 0\ns_cbranch_scc1 L_item')
    a('s_branch L_small')

    def small_claim(lab, tmp=sA):
        a(f's_waitcnt lgkmcnt(0)\nv_readfirstlane_b32 {sTA}, {vT}\ns_nop 1')
        a(f's_and_b32 {tmp}, {sTA}, 3\ns_cbranch_scc1 {lab}')
        claim(vCA, 128)
        a(f's_waitcnt vmcnt(4)\ns_branch {lab}d')
        a(f'{lab}:')
        a('s_waitcnt vmcnt(3)')
        a(f'{lab}d:')

    a('L_trans:')
    draw(F_T2)
    a(f's_add_u32 {sROT}, {sROT}, {NBIG - 768 + 3 * RB}\ns_lshl_b32 {sROT}, {sROT}, 2')
    a(f's_add_u32 {sA}, {sSB}, {sROT}\ns_and_b32 {sA}, {sA}, 1023\ns_mul_i32 {sA}, {sA}, 3072')
    a(f's_add_u32 {sSB}, {sHB}, {3 * BSTR}\ns_add_u32 {sROT}, {sROT}, 32')
    a(f's_add_u32 {sCUR}, {sSB}, {sA}')
    a(f's_mov_b32 {sMODE}, 1\ns_mov_b32 {sNB}, 3')
    ld_one(0, SK, sCUR)
    if ISS[6] == 'b':
        vdot(2, RING)
    small_claim('L_tr')
    step(7, lambda: vdot(3, RING), lambda: ld_one(1, SV, sCUR))
    stamp(6)
    a(f's_cmp_lg_u32 {sCB}, 3\ns_cbranch_scc1 L_flush')
    a('L_small:')
    a(f's_and_b32 {sA}, {sTA}, -4\ns_add_u32 {sA}, {sA}, {L_TAB2}\nv_mov_b32 {vE}, {sA}')
    a('s_waitcnt vmcnt(3)')
    a(f's_and_b32 {sA}, {sTA}, 3\ns_cbranch_scc1 L_npx')
    publish(vCA, 1)
    a('L_npx:')
    a(f'ds_read_b32 {vE2}, {vE}')
    kdot(0, RING, AD)
    a(f's_waitcnt lgkmcnt(0)\nv_readfirstlane_b32 {sA}, {vE2}\ns_nop 1')
    resolve('L_sq', sTA)
    a(f's_cmp_ge_u32 {sA}, {SMALL}\ns_cbranch_scc1 L_last')
    draw(F_T2)
    a(f's_add_u32 {sB}, {sA}, {sROT}\ns_and_b32 {sB}, {sB}, 1023\ns_mul_i32 {sB}, {sB}, 3072\ns_add_u32 {sCUR}, {sB}, {sSB}')
    ld_one(0, SK, sCUR)
    if LM:
        a('L_last:')
        softmax1(0)
        a(f's_cmp_ge_u32 {sA}, {SMALL}\ns_cbranch_scc0 L_nl\ns_waitcnt vmcnt(0)\ns_branch L_ncd\nL_nl:')
        small_claim('L_nc', sB)
        vdot(1, RING)
        a(f's_cmp_ge_u32 {sA}, {SMALL}\ns_cbranch_scc1 L_flush')
        ld_one(1, SV, sCUR)
        a('s_branch L_small')
    else:
        softmax1(0)
        small_claim('L_nc')
        vdot(1, RING)
        ld_one(1, SV, sCUR)
        a('s_branch L_small')
        a('L_last:')
        softmax1(0)
        a('s_waitcnt vmcnt(0)')
        vdot(1, RING)
        a('s_branch L_flush')
    for lab in spins:
        a(f'{lab}:')
        a(f's_mov_b64 exec, 1\nds_read_b32 {vE2}, {vE}\ns_mov_b64 exec, -1')
        a(f's_waitcnt lgkmcnt(0)\nv_readfirstlane_b32 {sA}, {vE2}\ns_nop 1')
        a(f's_cmp_eq_u32 {sA}, 0\ns_cbranch_scc1 {lab}')
        a(f's_branch {lab}r')

    a('L_fin:')
    if diag:
        a('s_waitcnt vmcnt(0)')
        stamp(7)
        a('s_mov_b64 exec, -1')
        if lstamp:
            a(f'v_mov_b32 v3, {L_FLAG}')
            lds_wait('L_stw', 'v10', 'v3', F_FL + 12, 4, 64)
            a('s_sleep 127\ns_sleep 127')
        a('s_load_dwordx2 s[8:9], s[0:1], 96')
        a('s_getreg_b32 s62, hwreg(20, 0, 4)')
        a('s_waitcnt lgkmcnt(0)')
        a('s_add_u32 s8, s8, 0x40000000\ns_addc_u32 s9, s9, 0\ns_mov_b32 s10, 0x200000\ns_mov_b32 s11, 0x20000')
        a(f's_lshl_b32 {sA}, s2, 3\ns_add_u32 {sA}, {sA}, {sWAVE}')
        a(f's_lshl_b32 {sB}, {sA}, 5\nv_mov_b32 v1, {sB}')
        a(f's_lshl_b32 {sB}, {sA}, 6\ns_add_u32 {sB}, {sB}, 0x100000\nv_mov_b32 v2, {sB}')
        a('v_mov_b32 v4, s84\nv_mov_b32 v5, s85\nv_mov_b32 v6, s98\nv_mov_b32 v7, s99')
        a(f'v_mov_b32 v8, s62\nv_mov_b32 v9, 0\nv_mov_b32 v10, s96\nv_mov_b32 v11, s97')
        for i in range(16):
            a(f'v_mov_b32 v{12 + i}, s{84 + i}')
        a('s_mov_b64 exec, 1')
        a('buffer_store_dwordx4 v[4:7], v1, s[8:11], 0 offen')
        a('buffer_store_dwordx4 v[8:11], v1, s[8:11], 0 offen offset:16')
        for i in range(4):
            a(f'buffer_store_dwordx4 v[{12 + 4 * i}:{15 + 4 * i}], v2, s[8:11], 0 offen offset:{16 * i}')
    a('L_end:')
    a('s_endpgm')

    ref = open(f'cdna_kernels/{NAME}.s.ref').read().split('\n')
    head = [x for x in ref if x.startswith(';') and '@launch' not in x and not x.startswith('; Override') and not x.startswith('; grid=')]
    out = '\n'.join(head) + f'\n; @launch grid=(256,1,1) block=(512,1,1) lds={LDS_SZ}\n'
    out += f'.amdgcn_target "amdgcn-amd-amdhsa--gfx950"\n.text\n.globl {KERN}\n.p2align 8\n.type {KERN},@function\n'
    out += a.text() + '\n'
    out += f'''.section .rodata,"a"
.p2align 6
.amdhsa_kernel {KERN}
  .amdhsa_next_free_vgpr 256
  .amdhsa_next_free_sgpr 102
  .amdhsa_accum_offset 256
  .amdhsa_group_segment_fixed_size 0
  .amdhsa_kernarg_size 104
  .amdhsa_user_sgpr_count 2
  .amdhsa_user_sgpr_kernarg_segment_ptr 1
  .amdhsa_system_sgpr_workgroup_id_x 1
.end_amdhsa_kernel
'''
    return out


if __name__ == '__main__':
    kw = eval('dict(' + (sys.argv[2] if len(sys.argv) > 2 else '') + ')')
    open(sys.argv[1], 'w').write(gen(**kw))
```

```python
import re

TRANS = ('v_exp_f32', 'v_log_f32', 'v_rcp_f32', 'v_rsq_f32', 'v_sqrt_f32', 'v_sin_f32', 'v_cos_f32')


def regs_of(tok):
    tok = tok.strip().lstrip('-')
    m = re.fullmatch(r'abs\((.*)\)', tok)
    if m:
        tok = m.group(1)
    m = re.fullmatch(r'\|(.*)\|', tok)
    if m:
        tok = m.group(1)
    m = re.fullmatch(r'([vs])(\d+)', tok)
    if m:
        return {(m.group(1), int(m.group(2)))}
    m = re.fullmatch(r'([vs])\[(\d+):(\d+)\]', tok)
    if m:
        return {(m.group(1), i) for i in range(int(m.group(2)), int(m.group(3)) + 1)}
    if tok == 'vcc':
        return {('s', 'vcc')}
    if tok == 'm0':
        return {('s', 'm0')}
    if tok == 'exec':
        return {('s', 'exec')}
    return set()


class Ins:
    def __init__(self, text):
        self.text = text
        t = text.split(';')[0].strip()
        self.label = t[:-1] if t.endswith(':') else None
        self.directive = t.startswith('.') and not self.label
        self.op = ''
        self.ops = []
        self.mods = ''
        if self.label or self.directive or not t:
            self.kind = 'none'
            self.rd, self.wr = set(), set()
            return
        parts = t.split(None, 1)
        self.op = parts[0]
        rest = parts[1] if len(parts) > 1 else ''
        toks = [x.strip() for x in re.split(r',(?![^\[]*\])', rest)] if rest else []
        if toks:
            last = toks[-1].split(None, 1)
            toks[-1] = last[0]
            self.mods = last[1] if len(last) > 1 else ''
        self.ops = toks
        op = self.op
        R = [regs_of(x) for x in toks]
        U = lambda xs: set().union(*xs) if xs else set()
        self.dpp = '_dpp' in op
        self.srcC = set()
        self.srcAB = set()
        if op.startswith('v_mfma'):
            self.kind = 'mfma'
            self.wr, self.rd = R[0], U(R[1:])
            self.srcC, self.srcAB = R[3], R[1] | R[2]
        elif op.startswith('v_smfmac'):
            self.kind = 'mfma'
            self.wr, self.rd = R[0], U(R)
            self.srcC, self.srcAB = R[0], U(R[1:])
        elif op.startswith('v_'):
            self.kind = 'valu'
            self.wr, self.rd = set(R[0]), U(R[1:])
            if op.startswith('v_permlane'):
                self.wr = R[0] | R[1]
                self.rd = R[0] | R[1]
            if op.startswith(('v_dot2c', 'v_fmac', 'v_writelane')):
                self.rd |= R[0]
            if op.startswith('v_dot2c'):
                self.srcC, self.srcAB = R[0], R[1] | R[2]
            elif op.startswith('v_dot2'):
                self.srcC, self.srcAB = R[3], R[1] | R[2]
            if self.dpp:
                self.rd |= R[0]
        elif op.startswith('buffer_'):
            self.kind = 'vmem'
            lds = bool(re.search(r'\blds\b', self.mods))
            self.lds = lds
            if 'load' in op and not lds:
                self.wr, self.rd = R[0], U(R[1:])
                if 'd16' in op:
                    self.rd |= R[0]
            elif lds:
                self.wr, self.rd = set(), U(R) | {('s', 'm0')}
            elif 'atomic' in op:
                self.wr, self.rd = (R[0] if 'sc0' in self.mods else set()), U(R)
            else:
                self.wr, self.rd = set(), U(R)
            self.data = R[0] if ('store' in op) else set()
        elif op.startswith('ds_'):
            self.kind = 'ds'
            if op.startswith(('ds_read', 'ds_bpermute', 'ds_swizzle')) or '_rtn' in op:
                self.wr, self.rd = R[0], U(R[1:])
            else:
                self.wr, self.rd = set(), U(R)
        elif op.startswith('s_'):
            self.kind = 'salu'
            if op.startswith(('s_cmp', 's_cbranch', 's_branch', 's_waitcnt', 's_nop', 's_barrier', 's_sleep', 's_endpgm', 's_setprio')):
                self.wr, self.rd = set(), U(R)
            else:
                self.wr, self.rd = set(R[0]), U(R[1:])
        else:
            raise ValueError('unknown instruction: ' + text)

    def states(self):
        if self.kind == 'none':
            return 0
        if self.op == 's_nop':
            return int(self.ops[0], 0) + 1
        return 1


def need(p, c):
    n = 0
    vw = {r for r in p.wr if r[0] == 'v'}
    sw = {r for r in p.wr if r[0] == 's'}
    if p.kind == 'valu':
        hit = vw & c.rd
        if hit:
            if c.kind == 'valu' and (c.dpp or c.op.startswith('v_permlane')):
                n = max(n, 2)
            if c.kind == 'valu' and c.op.startswith(('v_readlane', 'v_readfirstlane')):
                n = max(n, 1)
            if c.kind == 'mfma':
                n = max(n, 2)
            if p.op.startswith(TRANS) and not c.op.startswith(TRANS):
                n = max(n, 1)
        if p.op.startswith('v_dot2'):
            if c.op == p.op:
                if vw & c.srcAB:
                    n = max(n, 3)
            elif vw & (c.rd | c.wr):
                n = max(n, 3)
        if sw & c.rd:
            if c.kind == 'valu':
                n = max(n, 4 if c.op.startswith(('v_readlane', 'v_writelane')) else 2)
            if c.kind == 'vmem':
                n = max(n, 5)
    if p.kind == 'mfma':
        if c.kind == 'mfma':
            if vw & c.srcAB:
                n = max(n, 8)
            if vw & c.srcC and (vw != c.srcC or p.op != c.op):
                n = max(n, 6)
        elif vw & (c.rd | c.wr):
            n = max(n, 8)
        if c.kind == 'valu' and (p.srcC & c.wr):
            n = max(n, 3)
    if p.kind == 'vmem' and ('x4' in p.op or 'x3' in p.op) and p.data & c.wr:
        n = max(n, 2)
    if p.kind == 'salu' and ('s', 'm0') in p.wr and c.kind == 'vmem' and c.lds:
        n = max(n, 1)
    return n


def pad(lines):
    ins = [Ins(x) for x in lines]
    changed = True
    while changed:
        changed = False
        srcs = {}
        for i, x in enumerate(ins):
            if x.op.startswith(('s_cbranch', 's_branch')):
                srcs.setdefault(x.ops[0], []).append(i)

        def short(i, c, dist, seen):
            worst = 0
            while i >= 0 and dist < 9:
                x = ins[i]
                if x.label:
                    for s in srcs.get(x.label, []):
                        if (s, dist) not in seen:
                            seen.add((s, dist))
                            worst = max(worst, short(s, c, dist, seen))
                    j = i - 1
                    while j >= 0 and ins[j].kind == 'none' and not ins[j].label:
                        j -= 1
                    if j >= 0 and ins[j].op in ('s_branch', 's_endpgm'):
                        return worst
                elif x.kind != 'none':
                    worst = max(worst, need(x, c) - dist)
                    dist += x.states()
                i -= 1
            return worst

        for i, c in enumerate(ins):
            if c.kind in ('none',):
                continue
            w = short(i - 1, c, 0, set())
            if w > 0:
                ins.insert(i, Ins(f's_nop {w - 1}'))
                changed = True
                break
    return [x.text for x in ins]


class Asm:
    def __init__(self):
        self.l = []

    def __call__(self, text):
        for line in text.split('\n'):
            line = line.strip()
            if line:
                self.l.append(line)

    def text(self):
        out = []
        for x in pad(self.l):
            out.append(x if x.endswith(':') or x.startswith('.') else '    ' + x)
        return '\n'.join(out)
```

```python
import os, sys, struct
from asmlib import Asm

NAME = 'sequential_preLN__mha_block_cached__dense_activation_gelu__decode'
KERN = NAME + '_kernel'


def f2u(x):
    return '0x%08x' % struct.unpack('<I', struct.pack('<f', x))[0]


NB_KV = 402653184
PROB = 3145728
BSTR = 100663296
ITEM = 12288
QP, OP, HP, CT, AP, WS_SZ = 0x0, 0x100000, 0x200000, 0x1C0000, 0x380000, 0x400000
HPB, APB = 20480, 6144
REG = 24576
L_Q = 98304
L_PART = 99840
PARTP = 784
L_FLAG = 112384
F_Q, F_NONCE, F_W, F_T1, F_T2, F_FL, F_ST, F_H = 0, 4, 8, 12, 16, 16, 32, 48
L_ACT = 112448
L_TAB = 118592
L_TAB2 = L_TAB + 1024
LDS_SZ = 120128
SK, SV, SWS, SDBG, SX, SWQ, SWO, SW1, SW2, SOUT, SB1, SB2 = [f's[{i}:{i+3}]' for i in range(8, 56, 4)]
SRD = {'K': (8, 8, NB_KV), 'V': (12, 16, NB_KV), 'WS': (16, 96, WS_SZ), 'DBG': (20, 88, 256), 'X': (24, 0, 5120),
       'WQ': (28, 24, 7864320), 'WO': (32, 32, 7864320), 'W1': (36, 48, 1966080), 'W2': (40, 64, 1966080),
       'OUT': (44, 80, 5120), 'B1': (48, 56, 3072), 'B2': (52, 72, 1280)}
sWAVE, sH, sJ = 's3', 's4', 's5'
sCUR, sNEXT, sHB, sCB, sNB, sPB, sMODE, sSB = 's56', 's57', 's58', 's59', 's60', 's61', 's6', 's7'
sBAT, sROLE, sIN, sOUTA, sACT, sXO = 's56', 's57', 's58', 's59', 's60', 's61'
sT = ['s64', 's65', 's66', 's67']
sSPIN, sST, sHI, sLOG2E = 's68', 's69', 's70', 's71'
sA, sB, sC, sD = 's72', 's73', 's74', 's75'
sPH = 's79'
SPIN = 1 << 14
DPPM = 'row_mask:0xf bank_mask:0xf'


def gen(diag=False, pol='nt', pst=False, PWIN=3, WWIN=1, SMALL=96, SLP=32, FSLP=2, NSTAT=28, pp2=7, pp4=4, ysl=0, hsl=0, early=1, SLP0=100, QSL=70, dbt=False, pnt='', sb=3, noq=False, WSL=0, PSL=0, RH=4, RB=0, exp=0, QS2=40, PRE=1, lstamp=True, mk=7, D4=1, G4=6, D5=1, G5=6, RC2=1, RC4=1, YS3=4, PAR=False, CTA=0x340000, CTS=4352, STM='sc1', LDM='sc1', OUM='', ISS='bbbbbbbb', PS=True, HM=5, FS=False, XC=True, PB=0, LM=True, EN=True, NWG=6, XS=True, P16=True, PO=0, QS3=0, PL2=0, PL4=0, PL5=0, PLM='', W4=False, FG=False, JX=0, AM='', ALM='sc1', ASW=12, LOC=True, NOA=False, W4S=0, GF=3, EC=True, FD=0, YF=38, YW=18, FLB=0x3F0000, FST=4352):
    CT = CTA
    a = Asm()
    nstamp = [0]

    def stamp(i):
        if diag:
            a(f's_memrealtime s[{84 + 2 * i}:{85 + 2 * i}]')

    def bstamp(i):
        if diag and sb < 3:
            nstamp[0] += 1
            a(f's_cmp_lg_u32 {sBAT}, {sb}\ns_cbranch_scc1 L_bs{nstamp[0]}')
            stamp(i)
            a(f'L_bs{nstamp[0]}:')
        else:
            stamp(i)

    def dstamp(i, op='umax'):
        if dbt:
            a('s_memrealtime s[84:85]\ns_mov_b64 s[86:87], exec\ns_mov_b64 exec, 1\ns_waitcnt lgkmcnt(0)')
            a('v_mov_b32 v254, s84\nv_mov_b32 v255, 0')
            if op == 'umin':
                a('v_sub_u32 v254, 0, v254')
            a(f'buffer_atomic_umax v254, v255, {SDBG}, 0 offen offset:{4 * i} sc1')
            a('s_mov_b64 exec, s[86:87]')

    def allreduce(op, r, t, low=True):
        if low:
            a(f'{op}_dpp {r}, {r}, {r} quad_perm:[1,0,3,2] {DPPM}')
            a(f'{op}_dpp {r}, {r}, {r} quad_perm:[2,3,0,1] {DPPM}')
            a(f'{op}_dpp {r}, {r}, {r} row_half_mirror {DPPM}')
        a(f'{op}_dpp {r}, {r}, {r} row_ror:8 {DPPM}')
        for sw in ('v_permlane16_swap_b32', 'v_permlane32_swap_b32'):
            a(f'v_mov_b32 {t}, {r}')
            a(f'{sw} {r}, {t}')
            a(f'{op} {r}, {r}, {t}')

    def rbf(r):
        a(f'v_cvt_pk_bf16_f32 {r}, {r}, {r}')
        a(f'v_and_b32 {r}, {sHI}, {r}')

    def tag(base, n, vM):
        for i in range(n):
            a(f'v_bfi_b32 v{base + i}, {vM}, {sT[i % 4]}, v{base + i}')

    def check(base, n, chk, label, done, sleep=True, tags=None, mask='v9', step=1):
        tags = tags or sT
        c2 = f'v{int(chk[1:]) + 1}'
        a(f'v_xor_b32 {chk}, {tags[0]}, v{base}\nv_xor_b32 {c2}, {tags[1 % len(tags)]}, v{base + step}')
        for i in range(2, n):
            c = chk if i % 2 == 0 else c2
            a(f'v_bitop3_b32 {c}, {c}, v{base + i * step}, {tags[i % len(tags)]} bitop3:0xf6')
        a(f'v_bitop3_b32 {chk}, {chk}, {c2}, {mask} bitop3:0xa8')
        a(f'v_cmp_ne_u32 vcc, 0, {chk}')
        a(f's_cbranch_vccz {done}')
        a(f's_sub_u32 {sSPIN}, {sSPIN}, 1')
        a(f's_cbranch_scc1 {done}')
        if sleep:
            a(f's_cmp_eq_u32 {sBAT}, 3\ns_cbranch_scc1 {label}')
            a(f's_sleep {SLP}')
            if SLP0:
                a(f's_cmp_lg_u32 {sBAT}, 0\ns_cbranch_scc1 {label}\ns_sleep {SLP0}')
        a(f's_branch {label}')
        a(f'{done}:')
        a(f's_mov_b32 {sSPIN}, {SPIN}')

    def gather(lab, loads, tags, mask, plain=0, sw=None):
        M = ['s[8:9]', 's[10:11]', 's[12:13]', 's[14:15]', 's[28:29]']
        n = len(loads)
        a(f'{lab}:')
        if plain:
            a(f's_bitcmp0_b32 {plain}, {sBAT}\ns_cbranch_scc1 {lab}m')
            for x, _ in loads:
                a(x.replace('sc1', PLM))
            a(f's_branch {lab}w')
            a(f'{lab}m:')
        for i in range(n):
            a(f's_mov_b64 {M[i]}, -1')
        a(f'{lab}l:')
        for i, (x, _) in enumerate(loads):
            a(f's_wqm_b64 exec, {M[i]}')
            a(x.replace('sc1', LDM))
        a('s_mov_b64 exec, -1')
        a(f'{lab}w:')
        a('s_waitcnt vmcnt(0)')
        for k in range(len(loads[0][1])):
            for i, (_, regs) in enumerate(loads):
                t = tags[k % len(tags)]
                a(f'v_bitop3_b32 v{10 + i}, v{10 + i}, v{regs[k]}, {t} bitop3:0xf6' if k else f'v_xor_b32 v{10 + i}, {t}, v{regs[0]}')
        for i in range(n):
            a(f'v_and_b32 v{10 + i}, {mask}, v{10 + i}')
        for i in range(n):
            a(f'v_cmp_ne_u32 {M[i]}, 0, v{10 + i}')
        a('s_nop 1')
        a(f's_or_b64 vcc, {M[0]}, {M[1]}')
        for i in range(2, n):
            a(f's_or_b64 vcc, vcc, {M[i]}')
        a(f's_cbranch_scc0 {lab}d')
        a(f's_sub_u32 {sSPIN}, {sSPIN}, 1\ns_cbranch_scc1 {lab}d')
        if sw:
            a(f's_cmp_lt_u32 {sSPIN}, {SPIN - ASW}\ns_cselect_b32 {sw[0]}, {sw[1]}, {sw[0]}')
        a(f's_cmp_eq_u32 {sBAT}, 3\ns_cbranch_scc1 {lab}l')
        a(f's_sleep {SLP}\ns_branch {lab}l')
        a(f'{lab}d:')
        a(f's_mov_b32 {sSPIN}, {SPIN}')

    def get_nonce(lab, t):
        a(f'{lab}:')
        a(f'v_mov_b32 {t}, {L_FLAG}')
        a(f'ds_read_b32 {t}, {t} offset:{F_NONCE}')
        a('s_waitcnt lgkmcnt(0)')
        a(f'v_readfirstlane_b32 {sT[0]}, {t}')
        a('s_nop 1')
        a(f's_cmp_eq_u32 {sT[0]}, 0\ns_cbranch_scc1 {lab}')
        for i in (1, 2, 3):
            a(f's_lshr_b32 {sT[i]}, {sT[0]}, {8 * i}')

    def lds_wait(lab, t, vaddr, off, val, slp):
        a(f'{lab}:')
        a(f'ds_read_b32 {t}, {vaddr} offset:{off}')
        a('s_waitcnt lgkmcnt(0)')
        a(f'v_cmp_gt_u32 vcc, {val}, {t}')
        if slp:
            a(f's_cbranch_vccz {lab}d')
            a(f's_sleep {slp}\ns_branch {lab}')
            a(f'{lab}d:')
        else:
            a(f's_cbranch_vccnz {lab}')

    def lds_inc(vaddr, off, one):
        a('s_mov_b64 exec, 1')
        a(f'ds_add_u32 {vaddr}, {one} offset:{off}')
        a('s_mov_b64 exec, -1')

    def pub_exec(n, soff, stride):
        if W4:
            a(f's_cmp_eq_u32 {sBAT}, 3\ns_cselect_b32 {sA}, -1, 0x1111')
            return
        a(f's_add_u32 {sA}, {soff}, {4 * stride}')
        a(f's_cmp_eq_u32 {sBAT}, {3 if n > 1 else 4}\ns_cselect_b64 exec, -1, 0xffff')

    def pub_addr(v, g, t, stride):
        if W4:
            a(f'v_and_b32 {t}, 3, v0\nv_lshl_add_u32 {t}, {g}, 2, {t}\nv_and_b32 {t}, 7, {t}\nv_mul_u32_u24 {t}, {stride}, {t}')
            a(f'v_and_b32 {v}, 12, v0\nv_lshl_add_u32 {v}, {v}, 2, {t}')
        else:
            a(f'v_mul_u32_u24 {t}, {stride}, {g}\nv_and_b32 {v}, 15, v0\nv_lshl_add_u32 {v}, {v}, 2, {t}')

    def pub_store(n, v, vaddr, soff, lab):
        if W4:
            assert n == 8
            for k in range(4):
                a(f'v_mov_b32_dpp v{16 + k}, {v} quad_perm:[{k},{k},{k},{k}] {DPPM}')
            a(f's_mov_b32 exec_lo, {sA}\ns_mov_b32 exec_hi, 0')
            a(f'buffer_store_dwordx4 v[16:19], {vaddr}, {SWS}, {soff} offen {STM}')
            return
        a(f'buffer_store_dword {v}, {vaddr}, {SWS}, {soff} offen {STM}')
        if n == 8:
            a(f's_cbranch_scc0 {lab}')
            a(f'buffer_store_dword {v}, {vaddr}, {SWS}, {sA} offen {STM}')
            a(f'{lab}:')

    def copy_off(n, stride, inc):
        if n == 1:
            return inc
        r = sB if stride == 4 * HPB else sD
        a(f's_and_b32 {r}, {sJ}, {n - 1}\ns_mul_i32 {r}, {r}, {stride}\ns_cmp_eq_u32 {sBAT}, 2\ns_cselect_b32 {r}, {r}, 0\ns_add_u32 {r}, {r}, {inc}')
        return r

    def set_exec(m):
        a(f's_mov_b32 exec_lo, {m:#x}\ns_mov_b32 exec_hi, {m:#x}')

    sP, sQO = 's80', 's81'

    def srd(*ks):
        for k in ks:
            r, off, sz = SRD[k]
            a(f's_mov_b32 s{r + 2}, {sz}\ns_mov_b32 s{r + 3}, 0x20000')

    def kload(*ks):
        for k in ks:
            r, off, _ = SRD[k]
            a(f's_load_dwordx2 s[{r}:{r + 1}], s[0:1], {off}')

    def consts():
        a(f's_mov_b32 {sHI}, 0xffff0000\ns_mov_b32 {sLOG2E}, {f2u(1.4426950408889634)}')
        a(f's_mov_b32 {sSPIN}, {SPIN}')

    def lds_init(v, sx, sy):
        z, p, q, r = v, f'v{v + 4}', f'v{v + 5}', f'v{v + 6}'
        for k in range(4):
            a(f'v_mov_b32 v{z + k}, 0')
        a(f'v_and_b32 {p}, 15, v0\nv_lshlrev_b32 {p}, 2, {p}\nv_add_u32 {p}, {L_FLAG}, {p}')
        a(f'ds_write_b32 {p}, v{z}')
        a(f'v_lshlrev_b32 {p}, 4, v0\nv_lshlrev_b32 {q}, 3, v0\nv_add_u32 {r}, {L_TAB}, {p}\nv_add_u32 {q}, {L_TAB2}, {q}')
        a(f'ds_write_b128 {r}, v[{z}:{z + 3}]\nds_write_b64 {q}, v[{z}:{z + 1}]')
        a(f's_lshr_b32 {sx}, {sJ}, 2\ns_mul_i32 {sx}, {sx}, 240\ns_lshl_b32 {sy}, {sJ}, 2\ns_add_u32 {sy}, {sy}, 1\ns_add_u32 {sx}, {sx}, {sy}')
        a(f'v_add_u32 {q}, {sx}, {p}\nv_lshlrev_b32 {p}, 5, v0\nv_add_u32 {p}, {sy}, {p}')
        a(f'v_cmp_gt_u32 vcc, 16, v0\nv_cndmask_b32 {p}, {p}, {q}, vcc')
        a(f'v_cmp_gt_u32 vcc, {NSTAT}, v0\nv_cndmask_b32 {p}, 0, {p}, vcc')
        a(f'v_lshlrev_b32 {q}, 2, v0\nv_add_u32 {q}, {L_TAB}, {q}')
        a(f'ds_write_b32 {q}, {p}')

    def nonce_store(sx, va, vb):
        a(f'v_lshlrev_b32 {va}, 6, v0\ns_waitcnt lgkmcnt(0)')
        a(f's_mul_i32 {sx}, s62, 0x9e3779b1\ns_or_b32 {sx}, {sx}, 1\nv_mov_b32 {vb}, {sx}')
        a('s_mov_b64 exec, 15')
        a(f'buffer_store_dword {vb}, {va}, {SDBG}, 0 offen sc1')
        a('s_mov_b64 exec, -1')

    a(f'{KERN}:')
    a('s_cmp_ge_u32 s2, 256\ns_cbranch_scc1 L_end')
    if EN:
        kload('X', 'WQ', 'K')
        a('v_lshrrev_b32 v1, 6, v0\nv_and_b32 v0, 63, v0')
        a(f'v_readfirstlane_b32 {sWAVE}, v1')
        stamp(0)
        a(f's_and_b32 {sJ}, s2, 7\ns_lshr_b32 {sH}, s2, 3')
        a(f's_cmp_ge_u32 {sWAVE}, 4\ns_cbranch_scc1 L_stream')
        srd('X', 'WQ')
    else:
        kload('X', 'WQ', 'K', 'DBG', 'WS', 'V', 'WO', 'W1', 'W2', 'OUT', 'B1', 'B2')
        a('s_memrealtime s[62:63]')
        stamp(0)
        a('v_lshrrev_b32 v1, 6, v0\nv_and_b32 v0, 63, v0')
        a(f'v_readfirstlane_b32 {sWAVE}, v1')
        srd(*SRD)
        a(f's_and_b32 {sJ}, s2, 7')
        if HM:
            a(f's_mul_i32 {sH}, {sJ}, {8 * HM}\ns_add_u32 s2, s2, {sH}\ns_and_b32 s2, s2, 255')
        a(f's_lshr_b32 {sH}, s2, 3')
        consts()
        a(f's_cmp_ge_u32 {sWAVE}, 4\ns_cbranch_scc1 L_stream')
        a(f's_cmp_lg_u32 {sWAVE}, 3\ns_cbranch_scc1 L_h0')
        lds_init(12, sA, sB)
        a('s_cmp_lg_u32 s2, 0\ns_cbranch_scc1 L_h0')
        nonce_store(sB, 'v7', 'v5')

    a('L_h0:')
    if XC:
        a('v_lshrrev_b32 v2, 2, v0\nv_and_b32 v1, 3, v2\nv_mul_u32_u24 v1, 1280, v1\nv_lshrrev_b32 v4, 4, v0')
        a('v_and_b32 v3, 3, v0\nv_lshl_add_u32 v3, v4, 2, v3\nv_lshl_add_u32 v3, v3, 4, v1\nv_lshl_add_u32 v4, v4, 3, v1')
    else:
        a('v_and_b32 v1, 3, v0\nv_mul_u32_u24 v1, 1280, v1\nv_lshrrev_b32 v2, 2, v0\nv_mul_u32_u24 v3, 80, v2\nv_add_u32 v3, v3, v1')
        a('v_lshrrev_b32 v4, 4, v0\nv_lshl_add_u32 v4, v4, 3, v1')
    a('v_lshrrev_b32 v5, 3, v0\nv_mul_u32_u24 v5, 12288, v5\nv_and_b32 v6, 7, v0\nv_lshl_add_u32 v5, v6, 4, v5')
    a(f's_add_u32 {sP}, {sJ}, {sH}\ns_and_b32 {sP}, {sP}, 7')
    a(f's_and_b32 {sD}, {sP}, 1\ns_lshl_b32 {sD}, {sD}, 2\ns_add_u32 {sD}, {sD}, {sWAVE}')
    a(f's_mul_i32 {sA}, {sD}, 160')
    a(f's_mul_i32 {sB}, {sD}, {80 * 12288}\ns_mul_i32 {sC}, {sH}, 384\ns_add_u32 {sB}, {sB}, {sC}')
    a(f's_lshr_b32 {sC}, {sP}, 1\ns_lshl_b32 {sC}, {sC}, 7\ns_add_u32 {sB}, {sB}, {sC}')
    a(f's_mul_i32 {sC}, {sWAVE}, {REG}\ns_mul_i32 {sQO}, {sH}, 6144')
    a('s_waitcnt lgkmcnt(0)')
    if PB == 1:
        a('s_barrier')
    a(f's_cmp_ge_u32 {sP}, {0 if exp & 2 else 6}\ns_cbranch_scc1 L_nold')
    if XS:
        a(f's_cmp_lg_u32 {sWAVE}, 3\ns_cbranch_scc1 L_nox')
    for i in range(5):
        a(f'buffer_load_dwordx4 v[{20 + 4 * i}:{23 + 4 * i}], v3, {SX}, 0 offen offset:{i * (256 if XC else 16)}')
    for i in range(0 if XS else 5):
        a(f'buffer_load_dwordx2 v[{10 + 2 * i}:{11 + 2 * i}], v4, {SX}, {sA} offen offset:{i * 32}')
    a('L_nox:')
    for u in range(10):
        if PB == 2 + u:
            a('s_barrier')
        a(f's_mov_b32 m0, {sC}')
        a(f'buffer_load_dwordx4 v5, {SWQ}, {sB} offen nt lds')
        if u < 9:
            a(f's_add_u32 {sB}, {sB}, {8 * 12288}\ns_add_u32 {sC}, {sC}, 1024')
    if PB >= 2:
        a('s_branch L_nob')
    a('L_nold:')
    if PB != 1:
        a('s_barrier')
    a('L_nob:')
    if EN:
        kload('DBG', 'WS', 'WO', 'W1', 'W2', 'OUT', 'B1', 'B2')
        srd('DBG', 'WS', 'WO', 'W1', 'W2', 'OUT', 'B1', 'B2')
        consts()
        a('s_waitcnt lgkmcnt(0)')
    a(f's_cmp_lg_u32 {sWAVE}, {1 if XS else 3}\ns_cbranch_scc1 L_h1')
    for i in (3, 0, 1, 2):
        a(f's_load_dword {sT[0]}, s[20:21], {64 * i}')
        a('s_waitcnt lgkmcnt(0)')
        a(f's_cmp_lg_u32 {sT[0]}, 0\ns_cbranch_scc1 L_ngot')
    a('v_mov_b32 v7, 0')
    a('L_nv:')
    a(f'buffer_load_dword v6, v7, {SDBG}, 0 offen sc1')
    a('s_waitcnt vmcnt(0)')
    a(f'v_readfirstlane_b32 {sT[0]}, v6')
    a(f's_sub_u32 {sSPIN}, {sSPIN}, 1\ns_cselect_b32 {sT[0]}, 1, {sT[0]}')
    a(f's_cmp_eq_u32 {sT[0]}, 0\ns_cbranch_scc1 L_nv')
    a(f's_mov_b32 {sSPIN}, {SPIN}')
    a('L_ngot:')
    a(f'v_mov_b32 v6, {sT[0]}\nv_mov_b32 v7, {L_FLAG}')
    a(f'ds_write_b32 v7, v6 offset:{F_NONCE}')
    a('L_h1:')
    a(f's_cmp_ge_u32 {sP}, 6\ns_cbranch_scc1 L_nop')
    a(f's_or_b32 {sB}, {sP}, {sWAVE}\ns_cbranch_scc1 L_noct')
    a(f's_mul_i32 {sB}, {sH}, {CTS}\ns_add_u32 {sB}, {sB}, {CT}')
    a('v_mov_b32 v6, 0\nv_lshlrev_b32 v7, 7, v0\ns_mov_b64 exec, 3')
    a(f'buffer_store_dword v6, v7, {SWS}, {sB} offen sc1')
    a('s_mov_b64 exec, -1')
    a('L_noct:')
    if exp & 2:
        a('s_branch L_fin')
    L_XF = L_TAB2 + 504
    if XS:
        a(f's_cmp_lg_u32 {sWAVE}, 3\ns_cbranch_scc1 L_xw')
    a('s_waitcnt vmcnt(10)')
    stamp(1)
    NX, XB = (20, 20) if XS else (10, 10)
    a(f's_mov_b32 {sD}, 0x3f803f80')
    for i in range(20):
        acc = f'v{6 + i % 2}'
        a(f'v_dot2_f32_bf16 {acc}, v{20 + i}, {sD}, {acc if i >= 2 else 0}')
    for i in range(20):
        a(f'v_lshlrev_b32 v{40 + 2 * i}, 16, v{20 + i}\nv_and_b32 v{41 + 2 * i}, {sHI}, v{20 + i}')
    a('v_add_f32 v6, v6, v7')

    def red4(r, t):
        if XC:
            a(f'v_add_f32_dpp {r}, {r}, {r} quad_perm:[1,0,3,2] {DPPM}')
            a(f'v_add_f32_dpp {r}, {r}, {r} quad_perm:[2,3,0,1] {DPPM}')
            for sw in ('v_permlane16_swap_b32', 'v_permlane32_swap_b32'):
                a(f'v_mov_b32 {t}, {r}\n{sw} {r}, {t}\nv_add_f32 {r}, {r}, {t}')
            return
        a(f'v_add_f32_dpp {r}, {r}, {r} row_ror:4 {DPPM}')
        allreduce('v_add_f32', r, t, low=False)
    red4('v6', 'v7')
    a(f'v_mul_f32 v6, {f2u(1 / 640)}, v6')
    DV, VA = (80, 10) if XS else (40, 20)
    for i in range(20):
        a(f'v_pk_add_f32 v[{DV + 2 * i}:{DV + 1 + 2 * i}], v[{40 + 2 * i}:{41 + 2 * i}], v[6:7] op_sel_hi:[1,0] neg_lo:[0,1] neg_hi:[0,1]')
    for i in range(20):
        d = f'v[{DV + 2 * i}:{DV + 1 + 2 * i}]'
        acc = f'v[{VA + 2 * (i % 2)}:{VA + 1 + 2 * (i % 2)}]'
        a(f'v_pk_mul_f32 {acc}, {d}, {d}' if i < 2 else f'v_pk_fma_f32 {acc}, {d}, {d}, {acc}')
    rbf('v6')
    for i in range(0 if XS else 10):
        a(f'v_lshlrev_b32 v{40 + 2 * i}, 16, v{10 + i}\nv_and_b32 v{41 + 2 * i}, {sHI}, v{10 + i}')
    a(f'v_add_f32 v{VA}, v{VA}, v{VA + 1}\nv_add_f32 v{VA + 2}, v{VA + 2}, v{VA + 3}\nv_add_f32 v8, v{VA}, v{VA + 2}')
    red4('v8', 'v9')
    for i in range(NX):
        a(f'v_pk_add_f32 v[{40 + 2 * i}:{41 + 2 * i}], v[{40 + 2 * i}:{41 + 2 * i}], v[6:7] op_sel_hi:[1,0] neg_lo:[0,1] neg_hi:[0,1]')
    a(f'v_mul_f32 v8, {f2u(1 / 640)}, v8')
    rbf('v8')
    a(f'v_add_f32 v8, {f2u(1e-5)}, v8')
    rbf('v8')
    a('v_sqrt_f32 v8, v8')
    for i in range(NX):
        a(f'v_cvt_pk_bf16_f32 v{XB + i}, v{40 + 2 * i}, v{41 + 2 * i}')
    rbf('v8')
    a('v_rcp_f32 v8, v8')
    for i in range(NX):
        a(f'v_lshlrev_b32 v{40 + 2 * i}, 16, v{XB + i}\nv_and_b32 v{41 + 2 * i}, {sHI}, v{XB + i}')
    for i in range(NX):
        a(f'v_pk_mul_f32 v[{40 + 2 * i}:{41 + 2 * i}], v[{40 + 2 * i}:{41 + 2 * i}], v[8:9] op_sel_hi:[1,0]')
    for i in range(NX):
        a(f'v_cvt_pk_bf16_f32 v{XB + i}, v{40 + 2 * i}, v{41 + 2 * i}')
    if XS:
        a(f'v_add_u32 v3, {L_PART}, v3\nv_mov_b32 v6, {L_XF}\nv_mov_b32 v7, 1')
        for i in range(5):
            a(f'ds_write_b128 v3, v[{20 + 4 * i}:{23 + 4 * i}] offset:{i * 256}')
        a('ds_write_b32 v6, v7')
        a('L_xw:')
        a(f's_add_u32 {sA}, {sA}, {L_PART}\nv_add_u32 v4, {sA}, v4\nv_mov_b32 v6, {L_XF}')
        lds_wait('L_xv', 'v7', 'v6', 0, 1, 1)
        for i in range(5):
            a(f'ds_read_b64 v[{10 + 2 * i}:{11 + 2 * i}], v4 offset:{i * 32}')
    a(f'v_and_b32 v1, 3, v0\nv_lshlrev_b32 v5, 7, v2\nv_lshl_add_u32 v5, v1, 3, v5')
    a(f's_mul_i32 {sC}, {sWAVE}, {REG}\nv_add_u32 v5, {sC}, v5')
    a('v_mov_b32 v9, 0xff\nv_lshlrev_b32 v8, 4, v0')
    get_nonce('L_np0', 'v6')
    stamp(2)
    a('s_waitcnt vmcnt(0)')
    stamp(3)
    for qs in ((4,), (0, 1), (2, 3)):
        for T in range(4):
            for q in qs:
                r = 20 + T * 12 + q * 2
                a(f'ds_read_b64_tr_b16 v[{r}:{r + 1}], v5 offset:{q * 2048 + T * 32}')
    a(f's_lshl_b32 {sB}, {sP}, 10\ns_add_u32 {sB}, {sB}, {sQO}')
    a(f's_lshl_b32 {sC}, {sWAVE}, 10\nv_add_u32 v7, {L_ACT}, v8\nv_add_u32 v6, {sC}, v7')
    if XC:
        a(f's_add_u32 {sC}, {sC}, {L_ACT}\nv_and_b32 v6, 0xf0, v8\nv_lshrrev_b32 v3, 4, v0\nv_lshl_add_u32 v6, v3, 2, v6\nv_add_u32 v6, {sC}, v6')
    a(f'v_mov_b32 v3, {L_TAB2 + 508}\nv_mov_b32 v4, 1')
    a('s_waitcnt lgkmcnt(15)')
    for T in range(4):
        r, d = 20 + T * 12, 68 + T * 4
        a(f'v_mfma_f32_16x16x16_bf16 v[{d}:{d + 3}], v[18:19], v[{r + 8}:{r + 9}], 0')
    for kk in range(2):
        a(f's_waitcnt lgkmcnt({8 - 8 * kk})')
        for T in range(4):
            r, d = 20 + T * 12 + 4 * kk, 68 + T * 4
            a(f'v_mfma_f32_16x16x32_bf16 v[{d}:{d + 3}], v[{10 + 4 * kk}:{13 + 4 * kk}], v[{r}:{r + 3}], v[{d}:{d + 3}]')
    if XC:
        a('ds_write2_b32 v6, v68, v72 offset0:0 offset1:64\nds_write2_b32 v6, v76, v80 offset0:128 offset1:192')
    else:
        a('s_mov_b64 exec, 0xffff')
        for T in range(4):
            a(f'ds_write_b128 v6, v[{68 + T * 4}:{71 + T * 4}] offset:{T * 256}')
    a('s_mov_b64 exec, 1\nds_add_rtn_u32 v4, v3, v4\ns_mov_b64 exec, -1')
    a(f's_waitcnt lgkmcnt(0)\nv_readfirstlane_b32 {sA}, v4\ns_nop 1')
    a(f's_cmp_lg_u32 {sA}, 3\ns_cbranch_scc1 L_qc')
    for w in range(4):
        a(f'ds_read_b128 v[{20 + 4 * w}:{23 + 4 * w}], v7 offset:{w * 1024}')
    a('s_waitcnt lgkmcnt(2)')
    a('v_pk_add_f32 v[20:21], v[20:21], v[24:25]\nv_pk_add_f32 v[22:23], v[22:23], v[26:27]')
    a('s_waitcnt lgkmcnt(0)')
    a('v_pk_add_f32 v[28:29], v[28:29], v[32:33]\nv_pk_add_f32 v[30:31], v[30:31], v[34:35]')
    a('v_pk_add_f32 v[36:37], v[20:21], v[28:29]\nv_pk_add_f32 v[38:39], v[22:23], v[30:31]')
    tag(36, 4, 'v9')
    a(f'buffer_store_dwordx4 v[36:39], v8, {SWS}, {sB} offen sc1')
    stamp(4)
    a('s_branch L_qc')
    a('L_nop:')
    a('v_mov_b32 v9, 0xff\nv_lshlrev_b32 v8, 4, v0')
    get_nonce('L_np1', 'v6')
    if exp & 2:
        a('s_branch L_fin')
    if QSL:
        a(f's_sleep {QSL}')
    a('L_qc:')
    a(f'v_mov_b32 v3, {L_FLAG}\nv_mov_b32 v4, 1')
    a(f's_cmp_eq_u32 {sWAVE}, 3\ns_cbranch_scc1 L_role')
    a(f's_lshl_b32 {sB}, {sWAVE}, 11\ns_add_u32 {sB}, {sB}, {sQO}')
    if QS2:
        a(f's_sleep {QS2}')
    if QS3:
        a(f's_branch L_qg\nL_qgs:\ns_sleep {QS3}')
    a('L_qg:')
    for m in range(2):
        a(f'buffer_load_dwordx4 v[{20 + 4 * m}:{23 + 4 * m}], v8, {SWS}, {sB} offen offset:{m * 1024} sc1')
    a('s_waitcnt vmcnt(0)')
    check(20, 8, 'v10', 'L_qg' + ('s' if QS3 else ''), 'L_qgd', sleep=False)
    a(f's_mov_b32 {sD}, 0x80')
    for i in range(8):
        a(f'v_bfi_b32 v{20 + i}, v9, {sD}, v{20 + i}')
    for i in range(4):
        a(f'v_add_f32 v{20 + i}, v{20 + i}, v{24 + i}')
    a('v_cvt_pk_bf16_f32 v20, v20, v21\nv_cvt_pk_bf16_f32 v22, v22, v23')
    a(f's_lshl_b32 {sC}, {sWAVE}, 7\ns_add_u32 {sC}, {sC}, {L_Q}')
    a(f'v_lshl_add_u32 v5, v0, 1, {sC}')
    a('ds_write_b16 v5, v20\nds_write_b16_d16_hi v5, v20 offset:384')
    a('ds_write_b16 v5, v22 offset:768\nds_write_b16_d16_hi v5, v22 offset:1152')
    lds_inc('v3', F_Q, 'v4')
    stamp(5)

    def dma_loop(lab, srd, n, gstep):
        a(f's_add_u32 {sD}, {sC}, {n * 1024}')
        a(f'{lab}:')
        a(f's_mov_b32 m0, {sC}')
        a(f's_add_u32 {sC}, {sC}, 1024')
        a(f'buffer_load_dwordx4 v2, {srd}, {sB} offen nt lds')
        a(f's_add_u32 {sB}, {sB}, {gstep}')
        a(f's_waitcnt vmcnt({WWIN})')
        a(f's_cmp_lt_u32 {sC}, {sD}\ns_cbranch_scc1 {lab}')

    def weights_ready(lab, n=4):
        a('s_waitcnt vmcnt(0)')
        lds_inc('v3', F_W, 'v4')
        lds_wait(lab, 'v12', 'v3', F_W, n, 8)

    def tr_reads(lst):
        for n, (r, va, off) in enumerate(lst):
            if n and n % 12 == 0:
                a('s_waitcnt lgkmcnt(0)')
            a(f'ds_read_b64_tr_b16 v[{r}:{r + 1}], {va} offset:{off}')
        a('s_waitcnt lgkmcnt(0)')

    def batch_top(lab):
        a('s_branch L_pre')
        a(f'{lab}:')
        if early >> ('L_s2b', 'L_s4b', 'L_s5b').index(lab) & 1:
            a(f's_cmp_eq_u32 {sBAT}, 2\ns_cbranch_scc1 L_pre2')
        a(f'{lab}c:')

    def shadow_sleep(lab, n, force=False):
        if n or force:
            a(f's_cmp_eq_u32 {sBAT}, 3\ns_cbranch_scc1 {lab}')
        for i in range(n):
            a('s_sleep 127')

    def s1_setup(sb):
        a(f's_mul_i32 {sA}, {sb}, {PARTP}\ns_add_u32 {sA}, {sA}, {L_PART}')
        a(f'v_and_b32 v51, 31, v0\nv_lshlrev_b32 v54, 4, v51\nv_add_u32 v46, {sA}, v54\nv_mov_b32 v47, {sA}')
        a(f'v_lshl_add_u32 v51, v51, 3, {sA}\nv_mov_b32 v55, 0xffff')
        a(f'v_and_b32 v50, 1, v0\nv_lshlrev_b32 v50, 4, v50\nv_lshrrev_b32 v49, v50, {sT[0]}\nv_sub_u32 v50, 16, v50')
        a(f's_lshl_b32 s83, {sb}, 17\ns_lshl_b32 {sA}, s2, 9\ns_add_u32 s83, s83, {sA}\ns_add_u32 s83, s83, {OP}')

    def wait_flush(lab, split):
        a(f's_cmp_lg_u32 {sBAT}, 3\ns_cbranch_scc1 {lab}d')
        if PAR:
            for r, bit, off in split:
                if r[0] == 's':
                    a(f's_bitcmp1_b32 {sWAVE}, 0\ns_cselect_b32 {sB}, {off}, 0\ns_add_u32 {r}, {r}, {sB}')
                else:
                    a(f'v_bfe_u32 v10, v0, {bit}, 1\nv_mul_u32_u24 v10, {off}, v10\nv_add_u32 {r}, {r}, v10')
        stamp(2)
        lds_wait(lab, 'v10', 'v3', F_FL, 4, FSLP)
        bstamp(6)

    def wait_heads(lab):
        a(f's_cmp_lg_u32 {sBAT}, 3\ns_cbranch_scc1 {lab}x')
        a(f's_mul_i32 {sB}, {sJ}, {FST}\ns_add_u32 {sB}, {sB}, {FLB}\nv_and_b32 v11, 31, v0\nv_lshlrev_b32 v11, 2, v11')
        a(f'{lab}:')
        a(f'buffer_load_dword v10, v11, {SWS}, {sB} offen sc1')
        a(f's_sub_u32 {sSPIN}, {sSPIN}, 1\ns_cbranch_scc1 {lab}d')
        a(f's_waitcnt vmcnt(0)\nv_cmp_ne_u32 vcc, {sT[0]}, v10\ns_cbranch_vccnz {lab}')
        a(f'{lab}d:')
        a(f's_mov_b32 {sSPIN}, {SPIN}')
        if FD:
            a(f's_sleep {FD}')
        stamp(5)
        a(f'{lab}x:')

    def batch_end(lab, incs):
        a('s_mov_b64 exec, -1')
        a(f's_add_u32 {sBAT}, {sBAT}, 1')
        a('v_add_u32 v3, 4, v3')
        for r, d in incs:
            a(f's_add_u32 {r}, {r}, {d}' if r[0] == 's' else f'v_add_u32 {r}, {d}, {r}')
        a(f's_cmp_lt_u32 {sBAT}, 4\ns_cbranch_scc1 {lab}')
        a('s_branch L_fin')

    a('L_role:')
    if exp & 1:
        a('s_branch L_fin')
    for i in range(WSL):
        a('s_sleep 127')
    a(f's_lshl_b32 {sA}, {sJ}, 2\ns_add_u32 {sA}, {sA}, {sH}\ns_and_b32 {sA}, {sA}, 31\ns_mov_b32 {sROLE}, 0')
    a(f's_mul_i32 {sC}, {sWAVE}, {REG}')
    a('v_lshrrev_b32 v5, 1, v0\nv_and_b32 v5, 16, v5\nv_lshrrev_b32 v6, 2, v0\nv_and_b32 v6, 5, v6\nv_and_b32 v7, 8, v0\nv_or3_b32 v6, v5, v6, v7')
    a('v_lshrrev_b32 v5, 4, v0\nv_and_b32 v7, 3, v0')

    def sp_index(v):
        a(f'v_and_b32 {v}, 1, v0\nv_mul_u32_u24 {v}, 0xaaaa, {v}\nv_add_u32 {v}, 0x4444, {v}\nv_lshl_add_u32 {v}, {v}, 16, {v}')

    def a_addr(v, t):
        a(f'v_and_b32 {t}, 1, v0\nv_lshl_add_u32 {t}, v5, 1, {t}\nv_lshlrev_b32 {v}, 4, {t}\nv_add_u32 {v}, {L_ACT}, {v}')

    def smf(d, x, w, ix):
        a(f'v_smfmac_f32_16x16x64_bf16 v[{d}:{d + 3}], v[{x}:{x + 3}], v[{w}:{w + 7}], {ix}')

    def zero(r, n):
        for k in range(n):
            a(f'v_mov_b32 v{r + k}, 0')

    a('v_and_b32 v63, 15, v0\nv_lshlrev_b32 v63, 2, v63')
    a(f's_cmp_eq_u32 {sJ}, {JX}\ns_cbranch_scc1 L_ffn')
    a(f's_mov_b32 {sD}, {sJ}\ns_cmp_lt_u32 {sA}, 10\ns_cbranch_scc1 L_s2')
    a(f's_cmp_lg_u32 {sJ}, {JX ^ 4}\ns_cbranch_scc1 L_idle')
    a(f's_mov_b32 {sD}, {JX}\ns_xor_b32 {sA}, {sA}, 16\ns_cmp_ge_u32 {sA}, 10\ns_cbranch_scc1 L_idle')

    a('L_s2:')
    a(f's_mul_i32 {sOUTA}, {sD}, 2560\ns_lshl_b32 {sB}, {sA}, 8\ns_add_u32 {sOUTA}, {sOUTA}, {sB}')
    a(f's_add_u32 {sOUTA}, {sOUTA}, {HP}')
    a(f's_lshl_b32 {sD}, {sD}, 2\ns_add_u32 {sD}, {sD}, {sWAVE}')
    a(f's_lshl_b32 {sIN}, {sD}, 12\ns_add_u32 {sIN}, {sIN}, {OP + (1 << 17)}')
    if FG:
        a(f's_cmp_eq_u32 {sA}, 0\ns_cselect_b32 {sXO}, 3, 7\ns_lshl_b32 {sACT}, {sD}, 2\ns_add_u32 {sACT}, {sACT}, {FLB}')
        a(f'v_mul_u32_u24 v228, {FST}, v0\nv_mov_b32 v229, {sT[0]}')
    a(f's_mul_i32 {sB}, {sD}, {192 * 1280}\ns_lshl_b32 {sA}, {sA}, 7\ns_add_u32 {sB}, {sB}, {sA}')
    a('v_lshrrev_b32 v2, 3, v0\nv_mul_u32_u24 v2, 1280, v2\nv_and_b32 v1, 7, v0\nv_lshl_add_u32 v2, v1, 4, v2')
    dma_loop('L_dwo', SWO, 24, 8 * 1280)
    a('v_lshlrev_b32 v10, 7, v6\nv_lshl_add_u32 v10, v7, 3, v10')
    a(f's_mul_i32 {sA}, {sWAVE}, {REG}\nv_add_u32 v10, {sA}, v10\ns_waitcnt vmcnt(0)')
    tr_reads([(128 + 24 * T + 4 * s_ + 2 * q, 'v10', s_ * 4096 + q * 256 + T * 32) for T in range(4) for s_ in range(6) for q in range(2)])
    stamp(5)
    a('v_lshlrev_b32 v8, 4, v0\nv_and_b32 v10, 31, v0\nv_lshrrev_b32 v11, 5, v0\nv_lshl_add_u32 v10, v10, 1, v11')
    a(f's_mul_i32 {sA}, {sWAVE}, 384\ns_add_u32 {sA}, {sA}, {L_ACT}')
    a(f'v_lshl_add_u32 v2, v10, 2, {sA}\nv_lshl_add_u32 v7, v10, 1, {sA}')
    a(f'v_and_b32 v10, 1, v0\nv_lshlrev_b32 v11, 4, v10\nv_lshrrev_b32 v224, v11, {sT[0]}\nv_mov_b32 v225, 0xffff')
    a('v_mov_b32 v226, 0x07060302\nv_mov_b32 v227, 0x03020706\nv_cmp_eq_u32 vcc, 1, v10\nv_cndmask_b32 v226, v226, v227, vcc')
    a('v_bfe_u32 v1, v0, 1, 2\nv_lshlrev_b32 v1, 9, v1\nv_add_u32 v1, v1, v11')
    a_addr('v6', 'v10')
    a(f's_sub_u32 {sA}, {sA}, {L_ACT}\nv_add_u32 v6, {sA}, v6')
    sp_index('v230')
    a(f'v_lshlrev_b32 v5, 2, v0\nv_add_u32 v231, {L_ACT + 2048}, v5\ns_lshl_b32 {sA}, {sWAVE}, 8\nv_add_u32 v232, {sA}, v231')
    a(f'v_lshlrev_b32 v10, 3, v0\nv_lshrrev_b32 v227, v10, {sT[0]}')
    batch_top('L_s2b')
    zero(80, 16)
    a(f's_cmp_ge_u32 {sBAT}, 2\ns_cselect_b32 {sA}, 2048, 0\ns_add_u32 {sA}, {sA}, {sIN}')
    wait_flush('L_s2w', [])
    if pp2:
        a(f's_bitcmp0_b32 {pp2}, {sBAT}\ns_cbranch_scc1 L_og')
        a('L_op:')
        a(f'buffer_load_dword v20, v1, {SWS}, {sIN} offen offset:12 sc1')
        a(f'buffer_load_dword v21, v1, {SWS}, {sA} offen offset:12 sc1')
        a('s_waitcnt vmcnt(0)')
        check(20, 2, 'v10', 'L_op', 'L_opd', tags=['v224'], mask='v225')
    if mk & 1:
        gather('L_og', [(f'buffer_load_dwordx4 v[{20 + 4 * m}:{23 + 4 * m}], v8, {SWS}, {sIN if m < 2 else sA} offen offset:{(m % 2) * 1024} sc1', [23 + 4 * m]) for m in range(4)], ['v224'], 'v225', PL2)
        if FG:
            a(f's_cmp_lg_u32 {sXO}, {sBAT}\ns_cbranch_scc1 L_nofl\ns_mov_b64 exec, 0xff')
            a(f'buffer_store_dword v229, v228, {SWS}, {sACT} offen sc1')
            a('s_mov_b64 exec, -1\nL_nofl:')
        for m in range(4):
            a(f'v_mov_b32_dpp v{12 + m}, v{23 + 4 * m} quad_perm:[1,0,3,2] {DPPM}')
    else:
        a('L_og:')
        for m in range(4):
            a(f'buffer_load_dwordx4 v[{20 + 4 * m}:{23 + 4 * m}], v8, {SWS}, {sIN if m < 2 else sA} offen offset:{(m % 2) * 1024} sc1')
        a('s_waitcnt vmcnt(0)')
        for m in range(4):
            a(f'v_mov_b32_dpp v{12 + m}, v{23 + 4 * m} quad_perm:[1,0,3,2] {DPPM}')
        check(23, 4, 'v10', 'L_og', 'L_ogd', tags=['v224'], mask='v225', step=4)
    bstamp(3)
    UP = lambda m, k: 36 + 6 * m + k

    def unp(m):
        for k in range(3):
            a(f'v_lshlrev_b32 v{UP(m, 2 * k)}, 16, v{20 + 4 * m + k}\nv_and_b32 v{UP(m, 2 * k + 1)}, {sHI}, v{20 + 4 * m + k}')
    for m in range(4):
        a(f'v_perm_b32 v{60 + 2 * m}, v{12 + m}, v{23 + 4 * m}, v226')
    a('v_max3_f32 v10, v60, v62, v64\nv_max_f32 v10, v10, v66\nv_mov_b32 v11, v10')
    unp(0)
    a('v_permlane32_swap_b32 v10, v11\nv_max_f32 v10, v10, v11')
    for m in range(4):
        a(f'v_sub_f32 v{60 + 2 * m}, v{60 + 2 * m}, v10')
    for m in range(4):
        a(f'v_exp_f32 v{60 + 2 * m}, v{60 + 2 * m}')
    unp(1)
    a('v_add_f32 v10, v60, v62\nv_add_f32 v11, v64, v66\nv_add_f32 v10, v10, v11\nv_mov_b32 v11, v10')
    unp(2)
    a('v_permlane32_swap_b32 v10, v11\nv_add_f32 v10, v10, v11\nv_rcp_f32 v10, v10')
    unp(3)
    for m in range(4):
        for k in range(3):
            d, x, w = f'v[{12 + 2 * k}:{13 + 2 * k}]', f'v[{UP(m, 2 * k)}:{UP(m, 2 * k + 1)}]', f'v[{60 + 2 * m}:{61 + 2 * m}]'
            a(f'v_pk_fma_f32 {d}, {x}, {w}, {d} op_sel_hi:[1,0,1]' if m else f'v_pk_mul_f32 {d}, {x}, {w} op_sel_hi:[1,0]')
    a('v_permlane32_swap_b32 v12, v14\nv_permlane32_swap_b32 v13, v15\nv_permlane32_swap_b32 v16, v17')
    a('v_add_f32 v12, v12, v14\nv_add_f32 v13, v13, v15\nv_add_f32 v16, v16, v17')
    a('v_mul_f32 v12, v10, v12\nv_mul_f32 v13, v10, v13\nv_mul_f32 v16, v10, v16')
    a('v_cvt_pk_bf16_f32 v12, v12, v13\nv_cvt_pk_bf16_f32 v16, v16, v16')
    a('ds_write_b32 v2, v12\nds_write_b16 v7, v16 offset:256')
    for u in range(3):
        a(f'ds_read_b128 v[{32 + 4 * u}:{35 + 4 * u}], v6 offset:{u * 128}')

    def row_pick(T):
        a(f'v_add_f32_dpp v12, v{80 + 4 * T}, v{81 + 4 * T} quad_perm:[0,1,2,3] row_mask:{1 << T:#x} bank_mask:0xf')
    for T in range(4):
        for u in range(3):
            if T == 0:
                a(f's_waitcnt lgkmcnt({2 - u})')
            smf(80 + 4 * T, 32 + 4 * u, 128 + 24 * T + 8 * u, 'v230')
    for T in range(4):
        row_pick(T)

    def arrive(reads, lab):
        a(f's_mov_b64 exec, 1\nds_add_rtn_u32 v10, v3, v4 offset:{F_ST}\ns_mov_b64 exec, -1')
        for x in reads:
            a(x)
        a(f's_waitcnt lgkmcnt({len(reads)})\nv_cmp_ne_u32 vcc, 3, v10\ns_bitcmp1_b32 vcc_lo, 0\ns_cbranch_scc1 {lab}')
    a('ds_write_b32 v232, v12')
    arrive(['ds_read2st64_b32 v[12:13], v231 offset0:0 offset1:1', 'ds_read2st64_b32 v[14:15], v231 offset0:2 offset1:3'], 'L_s2r')
    a('s_waitcnt lgkmcnt(0)\nv_pk_add_f32 v[12:13], v[12:13], v[14:15]\nv_add_f32 v12, v12, v13\nv_bfi_b32 v12, v9, v227, v12')
    a(f'buffer_store_dword v12, v5, {SWS}, {sOUTA} offen sc1')
    a('L_s2r:')
    bstamp(4)
    a('s_waitcnt lgkmcnt(0)')
    a(f's_mov_b32 {sA}, {1 << 17}\ns_cmp_eq_u32 {sBAT}, 0\ns_cselect_b32 {sA}, 2048, {sA}\ns_cmp_eq_u32 {sBAT}, 1\ns_cselect_b32 {sA}, {(1 << 17) - 2048}, {sA}')
    batch_end('L_s2b', [(sIN, sA), (sOUTA, HPB), ('v231', 1024), ('v232', 1024)])

    a('L_ffn:')
    a(f's_cmp_ge_u32 {sH}, 12\ns_cbranch_scc1 L_s5')
    a(f's_mov_b32 {sROLE}, 1')
    WB = lambda T, s_: 96 + 80 * T + 4 * s_
    vTG, vGC, CS, B1R, XR, D0, D1 = 'v60', 'v61', 62, 63, 64, 72, 76
    sROW = 's[30:31]'
    a('v_mul_u32_u24 v2, 3072, v5\nv_and_b32 v1, 15, v0\nv_lshl_add_u32 v2, v1, 4, v2')
    a(f's_lshl_b32 {sA}, {sH}, 2\ns_add_u32 {sA}, {sA}, {sWAVE}')
    a(f's_lshl_b32 {sD}, {sA}, 6\nv_and_b32 v8, 31, v0\nv_lshlrev_b32 v10, 1, v8\nv_lshlrev_b32 v8, 2, v8')
    a(f'buffer_load_ushort v{B1R}, v10, {SB1}, {sD} offen')
    a(f's_lshl_b32 {sOUTA}, {sA}, 7\ns_add_u32 {sOUTA}, {sOUTA}, {AP}')
    a('v_lshlrev_b32 v10, 8, v6\nv_lshl_add_u32 v10, v7, 3, v10')
    a(f's_lshl_b32 {sA}, {sWAVE}, 6\nv_add_u32 v10, {sA}, v10\nv_add_u32 v11, 49152, v10')
    for r in range(2):
        a(f's_lshl_b32 {sB}, {sH}, 8\ns_mul_i32 {sD}, {sWAVE}, {80 * 3072}\ns_add_u32 {sB}, {sB}, {sD}')
        if r:
            a(f's_add_u32 {sB}, {sB}, {320 * 3072}')
        a(f's_mul_i32 {sC}, {sWAVE}, 20480')
        dma_loop(f'L_dw1{r}', SW1, 20, 4 * 3072)
        weights_ready(f'L_wr4{r}', 4 + 8 * r)
        tr_reads([(WB(T, 10 * r + s_) + 2 * q, 'v10' if s_ < 6 else 'v11', (s_ % 6) * 8192 + q * 512 + T * 32) for s_ in range(10) for T in range(2) for q in range(2)])
        if r == 0:
            weights_ready('L_wr4x', 8)
    for k in range(4):
        a(f'v_mov_b32 v{24 + k}, 0x3f803f80')
    for s_ in range(20):
        for T, d in enumerate((D0, D1)):
            a(f'v_mfma_f32_16x16x32_bf16 v[{d}:{d + 3}], v[24:27], v[{WB(T, s_)}:{WB(T, s_) + 3}], {f"v[{d}:{d + 3}]" if s_ else 0}')
    a('s_mov_b32 s30, 0xffff0000\ns_mov_b32 s31, 0xffff0000')
    a(f'v_lshlrev_b32 v{B1R}, 16, v{B1R}')
    a(f'v_cndmask_b32 v{CS}, v{D0}, v{D1}, {sROW}')
    stamp(5)
    a(f'v_lshlrev_b32 v10, 4, v0\nv_lshrrev_b32 {vTG}, v10, {sT[0]}\nv_and_b32 {vTG}, 0xffff, {vTG}')
    a(f'v_mov_b32 {vGC}, {f2u(-2.0 * 0.7978845608028654 * 1.4426950408889634 * 0.044715)}')
    a('v_lshlrev_b32 v1, 4, v0\nv_lshlrev_b32 v7, 3, v0\ns_mov_b32 s48, -1\ns_mov_b32 s49, 0xff')
    a(f's_mul_i32 {sXO}, {sWAVE}, 320\ns_add_u32 {sA}, {sXO}, {L_ACT}\nv_add_u32 v2, {sA}, v7')
    a(f's_lshl_b32 {sIN}, {sXO}, 1\ns_add_u32 {sIN}, {sIN}, {HP}')
    a_addr('v6', 'v10')
    sp_index('v69')
    a(f'v_lshlrev_b32 v5, 2, v0\nv_add_u32 v5, {L_ACT}, v5')
    a(f's_mov_b32 {sC}, 0x3f803f80')
    batch_top('L_s4b')
    zero(D0, 8)
    assert not PAR
    E40 = 's[48:49]'
    M = ['s[8:9]', 's[10:11]', 's[12:13]', 's[14:15]', 's[28:29]', 's[32:33]', 's[34:35]', 's[40:41]']
    VA = ['v1', 'v84', 'v85', 'v86']
    a(f'buffer_load_dwordx2 v[{XR}:{XR + 1}], v7, {SX}, {sXO} offen')
    for k in range(1, 4):
        a(f'v_add_u32 {VA[k]}, {5120 * k}, v1')
    for m in M:
        a(f's_mov_b64 {m}, {E40}')
    a('s_waitcnt vmcnt(0)')
    a(f'v_lshlrev_b32 v{XR + 2}, 16, v{XR + 1}\nv_and_b32 v{XR + 3}, {sHI}, v{XR + 1}\nv_and_b32 v{XR + 1}, {sHI}, v{XR}\nv_lshlrev_b32 v{XR}, 16, v{XR}')
    wait_flush('L_s4w', [])

    def again(lab):
        a(f's_cmp_eq_u32 {sBAT}, 3\ns_cbranch_scc1 {lab}\ns_sleep {SLP}\ns_branch {lab}')

    def acc(d, x, y):
        a(f'v_pk_add_f32 v[{d}:{d + 1}], v[{x}:{x + 1}], v[{y}:{y + 1}]\nv_pk_add_f32 v[{d + 2}:{d + 3}], v[{x + 2}:{x + 3}], v[{y + 2}:{y + 3}]')
    a('L_hg:')
    for j in range(8):
        a(f's_wqm_b64 exec, {M[j]}')
        a(f'buffer_load_dwordx4 v[{24 + 4 * j}:{27 + 4 * j}], {VA[j // 2]}, {SWS}, {sIN} offen offset:{(j % 2) * 2560} sc1')
    a(f's_mov_b64 exec, {E40}\ns_waitcnt vmcnt(0)')
    for k in range(4):
        for j in range(8):
            a(f'v_bitop3_b32 v{10 + j}, v{10 + j}, v{24 + 4 * j + k}, {sT[k]} bitop3:0xf6' if k else f'v_xor_b32 v{10 + j}, {sT[0]}, v{24 + 4 * j}')
    for j in range(8):
        a(f'v_cmp_ne_u32_sdwa {M[j]}, v{10 + j}, v{D0} src0_sel:BYTE_0 src1_sel:DWORD')
    a(f's_mov_b32 {sA}, 0')
    for j in range(8):
        a(f's_cmp_lg_u64 {M[j]}, 0\ns_addc_u32 {sA}, {sA}, {sA}')
    a(f's_bcnt1_i32_b32 {sB}, {sA}\ns_cbranch_scc0 L_hall')
    a(f's_sub_u32 {sSPIN}, {sSPIN}, 1\ns_cbranch_scc1 L_hall')
    a(f's_cmp_le_u32 {sB}, {GF}\ns_cbranch_scc1 L_hone')
    again('L_hg')
    a('L_hall:')
    bstamp(3)
    for d, x, y in ((24, 24, 28), (32, 32, 36), (40, 40, 44), (48, 48, 52), (20, 24, 32), (56, 40, 48)):
        acc(d, x, y)
    a('s_branch L_hsum')
    SL, MS, SO = [56, 88, 92, 80][:GF], ['s[36:37]', 's[38:39]', 's[42:43]', 's[50:51]'], ['s76', 's77', 's78', 's82']
    a('L_hone:')
    for n, r in enumerate(SL):
        a(f's_cmp_lg_u32 {sA}, 0\ns_cselect_b64 {MS[n]}, {E40}, 0\ns_ff1_i32_b32 {sB}, {sA}\ns_bitset0_b32 {sA}, {sB}')
        a(f's_mul_i32 {sB}, {sB}, -2560\ns_add_u32 {sB}, {sB}, {sIN}\ns_add_u32 {SO[n]}, {sB}, {7 * 2560}')
        for k in range(4 if n else 0):
            a(f'v_and_b32 v{r + k}, {sT[k]}, v9')

    def slots():
        for n, r in enumerate(SL):
            a(f's_wqm_b64 exec, {MS[n]}\nbuffer_load_dwordx4 v[{r}:{r + 3}], v1, {SWS}, {SO[n]} offen sc1')
    slots()
    a(f's_mov_b64 exec, {E40}')
    zero(20, 4)
    for j in range(8):
        a(f's_cmp_eq_u64 {M[j]}, 0\ns_cselect_b64 exec, {E40}, 0')
        acc(20, 20, 24 + 4 * j)
    a('s_branch L_honw')
    a('L_hons:')
    a(f's_sub_u32 {sSPIN}, {sSPIN}, 1\ns_cbranch_scc1 L_hsum')
    a(f's_cmp_eq_u32 {sBAT}, 3\ns_cbranch_scc1 L_honl\ns_sleep {SLP}')
    a('L_honl:')
    slots()
    a('L_honw:')
    a(f's_mov_b64 exec, {E40}\ns_waitcnt vmcnt(0)')
    for k in range(4):
        for n, r in enumerate(SL):
            a(f'v_bitop3_b32 v{10 + n}, v{10 + n}, v{r + k}, {sT[k]} bitop3:0xf6' if k else f'v_xor_b32 v{10 + n}, {sT[0]}, v{r}')
    for n in range(GF):
        a(f'v_cmp_ne_u32_sdwa {MS[n]}, v{10 + n}, v{D0} src0_sel:BYTE_0 src1_sel:DWORD')
    if GF > 1:
        acc(24, SL[1], SL[2] if GF > 2 else D0)
    if GF > 3:
        acc(24, 24, SL[3])
    a(f's_or_b64 vcc, {MS[0]}, {MS[1 % GF]}')
    for n in range(2, GF):
        a(f's_or_b64 vcc, vcc, {MS[n]}')
    a('s_cbranch_scc1 L_hons')
    bstamp(3)
    if GF > 1:
        acc(20, 20, 24)
    a('L_hsum:')
    acc(20, 20, 56)
    for k in range(4):
        a(f'v_cvt_pk_bf16_f32 v{20 + k}, 0, v{20 + k}')
    acc(20, 20, XR)
    a('v_cvt_pk_bf16_f32 v20, v20, v21\nv_cvt_pk_bf16_f32 v21, v22, v23')
    a('ds_write_b64 v2, v[20:21]')
    a(f's_mov_b32 {sSPIN}, {SPIN}')
    lds_inc('v3', F_ST, 'v4')
    lds_wait('L_s4s', 'v10', 'v3', F_ST, 4, 0)
    bstamp(1)
    for i in range(5):
        a(f'ds_read_b32 v{XR + i}, v5 offset:{i * 256}')
    AF = lambda u: 24 + 4 * u if u < 9 else 80
    for u in range(10):
        a(f'ds_read_b128 v[{AF(u)}:{AF(u) + 3}], v6 offset:{u * 128}')
    sl = []
    for i in range(5):
        sl.append(f'v_dot2_f32_bf16 v20, v{XR + i}, {sC}, {"v20" if i else 0}')
        sl.append(f'v_dot2_f32_bf16 v22, v{XR + i}, v{XR + i}, {"v22" if i else 0}')
    sl += [None, 'v_permlane32_swap_b32 v20, v22', 'v_add_f32 v20, v20, v22', 'v_mov_b32 v22, v20', None]
    sl += ['v_permlane16_swap_b32 v20, v22', 'v_add_f32 v20, v20, v22', None]
    for m in ('quad_perm:[1,0,3,2]', 'quad_perm:[2,3,0,1]', 'row_half_mirror', 'row_ror:8'):
        sl += [f'v_add_f32_dpp v20, v20, v20 {m} {DPPM}', None]
    sl[-1:] = [f'v_mul_f32 v20, {f2u(1 / 640)}, v20', 'v_mov_b32 v22, v20', None, 'v_permlane32_swap_b32 v20, v22']
    sl += ['v_fma_f32 v22, -v20, v20, v22', 'v_cvt_pk_bf16_f32 v20, 0, v20', 'v_max_f32 v22, 0, v22', 'v_cvt_pk_bf16_f32 v22, 0, v22']
    sl += [f'v_add_f32 v22, {f2u(1e-5)}, v22', 'v_cvt_pk_bf16_f32 v22, 0, v22', 'v_sqrt_f32 v22, v22', None]
    sl += ['v_cvt_pk_bf16_f32 v22, 0, v22', 'v_rcp_f32 v22, v22']

    def fill(n):
        while n and sl:
            x = sl.pop(0)
            if x is None:
                return
            a(x)
            n -= 1
        if sl and sl[0] is None:
            sl.pop(0)
    a('s_waitcnt lgkmcnt(10)')
    fill(4)
    for u in range(10):
        a(f's_waitcnt lgkmcnt({9 - u})')
        for T, d in enumerate((D0, D1)):
            smf(d, AF(u), WB(T, 2 * u), 'v69')
            fill(2)
    while sl:
        fill(9)
    c2 = -2.0 * 0.7978845608028654 * 1.4426950408889634
    a(f's_add_u32 {sA}, {sOUTA}, {32 * APB}\ns_mov_b32 exec_hi, 0\ns_cmp_lg_u32 {sBAT}, 3')
    a(f'v_add_f32 v10, v{D0}, v{D0 + 1}\nv_add_f32 v11, v{D1}, v{D1 + 1}\nv_cndmask_b32 v10, v10, v11, {sROW}')
    a(f'v_fma_f32 v10, -v20, v{CS}, v10\nv_mul_f32 v10, v22, v10')
    a(f'v_cvt_pk_bf16_f32 v10, 0, v10\nv_add_f32 v10, v10, v{B1R}\nv_cvt_pk_bf16_f32 v10, 0, v10')
    a(f'v_mul_f32 v11, v10, v10\nv_fmaak_f32 v11, {vGC}, v11, {f2u(c2)}\nv_mul_f32 v11, v11, v10')
    a('v_exp_f32 v11, v11\nv_add_f32 v11, 1.0, v11\nv_rcp_f32 v11, v11\nv_mul_f32 v10, v10, v11')
    a(f'v_cvt_pk_bf16_f32 v10, 0, v10\nv_or_b32 v10, {vTG}, v10')
    if W4S & 2:
        a('s_cbranch_scc1 L_s4q')
    if NOA or not W4S & 2:
        a('s_branch L_s4p' if NOA else 's_cbranch_scc1 L_s4p')
    a(f'buffer_store_dword v10, v8, {SWS}, {sA} offen {AM}')
    a('L_s4p:')
    a(f'buffer_store_dword v10, v8, {SWS}, {sOUTA} offen sc1')
    a('L_s4r:')
    bstamp(4)
    batch_end('L_s4b', [(sIN, copy_off(RC2, 4 * HPB, HPB)), (sOUTA, APB), (sXO, 1280), ('v2', 1536), ('v5', 1536), ('v6', 1536)])

    a('L_s5:')
    a(f's_mov_b32 {sROLE}, 2\ns_sub_u32 {sA}, {sH}, 12')
    a(f's_lshl_b32 {sXO}, {sA}, 6\ns_lshl_b32 {sIN}, {sA}, 7\ns_add_u32 {sIN}, {sIN}, {HP}')
    a(f's_mul_i32 {sACT}, {sWAVE}, 1536\ns_add_u32 {sACT}, {sACT}, {AP}')
    a('v_lshrrev_b32 v2, 2, v0\nv_mul_u32_u24 v2, 1280, v2\nv_lshl_add_u32 v2, v7, 4, v2')
    a(f's_mul_i32 {sB}, {sWAVE}, {384 * 1280}\ns_add_u32 {sB}, {sB}, {sXO}')
    a('v_lshlrev_b32 v10, 6, v6\nv_lshl_add_u32 v10, v7, 3, v10')
    a(f'v_add_u32 v12, {sC}, v10')
    dma_loop('L_dw2', SW2, 24, 16 * 1280)
    a('v_lshrrev_b32 v1, 3, v0\nv_mul_u32_u24 v1, 2560, v1\nv_and_b32 v10, 7, v0\nv_lshl_add_u32 v1, v10, 4, v1')
    a('v_lshlrev_b32 v7, 3, v10\nv_lshl_add_u32 v7, v5, 1, v7')
    a(f'buffer_load_dword v67, v63, {SB2}, {sXO} offen')
    a('v_bfe_u32 v2, v0, 1, 3\nv_min_u32 v2, 5, v2\nv_lshl_add_u32 v2, v2, 2, v5\nv_and_b32 v10, 1, v0\nv_lshl_add_u32 v2, v2, 1, v10\nv_lshlrev_b32 v2, 5, v2')
    sp_index('v60')
    a(f's_lshl_b32 {sA}, {sWAVE}, 7\ns_add_u32 {sA}, {sA}, {L_ACT}')
    a(f'v_add_u32 v5, {sA}, v63')
    a(f'v_lshlrev_b32 v6, 1, v63\nv_add_u32 v6, {L_ACT}, v6')
    a(f'v_lshlrev_b32 v62, 1, v7\nv_add_u32 v62, {L_ACT + 4096}, v62\nv_add_u32 v61, 4096, v6')
    a(f'v_mov_b32 v8, 0xffff\ns_mov_b32 {sC}, 0x07060302')
    a('s_waitcnt vmcnt(0)')
    tr_reads([(128 + 16 * (s_ >> 1) + 8 * T + 4 * (s_ & 1) + 2 * q, 'v12', s_ * 2048 + q * 128 + T * 32) for s_ in range(12) for T in range(2) for q in range(2)])
    a(f'v_lshlrev_b32 v66, 16, v67\nv_and_b32 v67, {sHI}, v67')
    stamp(5)

    def red_rows(b):
        a(f'v_permlane16_swap_b32 v{b}, v{b + 1}\nv_permlane16_swap_b32 v{b + 2}, v{b + 3}')
        a(f'v_add_f32 v{b}, v{b}, v{b + 1}\nv_add_f32 v{b + 2}, v{b + 2}, v{b + 3}')
        a(f'v_permlane32_swap_b32 v{b}, v{b + 2}')
        a(f'v_add_f32 v{b}, v{b}, v{b + 2}')
        a(f'v_add_f32_dpp v{b}, v{b}, v{b} row_ror:8 {DPPM}')

    batch_top('L_s5b')
    zero(12, 8)
    a(f's_cmp_eq_u32 {sBAT}, 3\ns_cselect_b32 {sOUTA}, {32 * APB if LOC else 0}, 0\ns_add_u32 {sOUTA}, {sOUTA}, {sACT}')
    wait_flush('L_s5w', [('v1', 2, 32 * HPB)])
    a(f's_cmp_lg_u32 {sWAVE}, 0\ns_cbranch_scc1 L_h5w')
    a(f'buffer_load_ushort v64, v7, {SX}, {sXO} offen')
    if FG:
        wait_heads('L_f5')
        a(f's_cmp_lg_u32 {sBAT}, 3\ns_cbranch_scc1 L_h5')
        lds_inc('v3', F_H, 'v4')
        a('v_mov_b32 v4, 0')
    if hsl:
        a(f's_cmp_lg_u32 {sBAT}, 0\ns_cbranch_scc1 L_h5')
        for i in range(hsl):
            a('s_sleep 127')
    a('L_h5:')
    a(f'buffer_load_dwordx4 v[20:23], v1, {SWS}, {sIN} offen sc1 {pnt}')
    a('s_waitcnt vmcnt(0)')
    check(20, 4, 'v10', 'L_h5', 'L_h5d')
    bstamp(3)
    red_rows(20)
    a('v_lshlrev_b32 v64, 16, v64\nv_cvt_pk_bf16_f32 v20, 0, v20\nv_add_f32 v64, v64, v20\nv_cvt_pk_bf16_f32 v64, 0, v64')
    a('ds_write_b32 v62, v64')
    lds_inc('v3', F_H, 'v4')
    if FG:
        a(f'v_mov_b32 v4, 1\ns_cmp_lg_u32 {sBAT}, 3\ns_cbranch_scc1 L_h5w')
        a(f's_sleep {max(YF - YW, 0)}\ns_branch L_y5')
    lds_wait('L_h5w', 'v10', 'v3', F_H, 1, 1 if FG else FSLP)
    a('ds_read_b64 v[64:65], v61')
    a(f's_sleep {YF if FG else YS3}')
    if mk & 4:
        gather('L_y5', [(f'buffer_load_dwordx4 v[{32 + 4 * i}:{35 + 4 * i}], v2, {SWS}, {sOUTA} offen offset:{16 * i} sc1', range(32 + 4 * i, 36 + 4 * i)) for i in range(2)], [sT[0], sT[2]], 'v8', PL5, (sOUTA, sACT))
        for k in range(4):
            a(f'v_perm_b32 v{28 + k}, v{33 + 2 * k}, v{32 + 2 * k}, {sC}')
    else:
        a('L_y5:')
        a(f'buffer_load_dwordx4 v[20:23], v2, {SWS}, {sACT} offen sc1 {pnt}')
        a(f'buffer_load_dwordx4 v[24:27], v2, {SWS}, {sACT} offen offset:16 sc1 {pnt}')
        a('s_waitcnt vmcnt(0)')
        for k in range(4):
            a(f'v_perm_b32 v{28 + k}, v{21 + 2 * k}, v{20 + 2 * k}, {sC}')
        check(20, 8, 'v10', 'L_y5', 'L_y5d', tags=[sT[0], sT[2]], mask='v8')
    bstamp(4)

    mv = [f'v_mov_b32_dpp v{68 + 4 * u + k}, v{28 + k} row_shl:{2 * u} {DPPM}' for u in range(1, 6) for k in range(4)]
    for u in range(6):
        for T in range(2):
            smf(12 + 4 * T, 68 + 4 * u if u else 28, 128 + 16 * u + 8 * T, 'v60')
            for k in range(4 if (u, T) == (0, 0) else 2):
                if mv:
                    a(mv.pop(0))
    a('s_mov_b64 exec, 0xffff')
    a('v_add_f32 v12, v12, v13\nv_add_f32 v16, v16, v17')
    a('ds_write2_b32 v5, v12, v16 offset0:0 offset1:16')
    arrive(['ds_read2_b64 v[20:23], v6 offset0:0 offset1:16', 'ds_read2_b64 v[24:27], v6 offset0:32 offset1:48'], 'L_s5e')
    a('s_mov_b64 exec, 0xffff')
    a('s_waitcnt lgkmcnt(1)\nv_pk_add_f32 v[20:21], v[20:21], v[22:23]')
    a('s_waitcnt lgkmcnt(0)\nv_pk_add_f32 v[24:25], v[24:25], v[26:27]\nv_pk_add_f32 v[20:21], v[20:21], v[24:25]')
    a('v_cvt_pk_bf16_f32 v20, 0, v20\nv_cvt_pk_bf16_f32 v21, 0, v21\nv_pk_add_f32 v[20:21], v[20:21], v[66:67]')
    a('v_cvt_pk_bf16_f32 v20, 0, v20\nv_cvt_pk_bf16_f32 v21, 0, v21\nv_pk_add_f32 v[20:21], v[20:21], v[64:65]')
    a('v_cvt_pk_bf16_f32 v20, v20, v21')
    a(f'buffer_store_dword v20, v63, {SOUT}, {sXO} offen {OUM}')
    if dbt:
        a(f's_cmp_lg_u32 {sBAT}, 3\ns_cbranch_scc1 L_s5e')
        dstamp(10)
        a('s_mov_b64 exec, 1\nv_mov_b32 v254, s62\nv_sub_u32 v254, 0, v254')
        a(f'buffer_atomic_umax v254, v255, {SDBG}, 0 offen offset:16 sc1')
    a('L_s5e:')
    a('s_waitcnt lgkmcnt(0)')
    batch_end('L_s5b', [(sIN, copy_off(RC2, 4 * HPB, HPB)), (sACT, copy_off(RC4, 4 * APB, APB)), (sXO, 1280), ('v5', 512), ('v6', 512), ('v61', 128), ('v62', 128)])

    a('L_idle:')
    a(f's_mov_b32 {sROLE}, 3')
    a(f's_cmp_lg_u32 {sWAVE}, 3\ns_cbranch_scc1 L_fin')
    a('L_pre:')
    if exp & 4:
        a('s_branch L_fin')
    if exp & 56:
        lim = 0 if exp & 8 else 1 if exp & 16 else 2
        a(f's_cmp_ge_u32 {sROLE}, {lim}\ns_cselect_b32 {sROLE}, 3, {sROLE}')
    a(f's_mov_b32 {sBAT}, 0\ns_mov_b32 {sPH}, 1')
    lds_wait('L_pre1', 'v10', 'v3', F_FL + 4, 4, 16)
    a(f's_cmp_lg_u32 {sWAVE}, 3\ns_cbranch_scc1 L_pre4')
    a('L_pre3:')
    s1_setup(sPH)
    a('v_mov_b32 v56, 3')
    a('s_branch L_s1')
    a('L_pre4:')
    a(f's_bitcmp1_b32 {early}, {sROLE}\ns_cbranch_scc1 L_disp')
    a('L_pre2:')
    a(f'v_mov_b32 v11, {L_FLAG}\ns_mov_b32 {sPH}, 2')
    lds_wait('L_pre5', 'v10', 'v11', F_FL + 8, 4, 16)
    a(f's_cmp_eq_u32 {sWAVE}, 3\ns_cbranch_scc1 L_pre3')
    a('L_disp:')
    for k, lab in enumerate(('L_s2bc', 'L_s4bc', 'L_s5bc')):
        a(f's_cmp_eq_u32 {sROLE}, {k}\ns_cbranch_scc1 {lab}')
    a('s_branch L_fin')

    Q, ACC, AD, S, P, TM, RING, EXT0, EXT1, AD2 = 8, 20, 44, 52, 56, 64, 68, 116, 164, 212
    vMC, vL = 'v6', 'v7'
    s = [f'v{S + t}' for t in range(4)]
    t0, t1, t2, t3 = [f'v{TM + i}' for i in range(4)]

    def ld_tile(t, srd, soff, base=RING):
        for i in range(3):
            r = base + t * 12 + i * 4
            a(f'buffer_load_dwordx4 v[{r}:{r + 3}], v{1 + t // 2}, {srd}, {soff} offen offset:{(t % 2) * 3072 + i * 128} {pol}')

    def reset_state():
        for i in range(24):
            a(f'v_mov_b32 v{ACC + i}, 0')
        a(f'v_mov_b32 {vL}, 0\nv_mov_b32 {vMC}, 0xff7fffff')

    def load_q():
        for i in range(3):
            a(f'ds_read_b128 v[{Q + 4 * i}:{Q + 4 * i + 3}], v5 offset:{i * 128}')

    def kdot(t, base, ad):
        for k in range(12):
            acc = f'v{ad + 2 * t + k % 2}'
            a(f'v_dot2_f32_bf16 {acc}, v{base + t * 12 + k}, v{Q + k}, {acc if k >= 2 else 0}')

    def vdot(t, base):
        for k in range(12):
            for hl in range(2):
                a(f'v_dot2c_f32_bf16 v{ACC + (k // 4) * 8 + (k % 4) * 2 + hl}, v{base + t * 12 + k}, v{P + 2 * t + hl}')

    def softmax4(ad):
        for t in range(4):
            a(f'v_add_f32 {s[t]}, v{ad + 2 * t}, v{ad + 2 * t + 1}')
        for mode in ('quad_perm:[1,0,3,2]', 'quad_perm:[2,3,0,1]', 'row_half_mirror'):
            for t in range(4):
                a(f'v_add_f32_dpp {s[t]}, {s[t]}, {s[t]} {mode} {DPPM}')
        for rnd in range(2):
            a(f'v_cvt_pk_bf16_f32 {t0}, {s[0]}, {s[1]}\nv_cvt_pk_bf16_f32 {t1}, {s[2]}, {s[3]}')
            a(f'v_lshlrev_b32 {s[0]}, 16, {t0}\nv_and_b32 {s[1]}, {sHI}, {t0}')
            a(f'v_lshlrev_b32 {s[2]}, 16, {t1}\nv_and_b32 {s[3]}, {sHI}, {t1}')
            if rnd == 0:
                for t in range(4):
                    a(f'v_mul_f32 {s[t]}, {f2u(192 ** -0.5)}, {s[t]}')
        a(f'v_max3_f32 {t0}, {s[0]}, {s[1]}, {s[2]}\nv_max_f32 {t0}, {t0}, {s[3]}')
        a(f'v_mul_f32 {t0}, {sLOG2E}, {t0}\nv_max_f32 {t0}, {t0}, {vMC}')
        a(f'v_sub_f32 {t2}, {vMC}, {t0}\nv_mov_b32 {vMC}, {t0}')
        for t in range(4):
            a(f'v_fma_f32 {s[t]}, {s[t]}, {sLOG2E}, -{t0}')
        a(f'v_exp_f32 {t2}, {t2}')
        for t in range(4):
            a(f'v_exp_f32 {s[t]}, {s[t]}')
        for i in range(12):
            a(f'v_pk_mul_f32 v[{ACC + 2 * i}:{ACC + 2 * i + 1}], v[{ACC + 2 * i}:{ACC + 2 * i + 1}], v[{TM + 2}:{TM + 3}] op_sel_hi:[1,0]')
        for t in range(4):
            a(f'v_cvt_pk_bf16_f32 v{P + 2 * t}, {s[t]}, 0')
        for t in range(4):
            a(f'v_lshlrev_b32 v{P + 2 * t + 1}, 16, v{P + 2 * t}')
        a(f'v_fma_f32 {vL}, {vL}, {t2}, v{P + 1}')
        a(f'v_add_f32 {t0}, v{P + 3}, v{P + 5}\nv_add_f32 {vL}, {vL}, v{P + 7}\nv_add_f32 {vL}, {vL}, {t0}')

    def ld_one(slot, srd, soff):
        for i in range(3):
            r = RING + slot * 12 + i * 4
            a(f'buffer_load_dwordx4 v[{r}:{r + 3}], v1, {srd}, {soff} offen offset:{i * 128} {pol}')

    def claim(v, off):
        a(f'v_mov_b32 {v}, 1\ns_mov_b64 exec, 1')
        a(f'buffer_atomic_add {v}, v3, {SWS}, 0 offen offset:{off} sc0 sc1')
        a('s_mov_b64 exec, -1')

    def softmax1(t):
        x = s[0]
        a(f'v_add_f32 {x}, v{AD + 2 * t}, v{AD + 2 * t + 1}')
        for mode in ('quad_perm:[1,0,3,2]', 'quad_perm:[2,3,0,1]', 'row_half_mirror'):
            a(f'v_add_f32_dpp {x}, {x}, {x} {mode} {DPPM}')
        a(f'v_cvt_pk_bf16_f32 {x}, 0, {x}\nv_mul_f32 {x}, {f2u(192 ** -0.5)}, {x}\nv_cvt_pk_bf16_f32 {x}, 0, {x}')
        a(f'v_mul_f32 {t0}, {sLOG2E}, {x}\nv_max_f32 {t0}, {t0}, {vMC}')
        a(f'v_sub_f32 {t2}, {vMC}, {t0}\nv_mov_b32 {vMC}, {t0}')
        a(f'v_fma_f32 {x}, {x}, {sLOG2E}, -{t0}')
        a(f'v_exp_f32 {t2}, {t2}\nv_exp_f32 {x}, {x}')
        for i in range(12):
            a(f'v_pk_mul_f32 v[{ACC + 2 * i}:{ACC + 2 * i + 1}], v[{ACC + 2 * i}:{ACC + 2 * i + 1}], v[{TM + 2}:{TM + 3}] op_sel_hi:[1,0]')
        p = P + 2 * (t + 1)
        a(f'v_cvt_pk_bf16_f32 v{p}, {x}, 0\nv_cvt_pk_bf16_f32 v{p + 1}, 0, {x}')
        a(f'v_fma_f32 {vL}, {vL}, {t2}, v{p + 1}')

    assert SMALL % 4 == 0
    NBIG = 1024 - 8 - SMALL // 4
    assert 16 <= NSTAT and NSTAT * 32 <= NBIG
    vCA, vCB, vFL, vB, vT, vE, vE2, vONE = 'v220', 'v221', 'v222', 'v223', 'v224', 'v225', 'v226', 'v227'
    sTA, sTB, sLD, sROT = 's76', 's77', 's78', 's79'

    def item_addr(dst, sid, snb):
        a(f's_lshr_b32 {snb}, {sid}, 8\ns_add_u32 {sid}, {sid}, {sROT}')
        if RB:
            a(f's_mul_i32 {sB}, {snb}, {RB}\ns_add_u32 {sid}, {sid}, {sB}')
        a(f's_and_b32 {sid}, {sid}, 255\ns_mul_i32 {sid}, {sid}, {ITEM}\ns_mul_i32 {sB}, {snb}, {BSTR}')
        a(f's_add_u32 {dst}, {sHB}, {sid}\ns_add_u32 {dst}, {dst}, {sB}')


    def draw(off, n=vONE):
        a(f's_mov_b64 exec, 1\nds_add_rtn_u32 {vT}, {vB}, {n} offset:{off}\ns_mov_b64 exec, -1')

    def publish(v, add):
        a(f's_mov_b64 exec, 1\nv_lshlrev_b32 {v}, 2, {v}\nv_add_u32 {v}, {add}, {v}\nds_write_b32 {vE}, {v}\ns_mov_b64 exec, -1')

    spins = []

    def resolve(lab, st):
        a(f's_cmp_eq_u32 {sA}, 0\ns_cbranch_scc1 {lab}')
        a(f'{lab}r:')
        a(f's_and_b32 {sB}, {st}, 3\ns_add_u32 {sA}, {sA}, {sB}\ns_sub_u32 {sA}, {sA}, 1')
        spins.append(lab)

    a('L_stream:')
    if EN:
        kload('V', 'DBG', 'WS')
        a('s_memrealtime s[62:63]')
        srd('K')
    a('v_lshrrev_b32 v1, 3, v0\nv_mul_u32_u24 v1, 384, v1\nv_and_b32 v5, 7, v0\nv_lshlrev_b32 v5, 4, v5\nv_add_u32 v1, v1, v5')
    a(f's_sub_u32 {sA}, {sWAVE}, 4')
    a(f's_mul_i32 {sHB}, {sH}, {PROB}')
    a(f's_lshl_b32 {sC}, {sJ}, 2\ns_add_u32 {sC}, {sC}, {sA}\ns_mul_i32 {sROT}, {sH}, {RH}')
    a(f's_lshr_b32 {sD}, {sJ}, 2\ns_mul_i32 {sD}, {sD}, 240\ns_add_u32 {sD}, {sD}, {sC}\ns_add_u32 {sST}, {sD}, 16')
    item_addr(sNEXT, sD, sCB)

    K0B = lambda t: (ACC if t < 2 else 228 - 24) if P16 else EXT0

    def rest():
        a('v_add_u32 v2, 6144, v1\nv_mov_b32 v4, 0')
        a(f's_add_u32 {sTB}, {sST}, 16')
        item_addr(sCUR, sST, sCB)
        a(f's_mov_b32 {sSB}, {sC}')
        a(f's_mul_i32 {sC}, {sH}, {CTS}\ns_add_u32 {sC}, {sC}, {CT}\nv_mov_b32 v3, {sC}')
        a(f's_mul_i32 {sB}, {sCB}, 384\ns_add_u32 {sB}, {sB}, {L_Q}')
        a(f'v_add_u32 v5, {sB}, v5\nv_mov_b32 {vFL}, {L_FLAG + 4}\nv_mov_b32 {vB}, {L_FLAG}\nv_mov_b32 {vONE}, 1')
        a(f's_mul_i32 {sPB}, {sA}, {4 * PARTP}\ns_add_u32 {sPB}, {sPB}, {L_PART + PARTP}')
        a(f's_mov_b32 {sMODE}, 2')
    if EN:
        a(f's_cmp_lg_u32 {sWAVE}, 7\ns_cbranch_scc1 L_noi')
        a(f's_cmp_lg_u32 s2, {NWG}\ns_cbranch_scc1 L_non')
        srd('DBG')
        nonce_store(sB, 'v8', 'v9')
        a('L_non:')
        lds_init(12, sB, sD)
        a('L_noi:')
    else:
        rest()
    a('s_waitcnt lgkmcnt(0)')
    if FS:
        stamp(3)
    pf = [(t, SK, sNEXT, K0B(t)) for t in range(4)]
    grp = [(SV, sNEXT, EXT1), (SK, sCUR, RING)]
    for srd_, so, base in (grp[::-1] if PO == 1 else grp) + ([(SV, sCUR, EXT0)] if P16 else []):
        pf += [(t, srd_, so, base) for t in range(4)]
    if PO == 2:
        pf.insert(1, pf.pop(4))
    for n, (t, srd_, so, base) in enumerate(pf):
        if n == PRE:
            a('s_barrier')
            if PSL:
                a(f's_sleep {PSL}')
        if EN and n == 1:
            srd('V')
        if EN and n == 2:
            rest()
            srd('WS')
            consts()
        if n == 4 and not P16:
            reset_state()
        if 3 * n > PWIN:
            a(f's_waitcnt vmcnt({PWIN})')
            if FS and n == 2:
                stamp(1)
        if FS and n == 0:
            stamp(4)
        ld_tile(t, srd_, so, base)
    if P16:
        item_addr(sCUR, sTB, sNB)
    if not FS:
        stamp(3)
    if not noq:
        lds_wait('L_wqs', t0, vB, F_Q, 3, 1)
    if not FS:
        stamp(1)
    load_q()
    get_nonce('L_nps', t0)

    def take_ticket():
        a(f's_waitcnt lgkmcnt(0)\nv_readfirstlane_b32 {sST}, {vT}')
        a(f'v_and_b32 {vE}, -4, {vT}\nv_add_u32 {vE}, {L_TAB + 12}, {vE}')

    def step(n, comp, issue):
        if ISS[n] == 'b':
            issue()
        comp()
        if ISS[n] == 'a':
            issue()

    if P16:
        def pace(t):
            a('s_waitcnt vmcnt(3)')
            ld_tile(t, SK, sCUR)
        kdot(0, RING, AD)
        pace(0)
        for t in range(1, 4):
            kdot(t, RING, AD)
        for t in range(4):
            kdot(t, K0B(t), AD2)
        reset_state()
        pace(1)
        softmax4(AD2)
        for t in range(4):
            vdot(t, EXT1)
        pace(2)
        softmax4(AD)
        for t in range(4):
            vdot(t, EXT0)
        pace(3)
        if not FS:
            stamp(4)
    else:
        for t in range(4):
            a('s_waitcnt vmcnt(9)')
            kdot(t, RING, AD)
            ld_tile(t, SV, sCUR)
        a(f's_mov_b32 {sLD}, 1\ns_mov_b32 {sST}, {sWAVE}\nv_mov_b32 {vE}, {L_TAB + 8}')
        for t in range(4):
            kdot(t, EXT0, AD2)
        softmax4(AD2)
        for t in range(4):
            vdot(t, EXT1)
        if not FS:
            stamp(4)
        a('s_branch L_mid')

    a('L_item:')
    for t in range(4):
        if t == 2:
            draw(F_T1)
        if t == 3:
            a(f's_waitcnt vmcnt(4)\ns_cmp_eq_u32 {sLD}, 0\ns_cbranch_scc1 L_k3')
        a('s_waitcnt vmcnt(3)')
        if t == 3:
            a('L_k3:')

        def issue():
            if t == 2:
                take_ticket()
                a(f's_and_b32 {sLD}, {sST}, 3\ns_cmp_lt_u32 {sST}, {NSTAT * 4 - 12}\ns_cselect_b32 {sLD}, 1, {sLD}')
                a(f's_cmp_lg_u32 {sLD}, 0\ns_cbranch_scc1 L_noclaim')
                claim('v4', 0)
                a('L_noclaim:')
            if P16 and t < 2:
                a(f's_cmp_eq_u32 {sMODE}, 2\ns_cbranch_scc1 L_k{t}')
            ld_tile((t + 2) % 4, SK if t < 2 else SV, sCUR)
            if P16 and t < 2:
                a(f'L_k{t}:')
        step(t, lambda: kdot(t, RING, AD), issue)
    if PS:
        ld_tile(2, SV, sCUR)
    a('L_mid:')
    softmax4(AD)
    for t in range(4):
        a(f's_waitcnt vmcnt({6 if PS and t == 0 else 3})')
        if t == 0:
            a(f's_cmp_lg_u32 {sLD}, 0\ns_cbranch_scc1 L_nopub')
            publish('v4', NSTAT * 32 + 1)
            a('L_nopub:')
        if t == 2:
            a(f's_mov_b64 exec, 1\nds_read_b32 {vE2}, {vE}\ns_mov_b64 exec, -1')

        def issue():
            if t < 2:
                if not (PS and t == 0):
                    if not P16:
                        a(f's_cmp_eq_u32 {sMODE}, 2\ns_cbranch_scc1 L_v{t}')
                    ld_tile(t + 2, SV, sCUR)
                    a(f'L_v{t}:')
                return
            if t == 2:
                a(f's_waitcnt lgkmcnt(0)\nv_readfirstlane_b32 {sA}, {vE2}\ns_mov_b32 {sMODE}, 0\ns_nop 0')
                resolve('L_sp0', sST)
                a(f's_cmp_ge_u32 {sA}, {NBIG}\ns_cbranch_scc1 L_trans')
                item_addr(sCUR, sA, sNB)
            ld_tile(t - 2, SK, sCUR)
        step(4 + t, lambda: vdot(t, RING), issue)
    a(f's_cmp_eq_u32 {sNB}, {sCB}\ns_cbranch_scc1 L_item')

    FA, FB, vCMP = 'v48', 'v53', 'v57'

    def flush_addr():
        a(f'v_and_b32 {FA}, 7, v0\nv_lshlrev_b32 {FA}, 5, {FA}\nv_lshrrev_b32 {FB}, 4, v0\nv_lshl_add_u32 {FA}, {FB}, 3, {FA}')
        a(f'v_add_u32 {FA}, {sPB}, {FA}\nv_mov_b32 {FB}, {sPB}')

    def unify():
        allreduce('v_max_f32', t0, t3, low=False)
        a(f'v_sub_f32 {t2}, {vMC}, {t0}\nv_exp_f32 {t2}, {t2}\nv_mov_b32 {vMC}, {t0}\nv_mul_f32 {vL}, {vL}, {t2}')
        for i in range(12):
            a(f'v_pk_mul_f32 v[{ACC + 2 * i}:{ACC + 2 * i + 1}], v[{ACC + 2 * i}:{ACC + 2 * i + 1}], v[{TM + 2}:{TM + 3}] op_sel_hi:[1,0]')
    a('L_flush:')
    a(f'v_mov_b32 {t0}, {vMC}')
    flush_addr()
    unify()
    a('L_flush2:')
    for sw, es, dl in (('v_permlane16_swap_b32', (0, 1, 4, 5), 2), ('v_permlane32_swap_b32', (0, 1), 4)):
        a(f'v_mov_b32 {t3}, {vL}')
        for i in range(3):
            for e in es:
                a(f'{sw} v{ACC + 8 * i + e}, v{ACC + 8 * i + e + dl}')
        a(f'{sw} {vL}, {t3}\nv_add_f32 {vL}, {vL}, {t3}')
        for i in range(3):
            for e in es[::2]:
                r = ACC + 8 * i + e
                a(f'v_pk_add_f32 v[{r}:{r + 1}], v[{r}:{r + 1}], v[{r + dl}:{r + dl + 1}]')
    for r in [vL] + [f'v{ACC + 8 * i + e}' for i in range(3) for e in (0, 1)]:
        a(f'v_add_f32_dpp {r}, {r}, {r} row_ror:8 {DPPM}')
    for i in range(3):
        a(f'ds_write_b64 {FA}, v[{ACC + 8 * i}:{ACC + 8 * i + 1}] offset:{i * 256}')
    a(f's_mov_b64 exec, 1\nds_write_b64 {FB}, v[6:7] offset:768\nds_add_rtn_u32 v56, {vFL}, {vONE} offset:{F_FL}\ns_mov_b64 exec, -1')
    a(f's_cmp_lg_u32 {sCB}, 3\ns_cbranch_scc1 L_nos1')
    a('L_s1:')
    for w in range(4):
        a(f'ds_read_b64 v[{10 + 2 * w}:{11 + 2 * w}], v47 offset:{w * 4 * PARTP + 768}')
    for w in range(4):
        a(f'ds_read_b128 v[{20 + 4 * w}:{23 + 4 * w}], v46 offset:{w * 4 * PARTP}')
        a(f'ds_read_b64 v[{36 + 2 * w}:{37 + 2 * w}], v51 offset:{w * 4 * PARTP + 512}')
    a('s_waitcnt lgkmcnt(8)')
    if diag:
        a(f's_cmp_lt_u32 {sWAVE}, 4\ns_cbranch_scc1 L_s1y')
        a('s_waitcnt lgkmcnt(0)')
        stamp(2)
        a('L_s1y:')
    a('v_cmp_ne_u32 vcc, 3, v56\ns_bitcmp1_b32 vcc_lo, 0\ns_cbranch_scc1 L_fin')
    a('v_max3_f32 v18, v10, v12, v14\nv_max_f32 v18, v18, v16')
    for w in range(4):
        a(f'v_sub_f32 v{10 + 2 * w}, v{10 + 2 * w}, v18')
    for w in range(4):
        a(f'v_exp_f32 v{10 + 2 * w}, v{10 + 2 * w}')
    a('v_mul_f32 v19, v10, v11')
    for w in range(1, 4):
        a(f'v_fmac_f32 v19, v{10 + 2 * w}, v{11 + 2 * w}')
    a(f'v_max_f32 v19, {f2u(1e-30)}, v19\nv_rcp_f32 v44, v19\nv_log_f32 v19, v19')
    for w in range(4):
        a(f's_waitcnt lgkmcnt({6 - 2 * w})' if w < 3 or not diag else f's_cmp_ge_u32 {sWAVE}, 4\ns_cbranch_scc1 L_s1z\ns_waitcnt lgkmcnt(0)\nL_s1z:')
        for d, x in ((20, 20 + 4 * w), (22, 22 + 4 * w), (36, 36 + 2 * w)):
            d, x, e = f'v[{d}:{d + 1}]', f'v[{x}:{x + 1}]', f'v[{10 + 2 * w}:{11 + 2 * w}]'
            a(f'v_pk_fma_f32 {d}, {x}, {e}, {d} op_sel_hi:[1,0,1]' if w else f'v_pk_mul_f32 {d}, {x}, {e} op_sel_hi:[1,0]')
    a('v_add_f32 v18, v18, v19')
    for d in (20, 22, 36):
        a(f'v_pk_mul_f32 v[{d}:{d + 1}], v[{d}:{d + 1}], v[44:45] op_sel_hi:[1,0]')
    a('v_lshlrev_b32 v18, v50, v18\nv_bfi_b32 v59, v55, v49, v18')
    a('v_cvt_pk_bf16_f32 v56, v20, v21\nv_cvt_pk_bf16_f32 v57, v22, v23\nv_cvt_pk_bf16_f32 v58, v36, v37')
    a('s_mov_b32 exec_hi, 0')
    a(f'buffer_store_dwordx4 v[56:59], v54, {SWS}, s83 offen {STM}')
    a('s_mov_b32 exec_hi, -1')
    if diag:
        a(f's_cmp_lt_u32 {sWAVE}, 4\ns_cbranch_scc1 L_s1x')
        stamp(5)
        a('L_s1x:')
    a(f's_cmp_ge_u32 {sWAVE}, 4\ns_cbranch_scc1 L_fin')
    a(f's_cmp_eq_u32 {sPH}, 1\ns_cbranch_scc1 L_pre4')
    a('s_branch L_disp')
    a('L_nos1:')
    a(f's_cmp_eq_u32 {sCB}, 0\ns_cselect_b32 {sA}, 2, 1\ns_add_u32 {sCB}, {sCB}, {sA}\ns_mul_i32 {sA}, {sA}, 384')
    a('s_waitcnt lgkmcnt(0)')
    if pst:
        for b, k in ((2, 3), (3, 4)):
            a(f's_cmp_lg_u32 {sCB}, {b}\ns_cbranch_scc1 L_st{k}')
            stamp(k)
            a(f'L_st{k}:')
    a(f's_add_u32 {sPB}, {sPB}, {PARTP}')
    a(f'v_add_u32 v5, {sA}, v5\nv_add_u32 {vFL}, 4, {vFL}')
    reset_state()
    a(f's_cmp_lt_u32 {sCB}, {sNB}\ns_cbranch_scc1 L_flush')
    load_q()
    a('s_waitcnt lgkmcnt(0)')
    a(f's_cmp_eq_u32 {sMODE}, 0\ns_cbranch_scc1 L_item')
    a('s_branch L_small0')

    def small_claim(lab, tmp=sA, back=None):
        a(f's_waitcnt lgkmcnt(0)\nv_readfirstlane_b32 {sTA}, {vT}\ns_nop 1')
        a(f's_and_b32 {tmp}, {sTA}, 3\ns_cbranch_scc1 {lab}')
        claim(vCA, 128)
        a(f's_waitcnt vmcnt(4)\ns_branch {lab}d')
        a(f'{lab}:')
        a('s_waitcnt vmcnt(3)')
        a(f's_branch {back}' if back else f'{lab}d:')

    a('L_trans:')
    draw(F_T2)
    a(f's_add_u32 {sROT}, {sROT}, {NBIG - 768 + 3 * RB}\ns_lshl_b32 {sROT}, {sROT}, 2')
    a(f's_add_u32 {sA}, {sSB}, {sROT}\ns_and_b32 {sA}, {sA}, 1023\ns_mul_i32 {sA}, {sA}, 3072')
    a(f's_add_u32 {sSB}, {sHB}, {3 * BSTR}\ns_add_u32 {sROT}, {sROT}, 32')
    a(f's_add_u32 {sCUR}, {sSB}, {sA}')
    a(f's_mov_b32 {sMODE}, 1\ns_mov_b32 {sNB}, 3')
    ld_one(0, SK, sCUR)
    if ISS[6] == 'b':
        vdot(2, RING)
    small_claim('L_tr')
    step(7, lambda: vdot(3, RING), lambda: ld_one(1, SV, sCUR))
    stamp(6)
    a(f's_cmp_lg_u32 {sCB}, 3\ns_cbranch_scc1 L_flush')
    a('L_small0:')
    s1_setup(sCB)
    flush_addr()
    a(f'v_mov_b32 {vCMP}, 0x7fc00000')
    if EC:
        a(f's_and_b32 {sA}, {sTA}, 3\ns_cbranch_scc1 L_sm0\ns_waitcnt vmcnt(3)')
    x = s[0]
    last = f's_cmp_ge_u32 {sA}, {SMALL}'
    for par in range(2):
        cur, nxt = 2 * par, 2 - 2 * par
        a(f'L_sm{par}:')
        a(f's_and_b32 {sA}, {sTA}, -4\ns_add_u32 {sA}, {sA}, {L_TAB2}\nv_mov_b32 {vE}, {sA}')
        a(f's_and_b32 {sA}, {sTA}, 3\ns_cbranch_scc1 L_sq{par}')
        a(f's_waitcnt vmcnt({6 if EC else 3})')
        publish(vCA, 1)
        a(f'v_readfirstlane_b32 {sA}, {vCA}')
        a(f'L_sq{par}r:')
        a(f's_and_b32 {sB}, {sTA}, 3\ns_add_u32 {sA}, {sA}, {sB}\ns_sub_u32 {sA}, {sA}, 1')
        spins.append(f'L_sq{par}')
        a(f'{last}\ns_cbranch_scc1 L_nd{par}')
        draw(F_T2)
        a(f's_add_u32 {sB}, {sA}, {sROT}\ns_and_b32 {sB}, {sB}, 1023\ns_mul_i32 {sB}, {sB}, 3072\ns_add_u32 {sCUR}, {sB}, {sSB}')
        if EC:
            a(f's_waitcnt lgkmcnt(0)\nv_readfirstlane_b32 {sTA}, {vT}\ns_nop 1')
            a(f's_and_b32 {sB}, {sTA}, 3\ns_cbranch_scc0 L_cl{par}')
        a(f'{last}\nL_nd{par}:')
        a(f's_waitcnt vmcnt(3)\ns_cbranch_scc1 L_nk{par}')
        a(f'L_ik{par}:')
        ld_one(nxt, SK, sCUR)
        if not EC:
            a(f's_waitcnt lgkmcnt(0)\nv_readfirstlane_b32 {sTA}, {vT}\ns_nop 1')
            a(f's_and_b32 {sB}, {sTA}, 3\ns_cbranch_scc1 L_nk{par}')
            claim(vCA, 128)
        a(f'L_nk{par}:')
        kdot(0, RING + 12 * cur, AD)
        a(f'v_add_f32 {x}, v{AD}, v{AD + 1}')
        for mode in ('quad_perm:[1,0,3,2]', 'quad_perm:[2,3,0,1]', 'row_half_mirror'):
            a(f'v_add_f32_dpp {x}, {x}, {x} {mode} {DPPM}')
        a(f'v_cvt_pk_bf16_f32 {x}, 0, {x}\nv_mul_f32 {x}, {f2u(192 ** -0.5)}, {x}\nv_cvt_pk_bf16_f32 {x}, 0, {x}')
        a(f'v_mul_f32 {t0}, {sLOG2E}, {x}\nv_cmp_nle_f32 vcc, {t0}, {vCMP}\ns_cbranch_vccnz L_nm{par}')
        a(f'L_mo{par}:')
        a(f'v_fma_f32 {x}, {x}, {sLOG2E}, -{vMC}\nv_exp_f32 {x}, {x}')
        a(last)
        a(f'v_cvt_pk_bf16_f32 v{P + 2}, {x}, 0\nv_cvt_pk_bf16_f32 v{P + 3}, 0, {x}\nv_add_f32 {vL}, {vL}, v{P + 3}')
        a(f's_cbranch_scc0 L_nl{par}\ns_waitcnt vmcnt(0)')
        a(f'L_vd{par}:')
        vdot(1, RING + 12 * cur)
        a(f'{last}\ns_cbranch_scc1 L_flush2')
    a('s_branch L_sm0')
    for par in range(2):
        a(f'L_nl{par}:')
        a(f's_waitcnt vmcnt(4)\ns_and_b32 {sB}, {sTA}, 3\ns_cbranch_scc0 L_nv{par}\ns_waitcnt vmcnt(3)\nL_nv{par}:')
        ld_one(3 - 2 * par, SV, sCUR)
        a(f's_branch L_vd{par}')
        if EC:
            a(f'L_cl{par}:')
            claim(vCA, 128)
            a(f's_waitcnt vmcnt(4)\ns_branch L_ik{par}')
        a(f'L_nm{par}:')
        a(f'v_max_f32 {t0}, {t0}, {vMC}')
        unify()
        a(f'v_mov_b32 {vCMP}, {vMC}\ns_branch L_mo{par}')
    for lab in spins:
        a(f'{lab}:')
        a(f's_mov_b64 exec, 1\nds_read_b32 {vE2}, {vE}\ns_mov_b64 exec, -1')
        a(f's_waitcnt lgkmcnt(0)\nv_readfirstlane_b32 {sA}, {vE2}\ns_nop 1')
        a(f's_cmp_eq_u32 {sA}, 0\ns_cbranch_scc1 {lab}')
        a(f's_branch {lab}r')

    a('L_fin:')
    if diag:
        a('s_waitcnt vmcnt(0)')
        stamp(7)
        a('s_mov_b64 exec, -1')
        if lstamp:
            a(f'v_mov_b32 v3, {L_FLAG}')
            lds_wait('L_stw', 'v10', 'v3', F_FL + 12, 4, 64)
            a('s_sleep 127\ns_sleep 127')
        a('s_load_dwordx2 s[8:9], s[0:1], 96')
        a('s_getreg_b32 s62, hwreg(20, 0, 4)')
        a('s_waitcnt lgkmcnt(0)')
        a('s_add_u32 s8, s8, 0x40000000\ns_addc_u32 s9, s9, 0\ns_mov_b32 s10, 0x200000\ns_mov_b32 s11, 0x20000')
        a(f's_lshl_b32 {sA}, s2, 3\ns_add_u32 {sA}, {sA}, {sWAVE}')
        a(f's_lshl_b32 {sB}, {sA}, 5\nv_mov_b32 v1, {sB}')
        a(f's_lshl_b32 {sB}, {sA}, 6\ns_add_u32 {sB}, {sB}, 0x100000\nv_mov_b32 v2, {sB}')
        a('v_mov_b32 v4, s84\nv_mov_b32 v5, s85\nv_mov_b32 v6, s98\nv_mov_b32 v7, s99')
        a(f'v_mov_b32 v8, s62\nv_mov_b32 v9, 0\nv_mov_b32 v10, s96\nv_mov_b32 v11, s97')
        for i in range(16):
            a(f'v_mov_b32 v{12 + i}, s{84 + i}')
        a('s_mov_b64 exec, 1')
        a('buffer_store_dwordx4 v[4:7], v1, s[8:11], 0 offen')
        a('buffer_store_dwordx4 v[8:11], v1, s[8:11], 0 offen offset:16')
        for i in range(4):
            a(f'buffer_store_dwordx4 v[{12 + 4 * i}:{15 + 4 * i}], v2, s[8:11], 0 offen offset:{16 * i}')
    a('L_end:')
    a('s_endpgm')

    ref = open(f'cdna_kernels/{NAME}.s.ref').read().split('\n')
    head = [x for x in ref if x.startswith(';') and '@launch' not in x and not x.startswith('; Override') and not x.startswith('; grid=')]
    out = '\n'.join(head) + f'\n; @launch grid=(256,1,1) block=(512,1,1) lds={LDS_SZ}\n'
    out += f'.amdgcn_target "amdgcn-amd-amdhsa--gfx950"\n.text\n.globl {KERN}\n.p2align 8\n.type {KERN},@function\n'
    out += a.text() + '\n'
    out += f'''.section .rodata,"a"
.p2align 6
.amdhsa_kernel {KERN}
  .amdhsa_next_free_vgpr 256
  .amdhsa_next_free_sgpr 102
  .amdhsa_accum_offset 256
  .amdhsa_group_segment_fixed_size 0
  .amdhsa_kernarg_size 104
  .amdhsa_user_sgpr_count 2
  .amdhsa_user_sgpr_kernarg_segment_ptr 1
  .amdhsa_system_sgpr_workgroup_id_x 1
.end_amdhsa_kernel
'''
    return out


if __name__ == '__main__':
    kw = eval('dict(' + (sys.argv[2] if len(sys.argv) > 2 else '') + ')')
    open(sys.argv[1], 'w').write(gen(**kw))
```

```python
import os, sys, struct
from asmlib import Asm

NAME = 'sequential_preLN__mha_block_cached__dense_activation_gelu__decode'
KERN = NAME + '_kernel'


def f2u(x):
    return '0x%08x' % struct.unpack('<I', struct.pack('<f', x))[0]


NB_KV = 402653184
PROB = 3145728
BSTR = 100663296
ITEM = 12288
QP, OP, HP, CT, AP, WS_SZ = 0x0, 0x100000, 0x200000, 0x1C0000, 0x380000, 0x400000
HPB, APB = 20480, 6144
REG = 24576
L_Q = 98304
L_PART = 99840
PARTP = 784
L_FLAG = 112384
F_Q, F_NONCE, F_W, F_T1, F_T2, F_FL, F_ST, F_H = 0, 4, 8, 12, 16, 16, 32, 48
L_ACT = 112448
L_TAB = 118592
L_TAB2 = L_TAB + 1024
LDS_SZ = 120128
SK, SV, SWS, SDBG, SX, SWQ, SWO, SW1, SW2, SOUT, SB1, SB2 = [f's[{i}:{i+3}]' for i in range(8, 56, 4)]
SRD = {'K': (8, 8, NB_KV), 'V': (12, 16, NB_KV), 'WS': (16, 96, WS_SZ), 'DBG': (20, 88, 256), 'X': (24, 0, 5120),
       'WQ': (28, 24, 7864320), 'WO': (32, 32, 7864320), 'W1': (36, 48, 1966080), 'W2': (40, 64, 1966080),
       'OUT': (44, 80, 5120), 'B1': (48, 56, 3072), 'B2': (52, 72, 1280)}
sWAVE, sH, sJ = 's3', 's4', 's5'
sCUR, sNEXT, sHB, sCB, sNB, sPB, sMODE, sSB = 's56', 's57', 's58', 's59', 's60', 's61', 's6', 's7'
sBAT, sROLE, sIN, sOUTA, sACT, sXO = 's56', 's57', 's58', 's59', 's60', 's61'
sT = ['s64', 's65', 's66', 's67']
sSPIN, sST, sHI, sLOG2E = 's68', 's69', 's70', 's71'
sA, sB, sC, sD = 's72', 's73', 's74', 's75'
sPH = 's79'
SPIN = 1 << 14
DPPM = 'row_mask:0xf bank_mask:0xf'


def gen(diag=False, pol='nt', pst=False, PWIN=3, WWIN=1, SMALL=96, SLP=32, FSLP=2, NSTAT=26, pp2=7, pp4=4, ysl=0, hsl=0, early=1, SLP0=100, QSL=70, dbt=False, pnt='', sb=3, noq=False, WSL=0, PSL=0, RH=4, RB=0, exp=0, QS2=40, PRE=1, lstamp=True, mk=7, D4=1, G4=6, D5=1, G5=6, RC2=1, RC4=1, YS3=4, PAR=False, CTA=0x340000, CTS=4352, STM='sc1', LDM='sc1', OUM='', ISS='bbbbbbbb', PS=True, HM=5, FS=False, XC=True, PB=0, LM=True, EN=True, NWG=6, XS=True, P16=True, PO=0, QS3=0, PL2=0, PL4=0, PL5=0, PLM='', W4=False, FG=False, JX=0, AM='', ALM='sc1', ASW=12, LOC=True, NOA=False, W4S=0, GF=3, EC=True, RHO=True, PT=1, PTM='sc1', W2P='nt', WOP='nt', FD=0, YF=38, YW=18, FLB=0x3F0000, FST=4352):
    CT = CTA
    a = Asm()
    nstamp = [0]

    def stamp(i):
        if diag:
            a(f's_memrealtime s[{84 + 2 * i}:{85 + 2 * i}]')

    def bstamp(i):
        if diag and sb < 3:
            nstamp[0] += 1
            a(f's_cmp_lg_u32 {sBAT}, {sb}\ns_cbranch_scc1 L_bs{nstamp[0]}')
            stamp(i)
            a(f'L_bs{nstamp[0]}:')
        else:
            stamp(i)

    def dstamp(i, op='umax'):
        if dbt:
            a('s_memrealtime s[84:85]\ns_mov_b64 s[86:87], exec\ns_mov_b64 exec, 1\ns_waitcnt lgkmcnt(0)')
            a('v_mov_b32 v254, s84\nv_mov_b32 v255, 0')
            if op == 'umin':
                a('v_sub_u32 v254, 0, v254')
            a(f'buffer_atomic_umax v254, v255, {SDBG}, 0 offen offset:{4 * i} sc1')
            a('s_mov_b64 exec, s[86:87]')

    def allreduce(op, r, t, low=True):
        if low:
            a(f'{op}_dpp {r}, {r}, {r} quad_perm:[1,0,3,2] {DPPM}')
            a(f'{op}_dpp {r}, {r}, {r} quad_perm:[2,3,0,1] {DPPM}')
            a(f'{op}_dpp {r}, {r}, {r} row_half_mirror {DPPM}')
        a(f'{op}_dpp {r}, {r}, {r} row_ror:8 {DPPM}')
        for sw in ('v_permlane16_swap_b32', 'v_permlane32_swap_b32'):
            a(f'v_mov_b32 {t}, {r}')
            a(f'{sw} {r}, {t}')
            a(f'{op} {r}, {r}, {t}')

    def rbf(r):
        a(f'v_cvt_pk_bf16_f32 {r}, {r}, {r}')
        a(f'v_and_b32 {r}, {sHI}, {r}')

    def tag(base, n, vM):
        for i in range(n):
            a(f'v_bfi_b32 v{base + i}, {vM}, {sT[i % 4]}, v{base + i}')

    def check(base, n, chk, label, done, sleep=True, tags=None, mask='v9', step=1):
        tags = tags or sT
        c2 = f'v{int(chk[1:]) + 1}'
        a(f'v_xor_b32 {chk}, {tags[0]}, v{base}\nv_xor_b32 {c2}, {tags[1 % len(tags)]}, v{base + step}')
        for i in range(2, n):
            c = chk if i % 2 == 0 else c2
            a(f'v_bitop3_b32 {c}, {c}, v{base + i * step}, {tags[i % len(tags)]} bitop3:0xf6')
        a(f'v_bitop3_b32 {chk}, {chk}, {c2}, {mask} bitop3:0xa8')
        a(f'v_cmp_ne_u32 vcc, 0, {chk}')
        a(f's_cbranch_vccz {done}')
        a(f's_sub_u32 {sSPIN}, {sSPIN}, 1')
        a(f's_cbranch_scc1 {done}')
        if sleep:
            a(f's_cmp_eq_u32 {sBAT}, 3\ns_cbranch_scc1 {label}')
            a(f's_sleep {SLP}')
            if SLP0:
                a(f's_cmp_lg_u32 {sBAT}, 0\ns_cbranch_scc1 {label}\ns_sleep {SLP0}')
        a(f's_branch {label}')
        a(f'{done}:')
        a(f's_mov_b32 {sSPIN}, {SPIN}')

    def gather(lab, loads, tags, mask, plain=0, sw=None):
        M = ['s[8:9]', 's[10:11]', 's[12:13]', 's[14:15]', 's[28:29]']
        n = len(loads)
        a(f'{lab}:')
        if plain:
            a(f's_bitcmp0_b32 {plain}, {sBAT}\ns_cbranch_scc1 {lab}m')
            for x, _ in loads:
                a(x.replace('sc1', PLM))
            a(f's_branch {lab}w')
            a(f'{lab}m:')
        for i in range(n):
            a(f's_mov_b64 {M[i]}, -1')
        a(f'{lab}l:')
        for i, (x, _) in enumerate(loads):
            a(f's_wqm_b64 exec, {M[i]}')
            a(x.replace('sc1', LDM))
        a('s_mov_b64 exec, -1')
        a(f'{lab}w:')
        a('s_waitcnt vmcnt(0)')
        for k in range(len(loads[0][1])):
            for i, (_, regs) in enumerate(loads):
                t = tags[k % len(tags)]
                a(f'v_bitop3_b32 v{10 + i}, v{10 + i}, v{regs[k]}, {t} bitop3:0xf6' if k else f'v_xor_b32 v{10 + i}, {t}, v{regs[0]}')
        for i in range(n):
            a(f'v_and_b32 v{10 + i}, {mask}, v{10 + i}')
        for i in range(n):
            a(f'v_cmp_ne_u32 {M[i]}, 0, v{10 + i}')
        a('s_nop 1')
        a(f's_or_b64 vcc, {M[0]}, {M[1]}')
        for i in range(2, n):
            a(f's_or_b64 vcc, vcc, {M[i]}')
        a(f's_cbranch_scc0 {lab}d')
        a(f's_sub_u32 {sSPIN}, {sSPIN}, 1\ns_cbranch_scc1 {lab}d')
        if sw:
            a(f's_cmp_lt_u32 {sSPIN}, {SPIN - ASW}\ns_cselect_b32 {sw[0]}, {sw[1]}, {sw[0]}')
        a(f's_cmp_eq_u32 {sBAT}, 3\ns_cbranch_scc1 {lab}l')
        a(f's_sleep {SLP}\ns_branch {lab}l')
        a(f'{lab}d:')
        a(f's_mov_b32 {sSPIN}, {SPIN}')

    def get_nonce(lab, t):
        a(f'{lab}:')
        a(f'v_mov_b32 {t}, {L_FLAG}')
        a(f'ds_read_b32 {t}, {t} offset:{F_NONCE}')
        a('s_waitcnt lgkmcnt(0)')
        a(f'v_readfirstlane_b32 {sT[0]}, {t}')
        a('s_nop 1')
        a(f's_cmp_eq_u32 {sT[0]}, 0\ns_cbranch_scc1 {lab}')
        for i in (1, 2, 3):
            a(f's_lshr_b32 {sT[i]}, {sT[0]}, {8 * i}')

    def lds_wait(lab, t, vaddr, off, val, slp):
        a(f'{lab}:')
        a(f'ds_read_b32 {t}, {vaddr} offset:{off}')
        a('s_waitcnt lgkmcnt(0)')
        a(f'v_cmp_gt_u32 vcc, {val}, {t}')
        if slp:
            a(f's_cbranch_vccz {lab}d')
            a(f's_sleep {slp}\ns_branch {lab}')
            a(f'{lab}d:')
        else:
            a(f's_cbranch_vccnz {lab}')

    def lds_inc(vaddr, off, one):
        a('s_mov_b64 exec, 1')
        a(f'ds_add_u32 {vaddr}, {one} offset:{off}')
        a('s_mov_b64 exec, -1')

    def pub_exec(n, soff, stride):
        if W4:
            a(f's_cmp_eq_u32 {sBAT}, 3\ns_cselect_b32 {sA}, -1, 0x1111')
            return
        a(f's_add_u32 {sA}, {soff}, {4 * stride}')
        a(f's_cmp_eq_u32 {sBAT}, {3 if n > 1 else 4}\ns_cselect_b64 exec, -1, 0xffff')

    def pub_addr(v, g, t, stride):
        if W4:
            a(f'v_and_b32 {t}, 3, v0\nv_lshl_add_u32 {t}, {g}, 2, {t}\nv_and_b32 {t}, 7, {t}\nv_mul_u32_u24 {t}, {stride}, {t}')
            a(f'v_and_b32 {v}, 12, v0\nv_lshl_add_u32 {v}, {v}, 2, {t}')
        else:
            a(f'v_mul_u32_u24 {t}, {stride}, {g}\nv_and_b32 {v}, 15, v0\nv_lshl_add_u32 {v}, {v}, 2, {t}')

    def pub_store(n, v, vaddr, soff, lab):
        if W4:
            assert n == 8
            for k in range(4):
                a(f'v_mov_b32_dpp v{16 + k}, {v} quad_perm:[{k},{k},{k},{k}] {DPPM}')
            a(f's_mov_b32 exec_lo, {sA}\ns_mov_b32 exec_hi, 0')
            a(f'buffer_store_dwordx4 v[16:19], {vaddr}, {SWS}, {soff} offen {STM}')
            return
        a(f'buffer_store_dword {v}, {vaddr}, {SWS}, {soff} offen {STM}')
        if n == 8:
            a(f's_cbranch_scc0 {lab}')
            a(f'buffer_store_dword {v}, {vaddr}, {SWS}, {sA} offen {STM}')
            a(f'{lab}:')

    def copy_off(n, stride, inc):
        if n == 1:
            return inc
        r = sB if stride == 4 * HPB else sD
        a(f's_and_b32 {r}, {sJ}, {n - 1}\ns_mul_i32 {r}, {r}, {stride}\ns_cmp_eq_u32 {sBAT}, 2\ns_cselect_b32 {r}, {r}, 0\ns_add_u32 {r}, {r}, {inc}')
        return r

    def set_exec(m):
        a(f's_mov_b32 exec_lo, {m:#x}\ns_mov_b32 exec_hi, {m:#x}')

    sP, sQO = 's80', 's81'

    def srd(*ks):
        for k in ks:
            r, off, sz = SRD[k]
            a(f's_mov_b32 s{r + 2}, {sz}\ns_mov_b32 s{r + 3}, 0x20000')

    def kload(*ks):
        for k in ks:
            r, off, _ = SRD[k]
            a(f's_load_dwordx2 s[{r}:{r + 1}], s[0:1], {off}')

    def consts():
        a(f's_mov_b32 {sHI}, 0xffff0000\ns_mov_b32 {sLOG2E}, {f2u(1.4426950408889634)}')
        a(f's_mov_b32 {sSPIN}, {SPIN}')

    def lds_init(v, sx, sy):
        z, p, q, r = v, f'v{v + 4}', f'v{v + 5}', f'v{v + 6}'
        for k in range(4):
            a(f'v_mov_b32 v{z + k}, 0')
        a(f'v_and_b32 {p}, 15, v0\nv_lshlrev_b32 {p}, 2, {p}\nv_add_u32 {p}, {L_FLAG}, {p}')
        a(f'ds_write_b32 {p}, v{z}')
        a(f'v_lshlrev_b32 {p}, 4, v0\nv_lshlrev_b32 {q}, 3, v0\nv_add_u32 {r}, {L_TAB}, {p}\nv_add_u32 {q}, {L_TAB2}, {q}')
        a(f'ds_write_b128 {r}, v[{z}:{z + 3}]\nds_write_b64 {q}, v[{z}:{z + 1}]')
        a(f's_lshr_b32 {sx}, {sJ}, 2\ns_mul_i32 {sx}, {sx}, 240\ns_lshl_b32 {sy}, {sJ}, 2\ns_add_u32 {sy}, {sy}, 1\ns_add_u32 {sx}, {sx}, {sy}')
        a(f'v_add_u32 {q}, {sx}, {p}\nv_lshlrev_b32 {p}, 5, v0\nv_add_u32 {p}, {sy}, {p}')
        a(f'v_cmp_gt_u32 vcc, 16, v0\nv_cndmask_b32 {p}, {p}, {q}, vcc')
        a(f'v_cmp_gt_u32 vcc, {NSTAT}, v0\nv_cndmask_b32 {p}, 0, {p}, vcc')
        a(f'v_lshlrev_b32 {q}, 2, v0\nv_add_u32 {q}, {L_TAB}, {q}')
        a(f'ds_write_b32 {q}, {p}')

    def nonce_store(sx, va, vb):
        a(f'v_lshlrev_b32 {va}, 6, v0\ns_waitcnt lgkmcnt(0)')
        a(f's_mul_i32 {sx}, s62, 0x9e3779b1\ns_or_b32 {sx}, {sx}, 1\nv_mov_b32 {vb}, {sx}')
        a('s_mov_b64 exec, 15')
        a(f'buffer_store_dword {vb}, {va}, {SDBG}, 0 offen sc1')
        a('s_mov_b64 exec, -1')

    a(f'{KERN}:')
    a('s_cmp_ge_u32 s2, 256\ns_cbranch_scc1 L_end')
    if EN:
        kload('X', 'WQ', 'K')
        a('v_lshrrev_b32 v1, 6, v0\nv_and_b32 v0, 63, v0')
        a(f'v_readfirstlane_b32 {sWAVE}, v1')
        stamp(0)
        a(f's_and_b32 {sJ}, s2, 7\ns_lshr_b32 {sH}, s2, 3')
        a(f's_cmp_ge_u32 {sWAVE}, 4\ns_cbranch_scc1 L_stream')
        srd('X', 'WQ')
    else:
        kload('X', 'WQ', 'K', 'DBG', 'WS', 'V', 'WO', 'W1', 'W2', 'OUT', 'B1', 'B2')
        a('s_memrealtime s[62:63]')
        stamp(0)
        a('v_lshrrev_b32 v1, 6, v0\nv_and_b32 v0, 63, v0')
        a(f'v_readfirstlane_b32 {sWAVE}, v1')
        srd(*SRD)
        a(f's_and_b32 {sJ}, s2, 7')
        if HM:
            a(f's_mul_i32 {sH}, {sJ}, {8 * HM}\ns_add_u32 s2, s2, {sH}\ns_and_b32 s2, s2, 255')
        a(f's_lshr_b32 {sH}, s2, 3')
        consts()
        a(f's_cmp_ge_u32 {sWAVE}, 4\ns_cbranch_scc1 L_stream')
        a(f's_cmp_lg_u32 {sWAVE}, 3\ns_cbranch_scc1 L_h0')
        lds_init(12, sA, sB)
        a('s_cmp_lg_u32 s2, 0\ns_cbranch_scc1 L_h0')
        nonce_store(sB, 'v7', 'v5')

    a('L_h0:')
    if XC:
        a('v_lshrrev_b32 v2, 2, v0\nv_and_b32 v1, 3, v2\nv_mul_u32_u24 v1, 1280, v1\nv_lshrrev_b32 v4, 4, v0')
        a('v_and_b32 v3, 3, v0\nv_lshl_add_u32 v3, v4, 2, v3\nv_lshl_add_u32 v3, v3, 4, v1\nv_lshl_add_u32 v4, v4, 3, v1')
    else:
        a('v_and_b32 v1, 3, v0\nv_mul_u32_u24 v1, 1280, v1\nv_lshrrev_b32 v2, 2, v0\nv_mul_u32_u24 v3, 80, v2\nv_add_u32 v3, v3, v1')
        a('v_lshrrev_b32 v4, 4, v0\nv_lshl_add_u32 v4, v4, 3, v1')
    a('v_lshrrev_b32 v5, 3, v0\nv_mul_u32_u24 v5, 12288, v5\nv_and_b32 v6, 7, v0\nv_lshl_add_u32 v5, v6, 4, v5')
    a(f's_add_u32 {sP}, {sJ}, {sH}\ns_and_b32 {sP}, {sP}, 7')
    a(f's_and_b32 {sD}, {sP}, 1\ns_lshl_b32 {sD}, {sD}, 2\ns_add_u32 {sD}, {sD}, {sWAVE}')
    a(f's_mul_i32 {sA}, {sD}, 160')
    a(f's_mul_i32 {sB}, {sD}, {80 * 12288}\ns_mul_i32 {sC}, {sH}, 384\ns_add_u32 {sB}, {sB}, {sC}')
    a(f's_lshr_b32 {sC}, {sP}, 1\ns_lshl_b32 {sC}, {sC}, 7\ns_add_u32 {sB}, {sB}, {sC}')
    a(f's_mul_i32 {sC}, {sWAVE}, {REG}\ns_mul_i32 {sQO}, {sH}, 6144')
    a('s_waitcnt lgkmcnt(0)')
    if PB == 1:
        a('s_barrier')
    a(f's_cmp_ge_u32 {sP}, {0 if exp & 2 else 6}\ns_cbranch_scc1 L_nold')
    if XS:
        a(f's_cmp_lg_u32 {sWAVE}, 3\ns_cbranch_scc1 L_nox')
    for i in range(5):
        a(f'buffer_load_dwordx4 v[{20 + 4 * i}:{23 + 4 * i}], v3, {SX}, 0 offen offset:{i * (256 if XC else 16)}')
    for i in range(0 if XS else 5):
        a(f'buffer_load_dwordx2 v[{10 + 2 * i}:{11 + 2 * i}], v4, {SX}, {sA} offen offset:{i * 32}')
    a('L_nox:')
    for u in range(10):
        if PB == 2 + u:
            a('s_barrier')
        a(f's_mov_b32 m0, {sC}')
        a(f'buffer_load_dwordx4 v5, {SWQ}, {sB} offen nt lds')
        if u < 9:
            a(f's_add_u32 {sB}, {sB}, {8 * 12288}\ns_add_u32 {sC}, {sC}, 1024')
    if PB >= 2:
        a('s_branch L_nob')
    a('L_nold:')
    if PB != 1:
        a('s_barrier')
    a('L_nob:')
    if EN:
        kload('DBG', 'WS', 'WO', 'W1', 'W2', 'OUT', 'B1', 'B2')
        srd('DBG', 'WS', 'WO', 'W1', 'W2', 'OUT', 'B1', 'B2')
        consts()
        a('s_waitcnt lgkmcnt(0)')
    a(f's_cmp_lg_u32 {sWAVE}, {1 if XS else 3}\ns_cbranch_scc1 L_h1')
    for i in (3, 0, 1, 2):
        a(f's_load_dword {sT[0]}, s[20:21], {64 * i}')
        a('s_waitcnt lgkmcnt(0)')
        a(f's_cmp_lg_u32 {sT[0]}, 0\ns_cbranch_scc1 L_ngot')
    a('v_mov_b32 v7, 0')
    a('L_nv:')
    a(f'buffer_load_dword v6, v7, {SDBG}, 0 offen sc1')
    a('s_waitcnt vmcnt(0)')
    a(f'v_readfirstlane_b32 {sT[0]}, v6')
    a(f's_sub_u32 {sSPIN}, {sSPIN}, 1\ns_cselect_b32 {sT[0]}, 1, {sT[0]}')
    a(f's_cmp_eq_u32 {sT[0]}, 0\ns_cbranch_scc1 L_nv')
    a(f's_mov_b32 {sSPIN}, {SPIN}')
    a('L_ngot:')
    a(f'v_mov_b32 v6, {sT[0]}\nv_mov_b32 v7, {L_FLAG}')
    a(f'ds_write_b32 v7, v6 offset:{F_NONCE}')
    a('L_h1:')
    a(f's_cmp_ge_u32 {sP}, 6\ns_cbranch_scc1 L_nop')
    a(f's_or_b32 {sB}, {sP}, {sWAVE}\ns_cbranch_scc1 L_noct')
    a(f's_mul_i32 {sB}, {sH}, {CTS}\ns_add_u32 {sB}, {sB}, {CT}')
    a('v_mov_b32 v6, 0\nv_lshlrev_b32 v7, 7, v0\ns_mov_b64 exec, 3')
    a(f'buffer_store_dword v6, v7, {SWS}, {sB} offen sc1')
    a('s_mov_b64 exec, -1')
    a('L_noct:')
    if exp & 2:
        a('s_branch L_fin')
    L_XF = L_TAB2 + 504
    if XS:
        a(f's_cmp_lg_u32 {sWAVE}, 3\ns_cbranch_scc1 L_xw')
    a('s_waitcnt vmcnt(10)')
    stamp(1)
    NX, XB = (20, 20) if XS else (10, 10)
    a(f's_mov_b32 {sD}, 0x3f803f80')
    for i in range(20):
        acc = f'v{6 + i % 2}'
        a(f'v_dot2_f32_bf16 {acc}, v{20 + i}, {sD}, {acc if i >= 2 else 0}')
    for i in range(20):
        a(f'v_lshlrev_b32 v{40 + 2 * i}, 16, v{20 + i}\nv_and_b32 v{41 + 2 * i}, {sHI}, v{20 + i}')
    a('v_add_f32 v6, v6, v7')

    def red4(r, t):
        if XC:
            a(f'v_add_f32_dpp {r}, {r}, {r} quad_perm:[1,0,3,2] {DPPM}')
            a(f'v_add_f32_dpp {r}, {r}, {r} quad_perm:[2,3,0,1] {DPPM}')
            for sw in ('v_permlane16_swap_b32', 'v_permlane32_swap_b32'):
                a(f'v_mov_b32 {t}, {r}\n{sw} {r}, {t}\nv_add_f32 {r}, {r}, {t}')
            return
        a(f'v_add_f32_dpp {r}, {r}, {r} row_ror:4 {DPPM}')
        allreduce('v_add_f32', r, t, low=False)
    red4('v6', 'v7')
    a(f'v_mul_f32 v6, {f2u(1 / 640)}, v6')
    DV, VA = (80, 10) if XS else (40, 20)
    for i in range(20):
        a(f'v_pk_add_f32 v[{DV + 2 * i}:{DV + 1 + 2 * i}], v[{40 + 2 * i}:{41 + 2 * i}], v[6:7] op_sel_hi:[1,0] neg_lo:[0,1] neg_hi:[0,1]')
    for i in range(20):
        d = f'v[{DV + 2 * i}:{DV + 1 + 2 * i}]'
        acc = f'v[{VA + 2 * (i % 2)}:{VA + 1 + 2 * (i % 2)}]'
        a(f'v_pk_mul_f32 {acc}, {d}, {d}' if i < 2 else f'v_pk_fma_f32 {acc}, {d}, {d}, {acc}')
    rbf('v6')
    for i in range(0 if XS else 10):
        a(f'v_lshlrev_b32 v{40 + 2 * i}, 16, v{10 + i}\nv_and_b32 v{41 + 2 * i}, {sHI}, v{10 + i}')
    a(f'v_add_f32 v{VA}, v{VA}, v{VA + 1}\nv_add_f32 v{VA + 2}, v{VA + 2}, v{VA + 3}\nv_add_f32 v8, v{VA}, v{VA + 2}')
    red4('v8', 'v9')
    for i in range(NX):
        a(f'v_pk_add_f32 v[{40 + 2 * i}:{41 + 2 * i}], v[{40 + 2 * i}:{41 + 2 * i}], v[6:7] op_sel_hi:[1,0] neg_lo:[0,1] neg_hi:[0,1]')
    a(f'v_mul_f32 v8, {f2u(1 / 640)}, v8')
    rbf('v8')
    a(f'v_add_f32 v8, {f2u(1e-5)}, v8')
    rbf('v8')
    a('v_sqrt_f32 v8, v8')
    for i in range(NX):
        a(f'v_cvt_pk_bf16_f32 v{XB + i}, v{40 + 2 * i}, v{41 + 2 * i}')
    rbf('v8')
    a('v_rcp_f32 v8, v8')
    for i in range(NX):
        a(f'v_lshlrev_b32 v{40 + 2 * i}, 16, v{XB + i}\nv_and_b32 v{41 + 2 * i}, {sHI}, v{XB + i}')
    for i in range(NX):
        a(f'v_pk_mul_f32 v[{40 + 2 * i}:{41 + 2 * i}], v[{40 + 2 * i}:{41 + 2 * i}], v[8:9] op_sel_hi:[1,0]')
    for i in range(NX):
        a(f'v_cvt_pk_bf16_f32 v{XB + i}, v{40 + 2 * i}, v{41 + 2 * i}')
    if XS:
        a(f'v_add_u32 v3, {L_PART}, v3\nv_mov_b32 v6, {L_XF}\nv_mov_b32 v7, 1')
        for i in range(5):
            a(f'ds_write_b128 v3, v[{20 + 4 * i}:{23 + 4 * i}] offset:{i * 256}')
        a('ds_write_b32 v6, v7')
        a('L_xw:')
        a(f's_add_u32 {sA}, {sA}, {L_PART}\nv_add_u32 v4, {sA}, v4\nv_mov_b32 v6, {L_XF}')
        lds_wait('L_xv', 'v7', 'v6', 0, 1, 1)
        for i in range(5):
            a(f'ds_read_b64 v[{10 + 2 * i}:{11 + 2 * i}], v4 offset:{i * 32}')
    a(f'v_and_b32 v1, 3, v0\nv_lshlrev_b32 v5, 7, v2\nv_lshl_add_u32 v5, v1, 3, v5')
    a(f's_mul_i32 {sC}, {sWAVE}, {REG}\nv_add_u32 v5, {sC}, v5')
    a('v_mov_b32 v9, 0xff\nv_lshlrev_b32 v8, 4, v0')
    get_nonce('L_np0', 'v6')
    stamp(2)
    a('s_waitcnt vmcnt(0)')
    stamp(3)
    for qs in ((4,), (0, 1), (2, 3)):
        for T in range(4):
            for q in qs:
                r = 20 + T * 12 + q * 2
                a(f'ds_read_b64_tr_b16 v[{r}:{r + 1}], v5 offset:{q * 2048 + T * 32}')
    a(f's_lshl_b32 {sB}, {sP}, 10\ns_add_u32 {sB}, {sB}, {sQO}')
    a(f's_lshl_b32 {sC}, {sWAVE}, 10\nv_add_u32 v7, {L_ACT}, v8\nv_add_u32 v6, {sC}, v7')
    if XC:
        a(f's_add_u32 {sC}, {sC}, {L_ACT}\nv_and_b32 v6, 0xf0, v8\nv_lshrrev_b32 v3, 4, v0\nv_lshl_add_u32 v6, v3, 2, v6\nv_add_u32 v6, {sC}, v6')
    a(f'v_mov_b32 v3, {L_TAB2 + 508}\nv_mov_b32 v4, 1')
    a('s_waitcnt lgkmcnt(15)')
    for T in range(4):
        r, d = 20 + T * 12, 68 + T * 4
        a(f'v_mfma_f32_16x16x16_bf16 v[{d}:{d + 3}], v[18:19], v[{r + 8}:{r + 9}], 0')
    for kk in range(2):
        a(f's_waitcnt lgkmcnt({8 - 8 * kk})')
        for T in range(4):
            r, d = 20 + T * 12 + 4 * kk, 68 + T * 4
            a(f'v_mfma_f32_16x16x32_bf16 v[{d}:{d + 3}], v[{10 + 4 * kk}:{13 + 4 * kk}], v[{r}:{r + 3}], v[{d}:{d + 3}]')
    if XC:
        a('ds_write2_b32 v6, v68, v72 offset0:0 offset1:64\nds_write2_b32 v6, v76, v80 offset0:128 offset1:192')
    else:
        a('s_mov_b64 exec, 0xffff')
        for T in range(4):
            a(f'ds_write_b128 v6, v[{68 + T * 4}:{71 + T * 4}] offset:{T * 256}')
    a('s_mov_b64 exec, 1\nds_add_rtn_u32 v4, v3, v4\ns_mov_b64 exec, -1')
    a(f's_waitcnt lgkmcnt(0)\nv_readfirstlane_b32 {sA}, v4\ns_nop 1')
    a(f's_cmp_lg_u32 {sA}, 3\ns_cbranch_scc1 L_qc')
    for w in range(4):
        a(f'ds_read_b128 v[{20 + 4 * w}:{23 + 4 * w}], v7 offset:{w * 1024}')
    a('s_waitcnt lgkmcnt(2)')
    a('v_pk_add_f32 v[20:21], v[20:21], v[24:25]\nv_pk_add_f32 v[22:23], v[22:23], v[26:27]')
    a('s_waitcnt lgkmcnt(0)')
    a('v_pk_add_f32 v[28:29], v[28:29], v[32:33]\nv_pk_add_f32 v[30:31], v[30:31], v[34:35]')
    a('v_pk_add_f32 v[36:37], v[20:21], v[28:29]\nv_pk_add_f32 v[38:39], v[22:23], v[30:31]')
    tag(36, 4, 'v9')
    a(f'buffer_store_dwordx4 v[36:39], v8, {SWS}, {sB} offen sc1')
    stamp(4)
    a('s_branch L_qc')
    a('L_nop:')
    a('v_mov_b32 v9, 0xff\nv_lshlrev_b32 v8, 4, v0')
    get_nonce('L_np1', 'v6')
    if exp & 2:
        a('s_branch L_fin')
    if QSL:
        a(f's_sleep {QSL}')
    a('L_qc:')
    a(f'v_mov_b32 v3, {L_FLAG}\nv_mov_b32 v4, 1')
    a(f's_cmp_eq_u32 {sWAVE}, 3\ns_cbranch_scc1 L_role')
    a(f's_lshl_b32 {sB}, {sWAVE}, 11\ns_add_u32 {sB}, {sB}, {sQO}')
    if QS2:
        a(f's_sleep {QS2}')
    if QS3:
        a(f's_branch L_qg\nL_qgs:\ns_sleep {QS3}')
    a('L_qg:')
    for m in range(2):
        a(f'buffer_load_dwordx4 v[{20 + 4 * m}:{23 + 4 * m}], v8, {SWS}, {sB} offen offset:{m * 1024} sc1')
    a('s_waitcnt vmcnt(0)')
    check(20, 8, 'v10', 'L_qg' + ('s' if QS3 else ''), 'L_qgd', sleep=False)
    a(f's_mov_b32 {sD}, 0x80')
    for i in range(8):
        a(f'v_bfi_b32 v{20 + i}, v9, {sD}, v{20 + i}')
    for i in range(4):
        a(f'v_add_f32 v{20 + i}, v{20 + i}, v{24 + i}')
    a('v_cvt_pk_bf16_f32 v20, v20, v21\nv_cvt_pk_bf16_f32 v22, v22, v23')
    a(f's_lshl_b32 {sC}, {sWAVE}, 7\ns_add_u32 {sC}, {sC}, {L_Q}')
    a(f'v_lshl_add_u32 v5, v0, 1, {sC}')
    a('ds_write_b16 v5, v20\nds_write_b16_d16_hi v5, v20 offset:384')
    a('ds_write_b16 v5, v22 offset:768\nds_write_b16_d16_hi v5, v22 offset:1152')
    lds_inc('v3', F_Q, 'v4')
    stamp(5)

    def dma_loop(lab, srd, n, gstep, pl=WOP):
        a(f's_add_u32 {sD}, {sC}, {n * 1024}')
        a(f'{lab}:')
        a(f's_mov_b32 m0, {sC}')
        a(f's_add_u32 {sC}, {sC}, 1024')
        a(f'buffer_load_dwordx4 v2, {srd}, {sB} offen {pl} lds')
        a(f's_add_u32 {sB}, {sB}, {gstep}')
        a(f's_waitcnt vmcnt({WWIN})')
        a(f's_cmp_lt_u32 {sC}, {sD}\ns_cbranch_scc1 {lab}')

    def weights_ready(lab, n=4):
        a('s_waitcnt vmcnt(0)')
        lds_inc('v3', F_W, 'v4')
        lds_wait(lab, 'v12', 'v3', F_W, n, 8)

    def tr_reads(lst):
        for n, (r, va, off) in enumerate(lst):
            if n and n % 12 == 0:
                a('s_waitcnt lgkmcnt(0)')
            a(f'ds_read_b64_tr_b16 v[{r}:{r + 1}], {va} offset:{off}')
        a('s_waitcnt lgkmcnt(0)')

    def batch_top(lab):
        a('s_branch L_pre')
        a(f'{lab}:')
        if early >> ('L_s2b', 'L_s4b', 'L_s5b').index(lab) & 1:
            a(f's_cmp_eq_u32 {sBAT}, 2\ns_cbranch_scc1 L_pre2')
        a(f'{lab}c:')

    def shadow_sleep(lab, n, force=False):
        if n or force:
            a(f's_cmp_eq_u32 {sBAT}, 3\ns_cbranch_scc1 {lab}')
        for i in range(n):
            a('s_sleep 127')

    def s1_setup(sb):
        a(f's_mul_i32 {sA}, {sb}, {PARTP}\ns_add_u32 {sA}, {sA}, {L_PART}')
        a(f'v_and_b32 v51, 31, v0\nv_lshlrev_b32 v54, 4, v51\nv_add_u32 v46, {sA}, v54\nv_mov_b32 v47, {sA}')
        a(f'v_lshl_add_u32 v51, v51, 3, {sA}\nv_mov_b32 v55, 0xffff')
        a(f'v_and_b32 v50, 1, v0\nv_lshlrev_b32 v50, 4, v50\nv_lshrrev_b32 v49, v50, {sT[0]}\nv_sub_u32 v50, 16, v50')
        a(f's_lshl_b32 s83, {sb}, 17\ns_lshl_b32 {sA}, s2, 9\ns_add_u32 s83, s83, {sA}\ns_add_u32 s83, s83, {OP}')

    def wait_flush(lab, split):
        a(f's_cmp_lg_u32 {sBAT}, 3\ns_cbranch_scc1 {lab}d')
        if PAR:
            for r, bit, off in split:
                if r[0] == 's':
                    a(f's_bitcmp1_b32 {sWAVE}, 0\ns_cselect_b32 {sB}, {off}, 0\ns_add_u32 {r}, {r}, {sB}')
                else:
                    a(f'v_bfe_u32 v10, v0, {bit}, 1\nv_mul_u32_u24 v10, {off}, v10\nv_add_u32 {r}, {r}, v10')
        stamp(2)
        lds_wait(lab, 'v10', 'v3', F_FL, 4, FSLP)
        bstamp(6)

    def wait_heads(lab):
        a(f's_cmp_lg_u32 {sBAT}, 3\ns_cbranch_scc1 {lab}x')
        a(f's_mul_i32 {sB}, {sJ}, {FST}\ns_add_u32 {sB}, {sB}, {FLB}\nv_and_b32 v11, 31, v0\nv_lshlrev_b32 v11, 2, v11')
        a(f'{lab}:')
        a(f'buffer_load_dword v10, v11, {SWS}, {sB} offen sc1')
        a(f's_sub_u32 {sSPIN}, {sSPIN}, 1\ns_cbranch_scc1 {lab}d')
        a(f's_waitcnt vmcnt(0)\nv_cmp_ne_u32 vcc, {sT[0]}, v10\ns_cbranch_vccnz {lab}')
        a(f'{lab}d:')
        a(f's_mov_b32 {sSPIN}, {SPIN}')
        if FD:
            a(f's_sleep {FD}')
        stamp(5)
        a(f'{lab}x:')

    def batch_end(lab, incs):
        a('s_mov_b64 exec, -1')
        a(f's_add_u32 {sBAT}, {sBAT}, 1')
        a('v_add_u32 v3, 4, v3')
        for r, d in incs:
            a(f's_add_u32 {r}, {r}, {d}' if r[0] == 's' else f'v_add_u32 {r}, {d}, {r}')
        a(f's_cmp_lt_u32 {sBAT}, 4\ns_cbranch_scc1 {lab}')
        a('s_branch L_fin')

    a('L_role:')
    if exp & 1:
        a('s_branch L_fin')
    for i in range(WSL):
        a('s_sleep 127')
    a(f's_lshl_b32 {sA}, {sJ}, 2\ns_add_u32 {sA}, {sA}, {sH}\ns_and_b32 {sA}, {sA}, 31\ns_mov_b32 {sROLE}, 0')
    a(f's_mul_i32 {sC}, {sWAVE}, {REG}')
    a('v_lshrrev_b32 v5, 1, v0\nv_and_b32 v5, 16, v5\nv_lshrrev_b32 v6, 2, v0\nv_and_b32 v6, 5, v6\nv_and_b32 v7, 8, v0\nv_or3_b32 v6, v5, v6, v7')
    a('v_lshrrev_b32 v5, 4, v0\nv_and_b32 v7, 3, v0')

    def sp_index(v):
        a(f'v_and_b32 {v}, 1, v0\nv_mul_u32_u24 {v}, 0xaaaa, {v}\nv_add_u32 {v}, 0x4444, {v}\nv_lshl_add_u32 {v}, {v}, 16, {v}')

    def a_addr(v, t):
        a(f'v_and_b32 {t}, 1, v0\nv_lshl_add_u32 {t}, v5, 1, {t}\nv_lshlrev_b32 {v}, 4, {t}\nv_add_u32 {v}, {L_ACT}, {v}')

    def smf(d, x, w, ix):
        a(f'v_smfmac_f32_16x16x64_bf16 v[{d}:{d + 3}], v[{x}:{x + 3}], v[{w}:{w + 7}], {ix}')

    def zero(r, n):
        for k in range(n):
            a(f'v_mov_b32 v{r + k}, 0')

    a('v_and_b32 v63, 15, v0\nv_lshlrev_b32 v63, 2, v63')
    a(f's_cmp_eq_u32 {sJ}, {JX}\ns_cbranch_scc1 L_ffn')
    a(f's_mov_b32 {sD}, {sJ}\ns_cmp_lt_u32 {sA}, 10\ns_cbranch_scc1 L_s2')
    a(f's_cmp_lg_u32 {sJ}, {JX ^ 4}\ns_cbranch_scc1 L_idle')
    a(f's_mov_b32 {sD}, {JX}\ns_xor_b32 {sA}, {sA}, 16\ns_cmp_ge_u32 {sA}, 10\ns_cbranch_scc1 L_idle')

    a('L_s2:')
    a(f's_mul_i32 {sOUTA}, {sD}, 2560\ns_lshl_b32 {sB}, {sA}, 8\ns_add_u32 {sOUTA}, {sOUTA}, {sB}')
    a(f's_add_u32 {sOUTA}, {sOUTA}, {HP}')
    a(f's_lshl_b32 {sD}, {sD}, 2\ns_add_u32 {sD}, {sD}, {sWAVE}')
    a(f's_lshl_b32 {sIN}, {sD}, 12\ns_add_u32 {sIN}, {sIN}, {OP + (1 << 17)}')
    if FG:
        a(f's_cmp_eq_u32 {sA}, 0\ns_cselect_b32 {sXO}, 3, 7\ns_lshl_b32 {sACT}, {sD}, 2\ns_add_u32 {sACT}, {sACT}, {FLB}')
        a(f'v_mul_u32_u24 v228, {FST}, v0\nv_mov_b32 v229, {sT[0]}')
    a(f's_mul_i32 {sB}, {sD}, {192 * 1280}\ns_lshl_b32 {sA}, {sA}, 7\ns_add_u32 {sB}, {sB}, {sA}')
    a('v_lshrrev_b32 v2, 3, v0\nv_mul_u32_u24 v2, 1280, v2\nv_and_b32 v1, 7, v0\nv_lshl_add_u32 v2, v1, 4, v2')
    dma_loop('L_dwo', SWO, 24, 8 * 1280)
    a('v_lshlrev_b32 v10, 7, v6\nv_lshl_add_u32 v10, v7, 3, v10')
    a(f's_mul_i32 {sA}, {sWAVE}, {REG}\nv_add_u32 v10, {sA}, v10\ns_waitcnt vmcnt(0)')
    tr_reads([(128 + 24 * T + 4 * s_ + 2 * q, 'v10', s_ * 4096 + q * 256 + T * 32) for T in range(4) for s_ in range(6) for q in range(2)])
    stamp(5)
    a('v_lshlrev_b32 v8, 4, v0\nv_and_b32 v10, 31, v0\nv_lshrrev_b32 v11, 5, v0\nv_lshl_add_u32 v10, v10, 1, v11')
    a(f's_mul_i32 {sA}, {sWAVE}, 384\ns_add_u32 {sA}, {sA}, {L_ACT}')
    a(f'v_lshl_add_u32 v2, v10, 2, {sA}\nv_lshl_add_u32 v7, v10, 1, {sA}')
    a(f'v_and_b32 v10, 1, v0\nv_lshlrev_b32 v11, 4, v10\nv_lshrrev_b32 v224, v11, {sT[0]}\nv_mov_b32 v225, 0xffff')
    a('v_mov_b32 v226, 0x07060302\nv_mov_b32 v227, 0x03020706\nv_cmp_eq_u32 vcc, 1, v10\nv_cndmask_b32 v226, v226, v227, vcc')
    a('v_bfe_u32 v1, v0, 1, 2\nv_lshlrev_b32 v1, 9, v1\nv_add_u32 v1, v1, v11')
    a_addr('v6', 'v10')
    a(f's_sub_u32 {sA}, {sA}, {L_ACT}\nv_add_u32 v6, {sA}, v6')
    sp_index('v230')
    a(f'v_lshlrev_b32 v5, 2, v0\nv_add_u32 v231, {L_ACT + 2048}, v5\ns_lshl_b32 {sA}, {sWAVE}, 8\nv_add_u32 v232, {sA}, v231')
    a(f'v_lshlrev_b32 v10, 3, v0\nv_lshrrev_b32 v227, v10, {sT[0]}')
    batch_top('L_s2b')
    zero(80, 16)
    a(f's_cmp_ge_u32 {sBAT}, 2\ns_cselect_b32 {sA}, 2048, 0\ns_add_u32 {sA}, {sA}, {sIN}')
    wait_flush('L_s2w', [])
    if pp2:
        a(f's_bitcmp0_b32 {pp2}, {sBAT}\ns_cbranch_scc1 L_og')
        a('L_op:')
        a(f'buffer_load_dword v20, v1, {SWS}, {sIN} offen offset:12 sc1')
        a(f'buffer_load_dword v21, v1, {SWS}, {sA} offen offset:12 sc1')
        a('s_waitcnt vmcnt(0)')
        check(20, 2, 'v10', 'L_op', 'L_opd', tags=['v224'], mask='v225')
    if mk & 1:
        gather('L_og', [(f'buffer_load_dwordx4 v[{20 + 4 * m}:{23 + 4 * m}], v8, {SWS}, {sIN if m < 2 else sA} offen offset:{(m % 2) * 1024} sc1', [23 + 4 * m]) for m in range(4)], ['v224'], 'v225', PL2)
        if FG:
            a(f's_cmp_lg_u32 {sXO}, {sBAT}\ns_cbranch_scc1 L_nofl\ns_mov_b64 exec, 0xff')
            a(f'buffer_store_dword v229, v228, {SWS}, {sACT} offen sc1')
            a('s_mov_b64 exec, -1\nL_nofl:')
        for m in range(4):
            a(f'v_mov_b32_dpp v{12 + m}, v{23 + 4 * m} quad_perm:[1,0,3,2] {DPPM}')
    else:
        a('L_og:')
        for m in range(4):
            a(f'buffer_load_dwordx4 v[{20 + 4 * m}:{23 + 4 * m}], v8, {SWS}, {sIN if m < 2 else sA} offen offset:{(m % 2) * 1024} sc1')
        a('s_waitcnt vmcnt(0)')
        for m in range(4):
            a(f'v_mov_b32_dpp v{12 + m}, v{23 + 4 * m} quad_perm:[1,0,3,2] {DPPM}')
        check(23, 4, 'v10', 'L_og', 'L_ogd', tags=['v224'], mask='v225', step=4)
    bstamp(3)
    UP = lambda m, k: 36 + 6 * m + k

    def unp(m):
        for k in range(3):
            a(f'v_lshlrev_b32 v{UP(m, 2 * k)}, 16, v{20 + 4 * m + k}\nv_and_b32 v{UP(m, 2 * k + 1)}, {sHI}, v{20 + 4 * m + k}')
    for m in range(4):
        a(f'v_perm_b32 v{60 + 2 * m}, v{12 + m}, v{23 + 4 * m}, v226')
    a('v_max3_f32 v10, v60, v62, v64\nv_max_f32 v10, v10, v66\nv_mov_b32 v11, v10')
    unp(0)
    a('v_permlane32_swap_b32 v10, v11\nv_max_f32 v10, v10, v11')
    for m in range(4):
        a(f'v_sub_f32 v{60 + 2 * m}, v{60 + 2 * m}, v10')
    for m in range(4):
        a(f'v_exp_f32 v{60 + 2 * m}, v{60 + 2 * m}')
    unp(1)
    a('v_add_f32 v10, v60, v62\nv_add_f32 v11, v64, v66\nv_add_f32 v10, v10, v11\nv_mov_b32 v11, v10')
    unp(2)
    a('v_permlane32_swap_b32 v10, v11\nv_add_f32 v10, v10, v11\nv_rcp_f32 v10, v10')
    unp(3)
    for m in range(4):
        for k in range(3):
            d, x, w = f'v[{12 + 2 * k}:{13 + 2 * k}]', f'v[{UP(m, 2 * k)}:{UP(m, 2 * k + 1)}]', f'v[{60 + 2 * m}:{61 + 2 * m}]'
            a(f'v_pk_fma_f32 {d}, {x}, {w}, {d} op_sel_hi:[1,0,1]' if m else f'v_pk_mul_f32 {d}, {x}, {w} op_sel_hi:[1,0]')
    a('v_permlane32_swap_b32 v12, v14\nv_permlane32_swap_b32 v13, v15\nv_permlane32_swap_b32 v16, v17')
    a('v_add_f32 v12, v12, v14\nv_add_f32 v13, v13, v15\nv_add_f32 v16, v16, v17')
    a('v_mul_f32 v12, v10, v12\nv_mul_f32 v13, v10, v13\nv_mul_f32 v16, v10, v16')
    a('v_cvt_pk_bf16_f32 v12, v12, v13\nv_cvt_pk_bf16_f32 v16, v16, v16')
    a('ds_write_b32 v2, v12\nds_write_b16 v7, v16 offset:256')
    for u in range(3):
        a(f'ds_read_b128 v[{32 + 4 * u}:{35 + 4 * u}], v6 offset:{u * 128}')

    def row_pick(T):
        a(f'v_add_f32_dpp v12, v{80 + 4 * T}, v{81 + 4 * T} quad_perm:[0,1,2,3] row_mask:{1 << T:#x} bank_mask:0xf')
    for T in range(4):
        for u in range(3):
            if T == 0:
                a(f's_waitcnt lgkmcnt({2 - u})')
            smf(80 + 4 * T, 32 + 4 * u, 128 + 24 * T + 8 * u, 'v230')
    for T in range(4):
        row_pick(T)

    def arrive(reads, lab):
        a(f's_mov_b64 exec, 1\nds_add_rtn_u32 v10, v3, v4 offset:{F_ST}\ns_mov_b64 exec, -1')
        for x in reads:
            a(x)
        a(f's_waitcnt lgkmcnt({len(reads)})\nv_cmp_ne_u32 vcc, 3, v10\ns_bitcmp1_b32 vcc_lo, 0\ns_cbranch_scc1 {lab}')
    a('ds_write_b32 v232, v12')
    arrive(['ds_read2st64_b32 v[12:13], v231 offset0:0 offset1:1', 'ds_read2st64_b32 v[14:15], v231 offset0:2 offset1:3'], 'L_s2r')
    a('s_waitcnt lgkmcnt(0)\nv_pk_add_f32 v[12:13], v[12:13], v[14:15]\nv_add_f32 v12, v12, v13\nv_bfi_b32 v12, v9, v227, v12')
    a(f'buffer_store_dword v12, v5, {SWS}, {sOUTA} offen sc1')
    a('L_s2r:')
    bstamp(4)
    a('s_waitcnt lgkmcnt(0)')
    a(f's_mov_b32 {sA}, {1 << 17}\ns_cmp_eq_u32 {sBAT}, 0\ns_cselect_b32 {sA}, 2048, {sA}\ns_cmp_eq_u32 {sBAT}, 1\ns_cselect_b32 {sA}, {(1 << 17) - 2048}, {sA}')
    batch_end('L_s2b', [(sIN, sA), (sOUTA, HPB), ('v231', 1024), ('v232', 1024)])

    a('L_ffn:')
    if RHO:
        a(f's_lshr_b32 {sA}, {sH}, 1\ns_and_b32 {sA}, {sA}, 14\ns_and_b32 {sB}, {sH}, 1\ns_or_b32 {sA}, {sA}, {sB}')
        a(f's_lshl_b32 {sB}, {sH}, 3\ns_and_b32 {sB}, {sB}, 16\ns_or_b32 {sH}, {sA}, {sB}')
    a(f's_cmp_ge_u32 {sH}, 12\ns_cbranch_scc1 L_s5')
    a(f's_mov_b32 {sROLE}, 1')
    WB = lambda T, s_: 96 + 80 * T + 4 * s_
    vTG, vGC, CS, B1R, XR, D0, D1 = 'v60', 'v61', 62, 63, 64, 72, 76
    sROW = 's[30:31]'
    a('v_mul_u32_u24 v2, 3072, v5\nv_and_b32 v1, 15, v0\nv_lshl_add_u32 v2, v1, 4, v2')
    a(f's_lshl_b32 {sA}, {sH}, 2\ns_add_u32 {sA}, {sA}, {sWAVE}')
    a(f's_lshl_b32 {sD}, {sA}, 6\nv_and_b32 v8, 31, v0\nv_lshlrev_b32 v10, 1, v8\nv_lshlrev_b32 v8, 2, v8')
    a(f'buffer_load_ushort v{B1R}, v10, {SB1}, {sD} offen')
    a(f's_lshl_b32 {sOUTA}, {sA}, 7\ns_add_u32 {sOUTA}, {sOUTA}, {AP}')
    a('v_lshlrev_b32 v10, 8, v6\nv_lshl_add_u32 v10, v7, 3, v10')
    a(f's_lshl_b32 {sA}, {sWAVE}, 6\nv_add_u32 v10, {sA}, v10\nv_add_u32 v11, 49152, v10')
    for r in range(2):
        a(f's_lshl_b32 {sB}, {sH}, 8\ns_mul_i32 {sD}, {sWAVE}, {80 * 3072}\ns_add_u32 {sB}, {sB}, {sD}')
        if r:
            a(f's_add_u32 {sB}, {sB}, {320 * 3072}')
        a(f's_mul_i32 {sC}, {sWAVE}, 20480')
        dma_loop(f'L_dw1{r}', SW1, 20, 4 * 3072)
        weights_ready(f'L_wr4{r}', 4 + 8 * r)
        tr_reads([(WB(T, 10 * r + s_) + 2 * q, 'v10' if s_ < 6 else 'v11', (s_ % 6) * 8192 + q * 512 + T * 32) for s_ in range(10) for T in range(2) for q in range(2)])
        if r == 0:
            weights_ready('L_wr4x', 8)
    for k in range(4):
        a(f'v_mov_b32 v{24 + k}, 0x3f803f80')
    for s_ in range(20):
        for T, d in enumerate((D0, D1)):
            a(f'v_mfma_f32_16x16x32_bf16 v[{d}:{d + 3}], v[24:27], v[{WB(T, s_)}:{WB(T, s_) + 3}], {f"v[{d}:{d + 3}]" if s_ else 0}')
    a('s_mov_b32 s30, 0xffff0000\ns_mov_b32 s31, 0xffff0000')
    a(f'v_lshlrev_b32 v{B1R}, 16, v{B1R}')
    a(f'v_cndmask_b32 v{CS}, v{D0}, v{D1}, {sROW}')
    stamp(5)
    a(f'v_lshlrev_b32 v10, 4, v0\nv_lshrrev_b32 {vTG}, v10, {sT[0]}\nv_and_b32 {vTG}, 0xffff, {vTG}')
    a(f'v_mov_b32 {vGC}, {f2u(-2.0 * 0.7978845608028654 * 1.4426950408889634 * 0.044715)}')
    a('v_lshlrev_b32 v1, 4, v0\nv_lshlrev_b32 v7, 3, v0\ns_mov_b32 s48, -1\ns_mov_b32 s49, 0xff')
    a(f's_mul_i32 {sXO}, {sWAVE}, 320\ns_add_u32 {sA}, {sXO}, {L_ACT}\nv_add_u32 v2, {sA}, v7')
    a(f's_lshl_b32 {sIN}, {sXO}, 1\ns_add_u32 {sIN}, {sIN}, {HP}')
    a_addr('v6', 'v10')
    sp_index('v69')
    a(f'v_lshlrev_b32 v5, 2, v0\nv_add_u32 v5, {L_ACT}, v5')
    a(f's_mov_b32 {sC}, 0x3f803f80')
    batch_top('L_s4b')
    zero(D0, 8)
    assert not PAR
    E40 = 's[48:49]'
    M = ['s[8:9]', 's[10:11]', 's[12:13]', 's[14:15]', 's[28:29]', 's[32:33]', 's[34:35]', 's[40:41]']
    VA = ['v1', 'v84', 'v85', 'v86']
    a(f'buffer_load_dwordx2 v[{XR}:{XR + 1}], v7, {SX}, {sXO} offen')
    for k in range(1, 4):
        a(f'v_add_u32 {VA[k]}, {5120 * k}, v1')
    for m in M:
        a(f's_mov_b64 {m}, {E40}')
    a('s_waitcnt vmcnt(0)')
    a(f'v_lshlrev_b32 v{XR + 2}, 16, v{XR + 1}\nv_and_b32 v{XR + 3}, {sHI}, v{XR + 1}\nv_and_b32 v{XR + 1}, {sHI}, v{XR}\nv_lshlrev_b32 v{XR}, 16, v{XR}')
    wait_flush('L_s4w', [])

    def again(lab):
        a(f's_cmp_eq_u32 {sBAT}, 3\ns_cbranch_scc1 {lab}\ns_sleep {SLP}\ns_branch {lab}')

    def acc(d, x, y):
        a(f'v_pk_add_f32 v[{d}:{d + 1}], v[{x}:{x + 1}], v[{y}:{y + 1}]\nv_pk_add_f32 v[{d + 2}:{d + 3}], v[{x + 2}:{x + 3}], v[{y + 2}:{y + 3}]')
    a('L_hg:')
    for j in range(8):
        a(f's_wqm_b64 exec, {M[j]}')
        a(f'buffer_load_dwordx4 v[{24 + 4 * j}:{27 + 4 * j}], {VA[j // 2]}, {SWS}, {sIN} offen offset:{(j % 2) * 2560} sc1')
    a(f's_mov_b64 exec, {E40}\ns_waitcnt vmcnt(0)')
    for k in range(4):
        for j in range(8):
            a(f'v_bitop3_b32 v{10 + j}, v{10 + j}, v{24 + 4 * j + k}, {sT[k]} bitop3:0xf6' if k else f'v_xor_b32 v{10 + j}, {sT[0]}, v{24 + 4 * j}')
    for j in range(8):
        a(f'v_cmp_ne_u32_sdwa {M[j]}, v{10 + j}, v{D0} src0_sel:BYTE_0 src1_sel:DWORD')
    a(f's_mov_b32 {sA}, 0')
    for j in range(8):
        a(f's_cmp_lg_u64 {M[j]}, 0\ns_addc_u32 {sA}, {sA}, {sA}')
    a(f's_bcnt1_i32_b32 {sB}, {sA}\ns_cbranch_scc0 L_hall')
    a(f's_sub_u32 {sSPIN}, {sSPIN}, 1\ns_cbranch_scc1 L_hall')
    a(f's_cmp_le_u32 {sB}, {GF}\ns_cbranch_scc1 L_hone')
    again('L_hg')
    a('L_hall:')
    bstamp(3)
    for d, x, y in ((24, 24, 28), (32, 32, 36), (40, 40, 44), (48, 48, 52), (20, 24, 32), (56, 40, 48)):
        acc(d, x, y)
    a('s_branch L_hsum')
    SL, MS, SO = [56, 88, 92, 80][:GF], ['s[36:37]', 's[38:39]', 's[42:43]', 's[50:51]'], ['s76', 's77', 's78', 's82']
    a('L_hone:')
    for n, r in enumerate(SL):
        a(f's_cmp_lg_u32 {sA}, 0\ns_cselect_b64 {MS[n]}, {E40}, 0\ns_ff1_i32_b32 {sB}, {sA}\ns_bitset0_b32 {sA}, {sB}')
        a(f's_mul_i32 {sB}, {sB}, -2560\ns_add_u32 {sB}, {sB}, {sIN}\ns_add_u32 {SO[n]}, {sB}, {7 * 2560}')
        for k in range(4 if n else 0):
            a(f'v_and_b32 v{r + k}, {sT[k]}, v9')

    def slots():
        for n, r in enumerate(SL):
            a(f's_wqm_b64 exec, {MS[n]}\nbuffer_load_dwordx4 v[{r}:{r + 3}], v1, {SWS}, {SO[n]} offen sc1')
    slots()
    a(f's_mov_b64 exec, {E40}')
    zero(20, 4)
    for j in range(8):
        a(f's_cmp_eq_u64 {M[j]}, 0\ns_cselect_b64 exec, {E40}, 0')
        acc(20, 20, 24 + 4 * j)
    a('s_branch L_honw')
    a('L_hons:')
    a(f's_sub_u32 {sSPIN}, {sSPIN}, 1\ns_cbranch_scc1 L_hsum')
    a(f's_cmp_eq_u32 {sBAT}, 3\ns_cbranch_scc1 L_honl\ns_sleep {SLP}')
    a('L_honl:')
    slots()
    a('L_honw:')
    a(f's_mov_b64 exec, {E40}\ns_waitcnt vmcnt(0)')
    for k in range(4):
        for n, r in enumerate(SL):
            a(f'v_bitop3_b32 v{10 + n}, v{10 + n}, v{r + k}, {sT[k]} bitop3:0xf6' if k else f'v_xor_b32 v{10 + n}, {sT[0]}, v{r}')
    for n in range(GF):
        a(f'v_cmp_ne_u32_sdwa {MS[n]}, v{10 + n}, v{D0} src0_sel:BYTE_0 src1_sel:DWORD')
    if GF > 1:
        acc(24, SL[1], SL[2] if GF > 2 else D0)
    if GF > 3:
        acc(24, 24, SL[3])
    a(f's_or_b64 vcc, {MS[0]}, {MS[1 % GF]}')
    for n in range(2, GF):
        a(f's_or_b64 vcc, vcc, {MS[n]}')
    a('s_cbranch_scc1 L_hons')
    bstamp(3)
    if GF > 1:
        acc(20, 20, 24)
    a('L_hsum:')
    acc(20, 20, 56)
    for k in range(4):
        a(f'v_cvt_pk_bf16_f32 v{20 + k}, 0, v{20 + k}')
    acc(20, 20, XR)
    a('v_cvt_pk_bf16_f32 v20, v20, v21\nv_cvt_pk_bf16_f32 v21, v22, v23')
    a('ds_write_b64 v2, v[20:21]')
    a(f's_mov_b32 {sSPIN}, {SPIN}')
    lds_inc('v3', F_ST, 'v4')
    lds_wait('L_s4s', 'v10', 'v3', F_ST, 4, 0)
    bstamp(1)
    for i in range(5):
        a(f'ds_read_b32 v{XR + i}, v5 offset:{i * 256}')
    AF = lambda u: 24 + 4 * u if u < 9 else 80
    for u in range(10):
        a(f'ds_read_b128 v[{AF(u)}:{AF(u) + 3}], v6 offset:{u * 128}')
    sl = []
    for i in range(5):
        sl.append(f'v_dot2_f32_bf16 v20, v{XR + i}, {sC}, {"v20" if i else 0}')
        sl.append(f'v_dot2_f32_bf16 v22, v{XR + i}, v{XR + i}, {"v22" if i else 0}')
    sl += [None, 'v_permlane32_swap_b32 v20, v22', 'v_add_f32 v20, v20, v22', 'v_mov_b32 v22, v20', None]
    sl += ['v_permlane16_swap_b32 v20, v22', 'v_add_f32 v20, v20, v22', None]
    for m in ('quad_perm:[1,0,3,2]', 'quad_perm:[2,3,0,1]', 'row_half_mirror', 'row_ror:8'):
        sl += [f'v_add_f32_dpp v20, v20, v20 {m} {DPPM}', None]
    sl[-1:] = [f'v_mul_f32 v20, {f2u(1 / 640)}, v20', 'v_mov_b32 v22, v20', None, 'v_permlane32_swap_b32 v20, v22']
    sl += ['v_fma_f32 v22, -v20, v20, v22', 'v_cvt_pk_bf16_f32 v20, 0, v20', 'v_max_f32 v22, 0, v22', 'v_cvt_pk_bf16_f32 v22, 0, v22']
    sl += [f'v_add_f32 v22, {f2u(1e-5)}, v22', 'v_cvt_pk_bf16_f32 v22, 0, v22', 'v_sqrt_f32 v22, v22', None]
    sl += ['v_cvt_pk_bf16_f32 v22, 0, v22', 'v_rcp_f32 v22, v22']

    def fill(n):
        while n and sl:
            x = sl.pop(0)
            if x is None:
                return
            a(x)
            n -= 1
        if sl and sl[0] is None:
            sl.pop(0)
    a('s_waitcnt lgkmcnt(10)')
    fill(4)
    for u in range(10):
        a(f's_waitcnt lgkmcnt({9 - u})')
        for T, d in enumerate((D0, D1)):
            smf(d, AF(u), WB(T, 2 * u), 'v69')
            fill(2)
    while sl:
        fill(9)
    c2 = -2.0 * 0.7978845608028654 * 1.4426950408889634
    a(f's_add_u32 {sA}, {sOUTA}, {32 * APB}\ns_mov_b32 exec_hi, 0\ns_cmp_lg_u32 {sBAT}, 3')
    a(f'v_add_f32 v10, v{D0}, v{D0 + 1}\nv_add_f32 v11, v{D1}, v{D1 + 1}\nv_cndmask_b32 v10, v10, v11, {sROW}')
    a(f'v_fma_f32 v10, -v20, v{CS}, v10\nv_mul_f32 v10, v22, v10')
    a(f'v_cvt_pk_bf16_f32 v10, 0, v10\nv_add_f32 v10, v10, v{B1R}\nv_cvt_pk_bf16_f32 v10, 0, v10')
    a(f'v_mul_f32 v11, v10, v10\nv_fmaak_f32 v11, {vGC}, v11, {f2u(c2)}\nv_mul_f32 v11, v11, v10')
    a('v_exp_f32 v11, v11\nv_add_f32 v11, 1.0, v11\nv_rcp_f32 v11, v11\nv_mul_f32 v10, v10, v11')
    a(f'v_cvt_pk_bf16_f32 v10, 0, v10\nv_or_b32 v10, {vTG}, v10')
    if W4S & 2:
        a('s_cbranch_scc1 L_s4q')
    if NOA or not W4S & 2:
        a('s_branch L_s4p' if NOA else 's_cbranch_scc1 L_s4p')
    a(f'buffer_store_dword v10, v8, {SWS}, {sA} offen {AM}')
    a('L_s4p:')
    a(f'buffer_store_dword v10, v8, {SWS}, {sOUTA} offen sc1')
    a('L_s4r:')
    bstamp(4)
    batch_end('L_s4b', [(sIN, copy_off(RC2, 4 * HPB, HPB)), (sOUTA, APB), (sXO, 1280), ('v2', 1536), ('v5', 1536), ('v6', 1536)])

    a('L_s5:')
    a(f's_mov_b32 {sROLE}, 2\ns_sub_u32 {sA}, {sH}, 12')
    a(f's_lshl_b32 {sXO}, {sA}, 6\ns_lshl_b32 {sIN}, {sA}, 7\ns_add_u32 {sIN}, {sIN}, {HP}')
    a(f's_mul_i32 {sACT}, {sWAVE}, 1536\ns_add_u32 {sACT}, {sACT}, {AP}')
    a('v_lshrrev_b32 v2, 2, v0\nv_mul_u32_u24 v2, 1280, v2\nv_lshl_add_u32 v2, v7, 4, v2')
    a(f's_mul_i32 {sB}, {sWAVE}, {384 * 1280}\ns_add_u32 {sB}, {sB}, {sXO}')
    a('v_lshlrev_b32 v10, 6, v6\nv_lshl_add_u32 v10, v7, 3, v10')
    a(f'v_add_u32 v12, {sC}, v10')
    dma_loop('L_dw2', SW2, 24, 16 * 1280, W2P)
    a('v_lshrrev_b32 v1, 3, v0\nv_mul_u32_u24 v1, 2560, v1\nv_and_b32 v10, 7, v0\nv_lshl_add_u32 v1, v10, 4, v1')
    a('v_lshlrev_b32 v7, 3, v10\nv_lshl_add_u32 v7, v5, 1, v7')
    a(f'buffer_load_dword v67, v63, {SB2}, {sXO} offen')
    a('v_bfe_u32 v2, v0, 1, 3\nv_min_u32 v2, 5, v2\nv_lshl_add_u32 v2, v2, 2, v5\nv_and_b32 v10, 1, v0\nv_lshl_add_u32 v2, v2, 1, v10\nv_lshlrev_b32 v2, 5, v2')
    sp_index('v60')
    a(f's_lshl_b32 {sA}, {sWAVE}, 7\ns_add_u32 {sA}, {sA}, {L_ACT}')
    a(f'v_add_u32 v5, {sA}, v63')
    a(f'v_lshlrev_b32 v6, 1, v63\nv_add_u32 v6, {L_ACT}, v6')
    a(f'v_lshlrev_b32 v62, 1, v7\nv_add_u32 v62, {L_ACT + 4096}, v62\nv_add_u32 v61, 4096, v6')
    a(f'v_mov_b32 v8, 0xffff\ns_mov_b32 {sC}, 0x07060302')
    a('s_waitcnt vmcnt(0)')
    tr_reads([(128 + 16 * (s_ >> 1) + 8 * T + 4 * (s_ & 1) + 2 * q, 'v12', s_ * 2048 + q * 128 + T * 32) for s_ in range(12) for T in range(2) for q in range(2)])
    a(f'v_lshlrev_b32 v66, 16, v67\nv_and_b32 v67, {sHI}, v67')
    stamp(5)

    def red_rows(b):
        a(f'v_permlane16_swap_b32 v{b}, v{b + 1}\nv_permlane16_swap_b32 v{b + 2}, v{b + 3}')
        a(f'v_add_f32 v{b}, v{b}, v{b + 1}\nv_add_f32 v{b + 2}, v{b + 2}, v{b + 3}')
        a(f'v_permlane32_swap_b32 v{b}, v{b + 2}')
        a(f'v_add_f32 v{b}, v{b}, v{b + 2}')
        a(f'v_add_f32_dpp v{b}, v{b}, v{b} row_ror:8 {DPPM}')

    batch_top('L_s5b')
    zero(12, 8)
    a(f's_cmp_eq_u32 {sBAT}, 3\ns_cselect_b32 {sOUTA}, {32 * APB if LOC else 0}, 0\ns_add_u32 {sOUTA}, {sOUTA}, {sACT}')
    wait_flush('L_s5w', [('v1', 2, 32 * HPB)])
    a(f's_cmp_lg_u32 {sWAVE}, 0\ns_cbranch_scc1 L_h5w')
    a(f'buffer_load_ushort v64, v7, {SX}, {sXO} offen')
    if FG:
        wait_heads('L_f5')
        a(f's_cmp_lg_u32 {sBAT}, 3\ns_cbranch_scc1 L_h5')
        lds_inc('v3', F_H, 'v4')
        a('v_mov_b32 v4, 0')
    if hsl:
        a(f's_cmp_lg_u32 {sBAT}, 0\ns_cbranch_scc1 L_h5')
        for i in range(hsl):
            a('s_sleep 127')
    a('L_h5:')
    a(f'buffer_load_dwordx4 v[20:23], v1, {SWS}, {sIN} offen sc1 {pnt}')
    a('s_waitcnt vmcnt(0)')
    check(20, 4, 'v10', 'L_h5', 'L_h5d')
    bstamp(3)
    red_rows(20)
    a('v_lshlrev_b32 v64, 16, v64\nv_cvt_pk_bf16_f32 v20, 0, v20\nv_add_f32 v64, v64, v20\nv_cvt_pk_bf16_f32 v64, 0, v64')
    a('ds_write_b32 v62, v64')
    lds_inc('v3', F_H, 'v4')
    if FG:
        a(f'v_mov_b32 v4, 1\ns_cmp_lg_u32 {sBAT}, 3\ns_cbranch_scc1 L_h5w')
        a(f's_sleep {max(YF - YW, 0)}\ns_branch L_y5')
    lds_wait('L_h5w', 'v10', 'v3', F_H, 1, 1 if FG else FSLP)
    a('ds_read_b64 v[64:65], v61')
    a(f's_sleep {YF if FG else YS3}')
    if mk & 4:
        gather('L_y5', [(f'buffer_load_dwordx4 v[{32 + 4 * i}:{35 + 4 * i}], v2, {SWS}, {sOUTA} offen offset:{16 * i} sc1', range(32 + 4 * i, 36 + 4 * i)) for i in range(2)], [sT[0], sT[2]], 'v8', PL5, (sOUTA, sACT))
        for k in range(4):
            a(f'v_perm_b32 v{28 + k}, v{33 + 2 * k}, v{32 + 2 * k}, {sC}')
    else:
        a('L_y5:')
        a(f'buffer_load_dwordx4 v[20:23], v2, {SWS}, {sACT} offen sc1 {pnt}')
        a(f'buffer_load_dwordx4 v[24:27], v2, {SWS}, {sACT} offen offset:16 sc1 {pnt}')
        a('s_waitcnt vmcnt(0)')
        for k in range(4):
            a(f'v_perm_b32 v{28 + k}, v{21 + 2 * k}, v{20 + 2 * k}, {sC}')
        check(20, 8, 'v10', 'L_y5', 'L_y5d', tags=[sT[0], sT[2]], mask='v8')
    bstamp(4)

    mv = [f'v_mov_b32_dpp v{68 + 4 * u + k}, v{28 + k} row_shl:{2 * u} {DPPM}' for u in range(1, 6) for k in range(4)]
    for u in range(6):
        for T in range(2):
            smf(12 + 4 * T, 68 + 4 * u if u else 28, 128 + 16 * u + 8 * T, 'v60')
            for k in range(4 if (u, T) == (0, 0) else 2):
                if mv:
                    a(mv.pop(0))
    a('s_mov_b64 exec, 0xffff')
    a('v_add_f32 v12, v12, v13\nv_add_f32 v16, v16, v17')
    a('ds_write2_b32 v5, v12, v16 offset0:0 offset1:16')
    arrive(['ds_read2_b64 v[20:23], v6 offset0:0 offset1:16', 'ds_read2_b64 v[24:27], v6 offset0:32 offset1:48'], 'L_s5e')
    a('s_mov_b64 exec, 0xffff')
    a('s_waitcnt lgkmcnt(1)\nv_pk_add_f32 v[20:21], v[20:21], v[22:23]')
    a('s_waitcnt lgkmcnt(0)\nv_pk_add_f32 v[24:25], v[24:25], v[26:27]\nv_pk_add_f32 v[20:21], v[20:21], v[24:25]')
    a('v_cvt_pk_bf16_f32 v20, 0, v20\nv_cvt_pk_bf16_f32 v21, 0, v21\nv_pk_add_f32 v[20:21], v[20:21], v[66:67]')
    a('v_cvt_pk_bf16_f32 v20, 0, v20\nv_cvt_pk_bf16_f32 v21, 0, v21\nv_pk_add_f32 v[20:21], v[20:21], v[64:65]')
    a('v_cvt_pk_bf16_f32 v20, v20, v21')
    a(f'buffer_store_dword v20, v63, {SOUT}, {sXO} offen {OUM}')
    if dbt:
        a(f's_cmp_lg_u32 {sBAT}, 3\ns_cbranch_scc1 L_s5e')
        dstamp(10)
        a('s_mov_b64 exec, 1\nv_mov_b32 v254, s62\nv_sub_u32 v254, 0, v254')
        a(f'buffer_atomic_umax v254, v255, {SDBG}, 0 offen offset:16 sc1')
    a('L_s5e:')
    a('s_waitcnt lgkmcnt(0)')
    batch_end('L_s5b', [(sIN, copy_off(RC2, 4 * HPB, HPB)), (sACT, copy_off(RC4, 4 * APB, APB)), (sXO, 1280), ('v5', 512), ('v6', 512), ('v61', 128), ('v62', 128)])

    a('L_idle:')
    a(f's_mov_b32 {sROLE}, 3')
    a(f's_cmp_lg_u32 {sWAVE}, 3\ns_cbranch_scc1 L_fin')
    a('L_pre:')
    if exp & 4:
        a('s_branch L_fin')
    if exp & 56:
        lim = 0 if exp & 8 else 1 if exp & 16 else 2
        a(f's_cmp_ge_u32 {sROLE}, {lim}\ns_cselect_b32 {sROLE}, 3, {sROLE}')
    a(f's_mov_b32 {sBAT}, 0\ns_mov_b32 {sPH}, 1')
    lds_wait('L_pre1', 'v10', 'v3', F_FL + 4, 4, 16)
    a(f's_cmp_lg_u32 {sWAVE}, 3\ns_cbranch_scc1 L_pre4')
    a('L_pre3:')
    s1_setup(sPH)
    a('v_mov_b32 v56, 3')
    a('s_branch L_s1')
    a('L_pre4:')
    a(f's_bitcmp1_b32 {early}, {sROLE}\ns_cbranch_scc1 L_disp')
    a('L_pre2:')
    a(f'v_mov_b32 v11, {L_FLAG}\ns_mov_b32 {sPH}, 2')
    lds_wait('L_pre5', 'v10', 'v11', F_FL + 8, 4, 16)
    a(f's_cmp_eq_u32 {sWAVE}, 3\ns_cbranch_scc1 L_pre3')
    a('L_disp:')
    for k, lab in enumerate(('L_s2bc', 'L_s4bc', 'L_s5bc')):
        a(f's_cmp_eq_u32 {sROLE}, {k}\ns_cbranch_scc1 {lab}')
    a('s_branch L_fin')

    Q, ACC, AD, S, P, TM, RING, EXT0, EXT1, AD2 = 8, 20, 44, 52, 56, 64, 68, 116, 164, 212
    vMC, vL = 'v6', 'v7'
    s = [f'v{S + t}' for t in range(4)]
    t0, t1, t2, t3 = [f'v{TM + i}' for i in range(4)]

    def ld_tile(t, srd, soff, base=RING):
        for i in range(3):
            r = base + t * 12 + i * 4
            a(f'buffer_load_dwordx4 v[{r}:{r + 3}], v{1 + t // 2}, {srd}, {soff} offen offset:{(t % 2) * 3072 + i * 128} {pol}')

    def reset_state():
        for i in range(24):
            a(f'v_mov_b32 v{ACC + i}, 0')
        a(f'v_mov_b32 {vL}, 0\nv_mov_b32 {vMC}, 0xff7fffff')

    def load_q():
        for i in range(3):
            a(f'ds_read_b128 v[{Q + 4 * i}:{Q + 4 * i + 3}], v5 offset:{i * 128}')

    def kdot(t, base, ad):
        for k in range(12):
            acc = f'v{ad + 2 * t + k % 2}'
            a(f'v_dot2_f32_bf16 {acc}, v{base + t * 12 + k}, v{Q + k}, {acc if k >= 2 else 0}')

    def vdot(t, base):
        for k in range(12):
            for hl in range(2):
                a(f'v_dot2c_f32_bf16 v{ACC + (k // 4) * 8 + (k % 4) * 2 + hl}, v{base + t * 12 + k}, v{P + 2 * t + hl}')

    def softmax4(ad):
        for t in range(4):
            a(f'v_add_f32 {s[t]}, v{ad + 2 * t}, v{ad + 2 * t + 1}')
        for mode in ('quad_perm:[1,0,3,2]', 'quad_perm:[2,3,0,1]', 'row_half_mirror'):
            for t in range(4):
                a(f'v_add_f32_dpp {s[t]}, {s[t]}, {s[t]} {mode} {DPPM}')
        for rnd in range(2):
            a(f'v_cvt_pk_bf16_f32 {t0}, {s[0]}, {s[1]}\nv_cvt_pk_bf16_f32 {t1}, {s[2]}, {s[3]}')
            a(f'v_lshlrev_b32 {s[0]}, 16, {t0}\nv_and_b32 {s[1]}, {sHI}, {t0}')
            a(f'v_lshlrev_b32 {s[2]}, 16, {t1}\nv_and_b32 {s[3]}, {sHI}, {t1}')
            if rnd == 0:
                for t in range(4):
                    a(f'v_mul_f32 {s[t]}, {f2u(192 ** -0.5)}, {s[t]}')
        a(f'v_max3_f32 {t0}, {s[0]}, {s[1]}, {s[2]}\nv_max_f32 {t0}, {t0}, {s[3]}')
        a(f'v_mul_f32 {t0}, {sLOG2E}, {t0}\nv_max_f32 {t0}, {t0}, {vMC}')
        a(f'v_sub_f32 {t2}, {vMC}, {t0}\nv_mov_b32 {vMC}, {t0}')
        for t in range(4):
            a(f'v_fma_f32 {s[t]}, {s[t]}, {sLOG2E}, -{t0}')
        a(f'v_exp_f32 {t2}, {t2}')
        for t in range(4):
            a(f'v_exp_f32 {s[t]}, {s[t]}')
        for i in range(12):
            a(f'v_pk_mul_f32 v[{ACC + 2 * i}:{ACC + 2 * i + 1}], v[{ACC + 2 * i}:{ACC + 2 * i + 1}], v[{TM + 2}:{TM + 3}] op_sel_hi:[1,0]')
        for t in range(4):
            a(f'v_cvt_pk_bf16_f32 v{P + 2 * t}, {s[t]}, 0')
        for t in range(4):
            a(f'v_lshlrev_b32 v{P + 2 * t + 1}, 16, v{P + 2 * t}')
        a(f'v_fma_f32 {vL}, {vL}, {t2}, v{P + 1}')
        a(f'v_add_f32 {t0}, v{P + 3}, v{P + 5}\nv_add_f32 {vL}, {vL}, v{P + 7}\nv_add_f32 {vL}, {vL}, {t0}')

    def ld_one(slot, srd, soff):
        for i in range(3):
            r = RING + slot * 12 + i * 4
            a(f'buffer_load_dwordx4 v[{r}:{r + 3}], v1, {srd}, {soff} offen offset:{i * 128} {pol}')

    def claim(v, off):
        a(f'v_mov_b32 {v}, 1\ns_mov_b64 exec, 1')
        a(f'buffer_atomic_add {v}, v3, {SWS}, 0 offen offset:{off} sc0 sc1')
        a('s_mov_b64 exec, -1')

    def softmax1(t):
        x = s[0]
        a(f'v_add_f32 {x}, v{AD + 2 * t}, v{AD + 2 * t + 1}')
        for mode in ('quad_perm:[1,0,3,2]', 'quad_perm:[2,3,0,1]', 'row_half_mirror'):
            a(f'v_add_f32_dpp {x}, {x}, {x} {mode} {DPPM}')
        a(f'v_cvt_pk_bf16_f32 {x}, 0, {x}\nv_mul_f32 {x}, {f2u(192 ** -0.5)}, {x}\nv_cvt_pk_bf16_f32 {x}, 0, {x}')
        a(f'v_mul_f32 {t0}, {sLOG2E}, {x}\nv_max_f32 {t0}, {t0}, {vMC}')
        a(f'v_sub_f32 {t2}, {vMC}, {t0}\nv_mov_b32 {vMC}, {t0}')
        a(f'v_fma_f32 {x}, {x}, {sLOG2E}, -{t0}')
        a(f'v_exp_f32 {t2}, {t2}\nv_exp_f32 {x}, {x}')
        for i in range(12):
            a(f'v_pk_mul_f32 v[{ACC + 2 * i}:{ACC + 2 * i + 1}], v[{ACC + 2 * i}:{ACC + 2 * i + 1}], v[{TM + 2}:{TM + 3}] op_sel_hi:[1,0]')
        p = P + 2 * (t + 1)
        a(f'v_cvt_pk_bf16_f32 v{p}, {x}, 0\nv_cvt_pk_bf16_f32 v{p + 1}, 0, {x}')
        a(f'v_fma_f32 {vL}, {vL}, {t2}, v{p + 1}')

    assert SMALL % 4 == 0
    NBIG = 1024 - 8 - SMALL // 4
    assert 16 <= NSTAT and NSTAT * 32 <= NBIG
    vCA, vCB, vFL, vB, vT, vE, vE2, vONE = 'v220', 'v221', 'v222', 'v223', 'v224', 'v225', 'v226', 'v227'
    sTA, sTB, sLD, sROT = 's76', 's77', 's78', 's79'

    def item_addr(dst, sid, snb):
        a(f's_lshr_b32 {snb}, {sid}, 8\ns_add_u32 {sid}, {sid}, {sROT}')
        if RB:
            a(f's_mul_i32 {sB}, {snb}, {RB}\ns_add_u32 {sid}, {sid}, {sB}')
        a(f's_and_b32 {sid}, {sid}, 255\ns_mul_i32 {sid}, {sid}, {ITEM}\ns_mul_i32 {sB}, {snb}, {BSTR}')
        a(f's_add_u32 {dst}, {sHB}, {sid}\ns_add_u32 {dst}, {dst}, {sB}')


    def draw(off, n=vONE):
        a(f's_mov_b64 exec, 1\nds_add_rtn_u32 {vT}, {vB}, {n} offset:{off}\ns_mov_b64 exec, -1')

    def publish(v, add):
        a(f's_mov_b64 exec, 1\nv_lshlrev_b32 {v}, 2, {v}\nv_add_u32 {v}, {add}, {v}\nds_write_b32 {vE}, {v}\ns_mov_b64 exec, -1')

    spins = []

    def resolve(lab, st):
        a(f's_cmp_eq_u32 {sA}, 0\ns_cbranch_scc1 {lab}')
        a(f'{lab}r:')
        a(f's_and_b32 {sB}, {st}, 3\ns_add_u32 {sA}, {sA}, {sB}\ns_sub_u32 {sA}, {sA}, 1')
        spins.append(lab)

    a('L_stream:')
    if EN:
        kload('V', 'DBG', 'WS')
        a('s_memrealtime s[62:63]')
        srd('K')
    a('v_lshrrev_b32 v1, 3, v0\nv_mul_u32_u24 v1, 384, v1\nv_and_b32 v5, 7, v0\nv_lshlrev_b32 v5, 4, v5\nv_add_u32 v1, v1, v5')
    a(f's_sub_u32 {sA}, {sWAVE}, 4')
    a(f's_mul_i32 {sHB}, {sH}, {PROB}')
    a(f's_lshl_b32 {sC}, {sJ}, 2\ns_add_u32 {sC}, {sC}, {sA}\ns_mul_i32 {sROT}, {sH}, {RH}')
    a(f's_lshr_b32 {sD}, {sJ}, 2\ns_mul_i32 {sD}, {sD}, 240\ns_add_u32 {sD}, {sD}, {sC}\ns_add_u32 {sST}, {sD}, 16')
    item_addr(sNEXT, sD, sCB)

    K0B = lambda t: (ACC if t < 2 else 228 - 24) if P16 else EXT0

    def rest():
        a('v_add_u32 v2, 6144, v1\nv_mov_b32 v4, 0')
        a(f's_add_u32 {sTB}, {sST}, 16')
        item_addr(sCUR, sST, sCB)
        a(f's_mov_b32 {sSB}, {sC}')
        a(f's_mul_i32 {sC}, {sH}, {CTS}\ns_add_u32 {sC}, {sC}, {CT}\nv_mov_b32 v3, {sC}')
        a(f's_mul_i32 {sB}, {sCB}, 384\ns_add_u32 {sB}, {sB}, {L_Q}')
        a(f'v_add_u32 v5, {sB}, v5\nv_mov_b32 {vFL}, {L_FLAG + 4}\nv_mov_b32 {vB}, {L_FLAG}\nv_mov_b32 {vONE}, 1')
        a(f's_mul_i32 {sPB}, {sA}, {4 * PARTP}\ns_add_u32 {sPB}, {sPB}, {L_PART + PARTP}')
        a(f's_mov_b32 {sMODE}, 2')
    if EN:
        a(f's_cmp_lg_u32 {sWAVE}, 7\ns_cbranch_scc1 L_noi')
        a(f's_cmp_lg_u32 s2, {NWG}\ns_cbranch_scc1 L_non')
        srd('DBG')
        nonce_store(sB, 'v8', 'v9')
        a('L_non:')
        lds_init(12, sB, sD)
        a('L_noi:')
        if PT:
            a(f's_cmp_lg_u32 {sWAVE}, 6\ns_cbranch_scc1 L_nopt')
            srd('WS')
            a(f'v_lshrrev_b32 v8, 2, v0\nv_lshlrev_b32 v8, 17, v8\nv_and_b32 v9, 3, v0\nv_lshl_add_u32 v8, v9, 7, v8')
            a(f's_lshl_b32 {sB}, s2, 9\ns_add_u32 {sB}, {sB}, {OP + (1 << 17)}\nv_add_u32 v8, {sB}, v8\nv_lshlrev_b32 v9, 7, v0')
            for lo, mul, base in ((12, 768, QP), (18, 384, HP), (21, 128, AP)):
                a(f's_mul_i32 {sB}, s2, {mul}\ns_add_u32 {sB}, {sB}, {(base - lo * 128) & 0xffffffff}\nv_add_u32 v10, {sB}, v9')
                a(f'v_cmp_le_u32 vcc, {lo}, v0\nv_cndmask_b32 v8, v8, v10, vcc')
            a(f's_waitcnt lgkmcnt(0)\ns_mov_b64 exec, {(1 << 22) - 1 if PT == 1 else PT:#x}')
            a(f'buffer_load_dword v9, v8, {SWS}, 0 offen {PTM}')
            a('s_mov_b64 exec, -1\nL_nopt:')
    else:
        rest()
    a('s_waitcnt lgkmcnt(0)')
    if FS:
        stamp(3)
    pf = [(t, SK, sNEXT, K0B(t)) for t in range(4)]
    grp = [(SV, sNEXT, EXT1), (SK, sCUR, RING)]
    for srd_, so, base in (grp[::-1] if PO == 1 else grp) + ([(SV, sCUR, EXT0)] if P16 else []):
        pf += [(t, srd_, so, base) for t in range(4)]
    if PO == 2:
        pf.insert(1, pf.pop(4))
    for n, (t, srd_, so, base) in enumerate(pf):
        if n == PRE:
            a('s_barrier')
            if PSL:
                a(f's_sleep {PSL}')
        if EN and n == 1:
            srd('V')
        if EN and n == 2:
            rest()
            srd('WS')
            consts()
        if n == 4 and not P16:
            reset_state()
        if 3 * n > PWIN:
            a(f's_waitcnt vmcnt({PWIN})')
            if FS and n == 2:
                stamp(1)
        if FS and n == 0:
            stamp(4)
        ld_tile(t, srd_, so, base)
    if P16:
        item_addr(sCUR, sTB, sNB)
    if not FS:
        stamp(3)
    if not noq:
        lds_wait('L_wqs', t0, vB, F_Q, 3, 1)
    if not FS:
        stamp(1)
    load_q()
    get_nonce('L_nps', t0)

    def take_ticket():
        a(f's_waitcnt lgkmcnt(0)\nv_readfirstlane_b32 {sST}, {vT}')
        a(f'v_and_b32 {vE}, -4, {vT}\nv_add_u32 {vE}, {L_TAB + 12}, {vE}')

    def step(n, comp, issue):
        if ISS[n] == 'b':
            issue()
        comp()
        if ISS[n] == 'a':
            issue()

    if P16:
        def pace(t):
            a('s_waitcnt vmcnt(3)')
            ld_tile(t, SK, sCUR)
        kdot(0, RING, AD)
        pace(0)
        for t in range(1, 4):
            kdot(t, RING, AD)
        for t in range(4):
            kdot(t, K0B(t), AD2)
        reset_state()
        pace(1)
        softmax4(AD2)
        for t in range(4):
            vdot(t, EXT1)
        pace(2)
        softmax4(AD)
        for t in range(4):
            vdot(t, EXT0)
        pace(3)
        if not FS:
            stamp(4)
    else:
        for t in range(4):
            a('s_waitcnt vmcnt(9)')
            kdot(t, RING, AD)
            ld_tile(t, SV, sCUR)
        a(f's_mov_b32 {sLD}, 1\ns_mov_b32 {sST}, {sWAVE}\nv_mov_b32 {vE}, {L_TAB + 8}')
        for t in range(4):
            kdot(t, EXT0, AD2)
        softmax4(AD2)
        for t in range(4):
            vdot(t, EXT1)
        if not FS:
            stamp(4)
        a('s_branch L_mid')

    a('L_item:')
    for t in range(4):
        if t == 2:
            draw(F_T1)
        if t == 3:
            a(f's_waitcnt vmcnt(4)\ns_cmp_eq_u32 {sLD}, 0\ns_cbranch_scc1 L_k3')
        a('s_waitcnt vmcnt(3)')
        if t == 3:
            a('L_k3:')

        def issue():
            if t == 2:
                take_ticket()
                a(f's_and_b32 {sLD}, {sST}, 3\ns_cmp_lt_u32 {sST}, {NSTAT * 4 - 12}\ns_cselect_b32 {sLD}, 1, {sLD}')
                a(f's_cmp_lg_u32 {sLD}, 0\ns_cbranch_scc1 L_noclaim')
                claim('v4', 0)
                a('L_noclaim:')
            if P16 and t < 2:
                a(f's_cmp_eq_u32 {sMODE}, 2\ns_cbranch_scc1 L_k{t}')
            ld_tile((t + 2) % 4, SK if t < 2 else SV, sCUR)
            if P16 and t < 2:
                a(f'L_k{t}:')
        step(t, lambda: kdot(t, RING, AD), issue)
    if PS:
        ld_tile(2, SV, sCUR)
    a('L_mid:')
    softmax4(AD)
    for t in range(4):
        a(f's_waitcnt vmcnt({6 if PS and t == 0 else 3})')
        if t == 0:
            a(f's_cmp_lg_u32 {sLD}, 0\ns_cbranch_scc1 L_nopub')
            publish('v4', NSTAT * 32 + 1)
            a('L_nopub:')
        if t == 2:
            a(f's_mov_b64 exec, 1\nds_read_b32 {vE2}, {vE}\ns_mov_b64 exec, -1')

        def issue():
            if t < 2:
                if not (PS and t == 0):
                    if not P16:
                        a(f's_cmp_eq_u32 {sMODE}, 2\ns_cbranch_scc1 L_v{t}')
                    ld_tile(t + 2, SV, sCUR)
                    a(f'L_v{t}:')
                return
            if t == 2:
                a(f's_waitcnt lgkmcnt(0)\nv_readfirstlane_b32 {sA}, {vE2}\ns_mov_b32 {sMODE}, 0\ns_nop 0')
                resolve('L_sp0', sST)
                a(f's_cmp_ge_u32 {sA}, {NBIG}\ns_cbranch_scc1 L_trans')
                item_addr(sCUR, sA, sNB)
            ld_tile(t - 2, SK, sCUR)
        step(4 + t, lambda: vdot(t, RING), issue)
    a(f's_cmp_eq_u32 {sNB}, {sCB}\ns_cbranch_scc1 L_item')

    FA, FB, vCMP = 'v48', 'v53', 'v57'

    def flush_addr():
        a(f'v_and_b32 {FA}, 7, v0\nv_lshlrev_b32 {FA}, 5, {FA}\nv_lshrrev_b32 {FB}, 4, v0\nv_lshl_add_u32 {FA}, {FB}, 3, {FA}')
        a(f'v_add_u32 {FA}, {sPB}, {FA}\nv_mov_b32 {FB}, {sPB}')

    def unify():
        allreduce('v_max_f32', t0, t3, low=False)
        a(f'v_sub_f32 {t2}, {vMC}, {t0}\nv_exp_f32 {t2}, {t2}\nv_mov_b32 {vMC}, {t0}\nv_mul_f32 {vL}, {vL}, {t2}')
        for i in range(12):
            a(f'v_pk_mul_f32 v[{ACC + 2 * i}:{ACC + 2 * i + 1}], v[{ACC + 2 * i}:{ACC + 2 * i + 1}], v[{TM + 2}:{TM + 3}] op_sel_hi:[1,0]')
    a('L_flush:')
    a(f'v_mov_b32 {t0}, {vMC}')
    flush_addr()
    unify()
    a('L_flush2:')
    for sw, es, dl in (('v_permlane16_swap_b32', (0, 1, 4, 5), 2), ('v_permlane32_swap_b32', (0, 1), 4)):
        a(f'v_mov_b32 {t3}, {vL}')
        for i in range(3):
            for e in es:
                a(f'{sw} v{ACC + 8 * i + e}, v{ACC + 8 * i + e + dl}')
        a(f'{sw} {vL}, {t3}\nv_add_f32 {vL}, {vL}, {t3}')
        for i in range(3):
            for e in es[::2]:
                r = ACC + 8 * i + e
                a(f'v_pk_add_f32 v[{r}:{r + 1}], v[{r}:{r + 1}], v[{r + dl}:{r + dl + 1}]')
    for r in [vL] + [f'v{ACC + 8 * i + e}' for i in range(3) for e in (0, 1)]:
        a(f'v_add_f32_dpp {r}, {r}, {r} row_ror:8 {DPPM}')
    for i in range(3):
        a(f'ds_write_b64 {FA}, v[{ACC + 8 * i}:{ACC + 8 * i + 1}] offset:{i * 256}')
    a(f's_mov_b64 exec, 1\nds_write_b64 {FB}, v[6:7] offset:768\nds_add_rtn_u32 v56, {vFL}, {vONE} offset:{F_FL}\ns_mov_b64 exec, -1')
    a(f's_cmp_lg_u32 {sCB}, 3\ns_cbranch_scc1 L_nos1')
    a('L_s1:')
    for w in range(4):
        a(f'ds_read_b64 v[{10 + 2 * w}:{11 + 2 * w}], v47 offset:{w * 4 * PARTP + 768}')
    for w in range(4):
        a(f'ds_read_b128 v[{20 + 4 * w}:{23 + 4 * w}], v46 offset:{w * 4 * PARTP}')
        a(f'ds_read_b64 v[{36 + 2 * w}:{37 + 2 * w}], v51 offset:{w * 4 * PARTP + 512}')
    a('s_waitcnt lgkmcnt(8)')
    if diag:
        a(f's_cmp_lt_u32 {sWAVE}, 4\ns_cbranch_scc1 L_s1y')
        a('s_waitcnt lgkmcnt(0)')
        stamp(2)
        a('L_s1y:')
    a('v_cmp_ne_u32 vcc, 3, v56\ns_bitcmp1_b32 vcc_lo, 0\ns_cbranch_scc1 L_fin')
    a('v_max3_f32 v18, v10, v12, v14\nv_max_f32 v18, v18, v16')
    for w in range(4):
        a(f'v_sub_f32 v{10 + 2 * w}, v{10 + 2 * w}, v18')
    for w in range(4):
        a(f'v_exp_f32 v{10 + 2 * w}, v{10 + 2 * w}')
    a('v_mul_f32 v19, v10, v11')
    for w in range(1, 4):
        a(f'v_fmac_f32 v19, v{10 + 2 * w}, v{11 + 2 * w}')
    a(f'v_max_f32 v19, {f2u(1e-30)}, v19\nv_rcp_f32 v44, v19\nv_log_f32 v19, v19')
    for w in range(4):
        a(f's_waitcnt lgkmcnt({6 - 2 * w})' if w < 3 or not diag else f's_cmp_ge_u32 {sWAVE}, 4\ns_cbranch_scc1 L_s1z\ns_waitcnt lgkmcnt(0)\nL_s1z:')
        for d, x in ((20, 20 + 4 * w), (22, 22 + 4 * w), (36, 36 + 2 * w)):
            d, x, e = f'v[{d}:{d + 1}]', f'v[{x}:{x + 1}]', f'v[{10 + 2 * w}:{11 + 2 * w}]'
            a(f'v_pk_fma_f32 {d}, {x}, {e}, {d} op_sel_hi:[1,0,1]' if w else f'v_pk_mul_f32 {d}, {x}, {e} op_sel_hi:[1,0]')
    a('v_add_f32 v18, v18, v19')
    for d in (20, 22, 36):
        a(f'v_pk_mul_f32 v[{d}:{d + 1}], v[{d}:{d + 1}], v[44:45] op_sel_hi:[1,0]')
    a('v_lshlrev_b32 v18, v50, v18\nv_bfi_b32 v59, v55, v49, v18')
    a('v_cvt_pk_bf16_f32 v56, v20, v21\nv_cvt_pk_bf16_f32 v57, v22, v23\nv_cvt_pk_bf16_f32 v58, v36, v37')
    a('s_mov_b32 exec_hi, 0')
    a(f'buffer_store_dwordx4 v[56:59], v54, {SWS}, s83 offen {STM}')
    a('s_mov_b32 exec_hi, -1')
    if diag:
        a(f's_cmp_lt_u32 {sWAVE}, 4\ns_cbranch_scc1 L_s1x')
        stamp(5)
        a('L_s1x:')
    a(f's_cmp_ge_u32 {sWAVE}, 4\ns_cbranch_scc1 L_fin')
    a(f's_cmp_eq_u32 {sPH}, 1\ns_cbranch_scc1 L_pre4')
    a('s_branch L_disp')
    a('L_nos1:')
    a(f's_cmp_eq_u32 {sCB}, 0\ns_cselect_b32 {sA}, 2, 1\ns_add_u32 {sCB}, {sCB}, {sA}\ns_mul_i32 {sA}, {sA}, 384')
    a('s_waitcnt lgkmcnt(0)')
    if pst:
        for b, k in ((2, 3), (3, 4)):
            a(f's_cmp_lg_u32 {sCB}, {b}\ns_cbranch_scc1 L_st{k}')
            stamp(k)
            a(f'L_st{k}:')
    a(f's_add_u32 {sPB}, {sPB}, {PARTP}')
    a(f'v_add_u32 v5, {sA}, v5\nv_add_u32 {vFL}, 4, {vFL}')
    reset_state()
    a(f's_cmp_lt_u32 {sCB}, {sNB}\ns_cbranch_scc1 L_flush')
    load_q()
    a('s_waitcnt lgkmcnt(0)')
    a(f's_cmp_eq_u32 {sMODE}, 0\ns_cbranch_scc1 L_item')
    a('s_branch L_small0')

    def small_claim(lab, tmp=sA, back=None):
        a(f's_waitcnt lgkmcnt(0)\nv_readfirstlane_b32 {sTA}, {vT}\ns_nop 1')
        a(f's_and_b32 {tmp}, {sTA}, 3\ns_cbranch_scc1 {lab}')
        claim(vCA, 128)
        a(f's_waitcnt vmcnt(4)\ns_branch {lab}d')
        a(f'{lab}:')
        a('s_waitcnt vmcnt(3)')
        a(f's_branch {back}' if back else f'{lab}d:')

    a('L_trans:')
    draw(F_T2)
    a(f's_add_u32 {sROT}, {sROT}, {NBIG - 768 + 3 * RB}\ns_lshl_b32 {sROT}, {sROT}, 2')
    a(f's_add_u32 {sA}, {sSB}, {sROT}\ns_and_b32 {sA}, {sA}, 1023\ns_mul_i32 {sA}, {sA}, 3072')
    a(f's_add_u32 {sSB}, {sHB}, {3 * BSTR}\ns_add_u32 {sROT}, {sROT}, 32')
    a(f's_add_u32 {sCUR}, {sSB}, {sA}')
    a(f's_mov_b32 {sMODE}, 1\ns_mov_b32 {sNB}, 3')
    ld_one(0, SK, sCUR)
    if ISS[6] == 'b':
        vdot(2, RING)
    small_claim('L_tr')
    step(7, lambda: vdot(3, RING), lambda: ld_one(1, SV, sCUR))
    stamp(6)
    a(f's_cmp_lg_u32 {sCB}, 3\ns_cbranch_scc1 L_flush')
    a('L_small0:')
    s1_setup(sCB)
    flush_addr()
    a(f'v_mov_b32 {vCMP}, 0x7fc00000')
    if EC:
        a(f's_and_b32 {sA}, {sTA}, 3\ns_cbranch_scc1 L_sm0\ns_waitcnt vmcnt(3)')
    x = s[0]
    last = f's_cmp_ge_u32 {sA}, {SMALL}'
    for par in range(2):
        cur, nxt = 2 * par, 2 - 2 * par
        a(f'L_sm{par}:')
        a(f's_and_b32 {sA}, {sTA}, -4\ns_add_u32 {sA}, {sA}, {L_TAB2}\nv_mov_b32 {vE}, {sA}')
        a(f's_and_b32 {sA}, {sTA}, 3\ns_cbranch_scc1 L_sq{par}')
        a(f's_waitcnt vmcnt({6 if EC else 3})')
        publish(vCA, 1)
        a(f'v_readfirstlane_b32 {sA}, {vCA}')
        a(f'L_sq{par}r:')
        a(f's_and_b32 {sB}, {sTA}, 3\ns_add_u32 {sA}, {sA}, {sB}\ns_sub_u32 {sA}, {sA}, 1')
        spins.append(f'L_sq{par}')
        a(f'{last}\ns_cbranch_scc1 L_nd{par}')
        draw(F_T2)
        a(f's_add_u32 {sB}, {sA}, {sROT}\ns_and_b32 {sB}, {sB}, 1023\ns_mul_i32 {sB}, {sB}, 3072\ns_add_u32 {sCUR}, {sB}, {sSB}')
        if EC:
            a(f's_waitcnt lgkmcnt(0)\nv_readfirstlane_b32 {sTA}, {vT}\ns_nop 1')
            a(f's_and_b32 {sB}, {sTA}, 3\ns_cbranch_scc0 L_cl{par}')
        a(f'{last}\nL_nd{par}:')
        a(f's_waitcnt vmcnt(3)\ns_cbranch_scc1 L_nk{par}')
        a(f'L_ik{par}:')
        ld_one(nxt, SK, sCUR)
        if not EC:
            a(f's_waitcnt lgkmcnt(0)\nv_readfirstlane_b32 {sTA}, {vT}\ns_nop 1')
            a(f's_and_b32 {sB}, {sTA}, 3\ns_cbranch_scc1 L_nk{par}')
            claim(vCA, 128)
        a(f'L_nk{par}:')
        kdot(0, RING + 12 * cur, AD)
        a(f'v_add_f32 {x}, v{AD}, v{AD + 1}')
        for mode in ('quad_perm:[1,0,3,2]', 'quad_perm:[2,3,0,1]', 'row_half_mirror'):
            a(f'v_add_f32_dpp {x}, {x}, {x} {mode} {DPPM}')
        a(f'v_cvt_pk_bf16_f32 {x}, 0, {x}\nv_mul_f32 {x}, {f2u(192 ** -0.5)}, {x}\nv_cvt_pk_bf16_f32 {x}, 0, {x}')
        a(f'v_mul_f32 {t0}, {sLOG2E}, {x}\nv_cmp_nle_f32 vcc, {t0}, {vCMP}\ns_cbranch_vccnz L_nm{par}')
        a(f'L_mo{par}:')
        a(f'v_fma_f32 {x}, {x}, {sLOG2E}, -{vMC}\nv_exp_f32 {x}, {x}')
        a(last)
        a(f'v_cvt_pk_bf16_f32 v{P + 2}, {x}, 0\nv_cvt_pk_bf16_f32 v{P + 3}, 0, {x}\nv_add_f32 {vL}, {vL}, v{P + 3}')
        a(f's_cbranch_scc0 L_nl{par}\ns_waitcnt vmcnt(0)')
        a(f'L_vd{par}:')
        vdot(1, RING + 12 * cur)
        a(f'{last}\ns_cbranch_scc1 L_flush2')
    a('s_branch L_sm0')
    for par in range(2):
        a(f'L_nl{par}:')
        a(f's_waitcnt vmcnt(4)\ns_and_b32 {sB}, {sTA}, 3\ns_cbranch_scc0 L_nv{par}\ns_waitcnt vmcnt(3)\nL_nv{par}:')
        ld_one(3 - 2 * par, SV, sCUR)
        a(f's_branch L_vd{par}')
        if EC:
            a(f'L_cl{par}:')
            claim(vCA, 128)
            a(f's_waitcnt vmcnt(4)\ns_branch L_ik{par}')
        a(f'L_nm{par}:')
        a(f'v_max_f32 {t0}, {t0}, {vMC}')
        unify()
        a(f'v_mov_b32 {vCMP}, {vMC}\ns_branch L_mo{par}')
    for lab in spins:
        a(f'{lab}:')
        a(f's_mov_b64 exec, 1\nds_read_b32 {vE2}, {vE}\ns_mov_b64 exec, -1')
        a(f's_waitcnt lgkmcnt(0)\nv_readfirstlane_b32 {sA}, {vE2}\ns_nop 1')
        a(f's_cmp_eq_u32 {sA}, 0\ns_cbranch_scc1 {lab}')
        a(f's_branch {lab}r')

    a('L_fin:')
    if diag:
        a('s_waitcnt vmcnt(0)')
        stamp(7)
        a('s_mov_b64 exec, -1')
        if lstamp:
            a(f'v_mov_b32 v3, {L_FLAG}')
            lds_wait('L_stw', 'v10', 'v3', F_FL + 12, 4, 64)
            a('s_sleep 127\ns_sleep 127')
        a('s_load_dwordx2 s[8:9], s[0:1], 96')
        a('s_getreg_b32 s62, hwreg(20, 0, 4)')
        a('s_waitcnt lgkmcnt(0)')
        a('s_add_u32 s8, s8, 0x40000000\ns_addc_u32 s9, s9, 0\ns_mov_b32 s10, 0x200000\ns_mov_b32 s11, 0x20000')
        a(f's_lshl_b32 {sA}, s2, 3\ns_add_u32 {sA}, {sA}, {sWAVE}')
        a(f's_lshl_b32 {sB}, {sA}, 5\nv_mov_b32 v1, {sB}')
        a(f's_lshl_b32 {sB}, {sA}, 6\ns_add_u32 {sB}, {sB}, 0x100000\nv_mov_b32 v2, {sB}')
        a('v_mov_b32 v4, s84\nv_mov_b32 v5, s85\nv_mov_b32 v6, s98\nv_mov_b32 v7, s99')
        a(f'v_mov_b32 v8, s62\nv_mov_b32 v9, 0\nv_mov_b32 v10, s96\nv_mov_b32 v11, s97')
        for i in range(16):
            a(f'v_mov_b32 v{12 + i}, s{84 + i}')
        a('s_mov_b64 exec, 1')
        a('buffer_store_dwordx4 v[4:7], v1, s[8:11], 0 offen')
        a('buffer_store_dwordx4 v[8:11], v1, s[8:11], 0 offen offset:16')
        for i in range(4):
            a(f'buffer_store_dwordx4 v[{12 + 4 * i}:{15 + 4 * i}], v2, s[8:11], 0 offen offset:{16 * i}')
    a('L_end:')
    a('s_endpgm')

    ref = open(f'cdna_kernels/{NAME}.s.ref').read().split('\n')
    head = [x for x in ref if x.startswith(';') and '@launch' not in x and not x.startswith('; Override') and not x.startswith('; grid=')]
    out = '\n'.join(head) + f'\n; @launch grid=(256,1,1) block=(512,1,1) lds={LDS_SZ}\n'
    out += f'.amdgcn_target "amdgcn-amd-amdhsa--gfx950"\n.text\n.globl {KERN}\n.p2align 8\n.type {KERN},@function\n'
    out += a.text() + '\n'
    out += f'''.section .rodata,"a"
.p2align 6
.amdhsa_kernel {KERN}
  .amdhsa_next_free_vgpr 256
  .amdhsa_next_free_sgpr 102
  .amdhsa_accum_offset 256
  .amdhsa_group_segment_fixed_size 0
  .amdhsa_kernarg_size 104
  .amdhsa_user_sgpr_count 2
  .amdhsa_user_sgpr_kernarg_segment_ptr 1
  .amdhsa_system_sgpr_workgroup_id_x 1
.end_amdhsa_kernel
'''
    return out


if __name__ == '__main__':
    kw = eval('dict(' + (sys.argv[2] if len(sys.argv) > 2 else '') + ')')
    open(sys.argv[1], 'w').write(gen(**kw))
```

```python
import os, sys, struct
from asmlib import Asm

NAME = 'sequential_preLN__mha_block_cached__dense_activation_gelu__decode'
KERN = NAME + '_kernel'


def f2u(x):
    return '0x%08x' % struct.unpack('<I', struct.pack('<f', x))[0]


NB_KV = 402653184
PROB = 3145728
BSTR = 100663296
ITEM = 12288
QP, OP, HP, CT, AP, WS_SZ = 0x0, 0x100000, 0x200000, 0x1C0000, 0x380000, 0x400000
HPB, APB = 20480, 6144
REG = 24576
L_Q = 98304
L_PART = 99840
PARTP = 784
L_FLAG = 112384
F_Q, F_NONCE, F_W, F_T1, F_T2, F_FL, F_ST, F_H = 0, 4, 8, 12, 16, 16, 32, 48
L_ACT = 112448
L_TAB = 118592
L_TAB2 = L_TAB + 1024
L_SC = 120128
L_SF = L_TAB + 512
LDS_SZ = L_SC + 64 * 128
SK, SV, SWS, SDBG, SX, SWQ, SWO, SW1, SW2, SOUT, SB1, SB2 = [f's[{i}:{i+3}]' for i in range(8, 56, 4)]
SRD = {'K': (8, 8, NB_KV), 'V': (12, 16, NB_KV), 'WS': (16, 96, WS_SZ), 'DBG': (20, 88, 256), 'X': (24, 0, 5120),
       'WQ': (28, 24, 7864320), 'WO': (32, 32, 7864320), 'W1': (36, 48, 1966080), 'W2': (40, 64, 1966080),
       'OUT': (44, 80, 5120), 'B1': (48, 56, 3072), 'B2': (52, 72, 1280)}
sWAVE, sH, sJ = 's3', 's4', 's5'
sCUR, sNEXT, sHB, sCB, sNB, sPB, sMODE, sSB = 's56', 's57', 's58', 's59', 's60', 's61', 's6', 's7'
sBAT, sROLE, sIN, sOUTA, sACT, sXO = 's56', 's57', 's58', 's59', 's60', 's61'
sT = ['s64', 's65', 's66', 's67']
sSPIN, sST, sHI, sLOG2E = 's68', 's69', 's70', 's71'
sA, sB, sC, sD = 's72', 's73', 's74', 's75'
sPH = 's79'
SPIN = 1 << 14
DPPM = 'row_mask:0xf bank_mask:0xf'


def gen(diag=False, pol='nt', pst=False, PWIN=3, WWIN=1, SMALL=96, SLP=32, FSLP=2, NSTAT=28, pp2=7, pp4=4, ysl=0, hsl=0, early=1, SLP0=100, QSL=70, dbt=False, pnt='', sb=3, noq=False, WSL=0, PSL=0, RH=4, RB=100, KVX=0, PH=True, PH3=2, PHA=True, PHP=True, PM=0, PMM=17, PMH=0, exp=0, QS2=40, PRE=1, lstamp=True, mk=7, D4=1, G4=6, D5=1, G5=6, RC2=1, RC4=1, YS3=4, PAR=False, CTA=0x340000, CTS=4352, STM='sc1', LDM='sc1', OUM='', ISS='bbbbbbbb', PS=True, HM=5, FS=False, XC=True, PB=0, LM=True, EN=True, NWG=6, XS=True, P16=True, PO=0, QS3=0, PL2=0, PL4=0, PL5=0, PLM='', W4=False, FG=False, JX=0, AM='', ALM='sc1', ASW=12, LOC=True, NOA=False, W4S=0, GF=3, EC=True, RHO=True, PT=0, PTM='sc1', W2P='nt', WOP='nt', FD=0, YF=38, YW=18, FLB=0x3F0000, FST=4352):
    CT = CTA
    RB = [(k * RB) & 255 for k in range(4)] if isinstance(RB, int) else RB
    a = Asm()
    nstamp = [0]

    def stamp(i):
        if diag:
            a(f's_memrealtime s[{84 + 2 * i}:{85 + 2 * i}]')

    def bstamp(i):
        if diag and sb < 3:
            nstamp[0] += 1
            a(f's_cmp_lg_u32 {sBAT}, {sb}\ns_cbranch_scc1 L_bs{nstamp[0]}')
            stamp(i)
            a(f'L_bs{nstamp[0]}:')
        else:
            stamp(i)

    def dstamp(i, op='umax'):
        if dbt:
            a('s_memrealtime s[84:85]\ns_mov_b64 s[86:87], exec\ns_mov_b64 exec, 1\ns_waitcnt lgkmcnt(0)')
            a('v_mov_b32 v254, s84\nv_mov_b32 v255, 0')
            if op == 'umin':
                a('v_sub_u32 v254, 0, v254')
            a(f'buffer_atomic_umax v254, v255, {SDBG}, 0 offen offset:{4 * i} sc1')
            a('s_mov_b64 exec, s[86:87]')

    def allreduce(op, r, t, low=True):
        if low:
            a(f'{op}_dpp {r}, {r}, {r} quad_perm:[1,0,3,2] {DPPM}')
            a(f'{op}_dpp {r}, {r}, {r} quad_perm:[2,3,0,1] {DPPM}')
            a(f'{op}_dpp {r}, {r}, {r} row_half_mirror {DPPM}')
        a(f'{op}_dpp {r}, {r}, {r} row_ror:8 {DPPM}')
        for sw in ('v_permlane16_swap_b32', 'v_permlane32_swap_b32'):
            a(f'v_mov_b32 {t}, {r}')
            a(f'{sw} {r}, {t}')
            a(f'{op} {r}, {r}, {t}')

    def rbf(r):
        a(f'v_cvt_pk_bf16_f32 {r}, {r}, {r}')
        a(f'v_and_b32 {r}, {sHI}, {r}')

    def tag(base, n, vM):
        for i in range(n):
            a(f'v_bfi_b32 v{base + i}, {vM}, {sT[i % 4]}, v{base + i}')

    def check(base, n, chk, label, done, sleep=True, tags=None, mask='v9', step=1):
        tags = tags or sT
        c2 = f'v{int(chk[1:]) + 1}'
        a(f'v_xor_b32 {chk}, {tags[0]}, v{base}\nv_xor_b32 {c2}, {tags[1 % len(tags)]}, v{base + step}')
        for i in range(2, n):
            c = chk if i % 2 == 0 else c2
            a(f'v_bitop3_b32 {c}, {c}, v{base + i * step}, {tags[i % len(tags)]} bitop3:0xf6')
        a(f'v_bitop3_b32 {chk}, {chk}, {c2}, {mask} bitop3:0xa8')
        a(f'v_cmp_ne_u32 vcc, 0, {chk}')
        a(f's_cbranch_vccz {done}')
        a(f's_sub_u32 {sSPIN}, {sSPIN}, 1')
        a(f's_cbranch_scc1 {done}')
        if sleep:
            a(f's_cmp_eq_u32 {sBAT}, 3\ns_cbranch_scc1 {label}')
            a(f's_sleep {SLP}')
            if SLP0:
                a(f's_cmp_lg_u32 {sBAT}, 0\ns_cbranch_scc1 {label}\ns_sleep {SLP0}')
        a(f's_branch {label}')
        a(f'{done}:')
        a(f's_mov_b32 {sSPIN}, {SPIN}')

    def gather(lab, loads, tags, mask, plain=0, sw=None):
        M = ['s[8:9]', 's[10:11]', 's[12:13]', 's[14:15]', 's[28:29]']
        n = len(loads)
        a(f'{lab}:')
        if plain:
            a(f's_bitcmp0_b32 {plain}, {sBAT}\ns_cbranch_scc1 {lab}m')
            for x, _ in loads:
                a(x.replace('sc1', PLM))
            a(f's_branch {lab}w')
            a(f'{lab}m:')
        for i in range(n):
            a(f's_mov_b64 {M[i]}, -1')
        a(f'{lab}l:')
        for i, (x, _) in enumerate(loads):
            a(f's_wqm_b64 exec, {M[i]}')
            a(x.replace('sc1', LDM))
        a('s_mov_b64 exec, -1')
        a(f'{lab}w:')
        a('s_waitcnt vmcnt(0)')
        for k in range(len(loads[0][1])):
            for i, (_, regs) in enumerate(loads):
                t = tags[k % len(tags)]
                a(f'v_bitop3_b32 v{10 + i}, v{10 + i}, v{regs[k]}, {t} bitop3:0xf6' if k else f'v_xor_b32 v{10 + i}, {t}, v{regs[0]}')
        for i in range(n):
            a(f'v_and_b32 v{10 + i}, {mask}, v{10 + i}')
        for i in range(n):
            a(f'v_cmp_ne_u32 {M[i]}, 0, v{10 + i}')
        a('s_nop 1')
        a(f's_or_b64 vcc, {M[0]}, {M[1]}')
        for i in range(2, n):
            a(f's_or_b64 vcc, vcc, {M[i]}')
        a(f's_cbranch_scc0 {lab}d')
        a(f's_sub_u32 {sSPIN}, {sSPIN}, 1\ns_cbranch_scc1 {lab}d')
        if sw:
            a(f's_cmp_lt_u32 {sSPIN}, {SPIN - ASW}\ns_cselect_b32 {sw[0]}, {sw[1]}, {sw[0]}')
        a(f's_cmp_eq_u32 {sBAT}, 3\ns_cbranch_scc1 {lab}l')
        a(f's_sleep {SLP}\ns_branch {lab}l')
        a(f'{lab}d:')
        a(f's_mov_b32 {sSPIN}, {SPIN}')

    def get_nonce(lab, t):
        a(f'{lab}:')
        a(f'v_mov_b32 {t}, {L_FLAG}')
        a(f'ds_read_b32 {t}, {t} offset:{F_NONCE}')
        a('s_waitcnt lgkmcnt(0)')
        a(f'v_readfirstlane_b32 {sT[0]}, {t}')
        a('s_nop 1')
        a(f's_cmp_eq_u32 {sT[0]}, 0\ns_cbranch_scc1 {lab}')
        for i in (1, 2, 3):
            a(f's_lshr_b32 {sT[i]}, {sT[0]}, {8 * i}')

    def lds_wait(lab, t, vaddr, off, val, slp):
        a(f'{lab}:')
        a(f'ds_read_b32 {t}, {vaddr} offset:{off}')
        a('s_waitcnt lgkmcnt(0)')
        a(f'v_cmp_gt_u32 vcc, {val}, {t}')
        if slp:
            a(f's_cbranch_vccz {lab}d')
            a(f's_sleep {slp}\ns_branch {lab}')
            a(f'{lab}d:')
        else:
            a(f's_cbranch_vccnz {lab}')

    def lds_inc(vaddr, off, one):
        a('s_mov_b64 exec, 1')
        a(f'ds_add_u32 {vaddr}, {one} offset:{off}')
        a('s_mov_b64 exec, -1')

    def pub_exec(n, soff, stride):
        if W4:
            a(f's_cmp_eq_u32 {sBAT}, 3\ns_cselect_b32 {sA}, -1, 0x1111')
            return
        a(f's_add_u32 {sA}, {soff}, {4 * stride}')
        a(f's_cmp_eq_u32 {sBAT}, {3 if n > 1 else 4}\ns_cselect_b64 exec, -1, 0xffff')

    def pub_addr(v, g, t, stride):
        if W4:
            a(f'v_and_b32 {t}, 3, v0\nv_lshl_add_u32 {t}, {g}, 2, {t}\nv_and_b32 {t}, 7, {t}\nv_mul_u32_u24 {t}, {stride}, {t}')
            a(f'v_and_b32 {v}, 12, v0\nv_lshl_add_u32 {v}, {v}, 2, {t}')
        else:
            a(f'v_mul_u32_u24 {t}, {stride}, {g}\nv_and_b32 {v}, 15, v0\nv_lshl_add_u32 {v}, {v}, 2, {t}')

    def pub_store(n, v, vaddr, soff, lab):
        if W4:
            assert n == 8
            for k in range(4):
                a(f'v_mov_b32_dpp v{16 + k}, {v} quad_perm:[{k},{k},{k},{k}] {DPPM}')
            a(f's_mov_b32 exec_lo, {sA}\ns_mov_b32 exec_hi, 0')
            a(f'buffer_store_dwordx4 v[16:19], {vaddr}, {SWS}, {soff} offen {STM}')
            return
        a(f'buffer_store_dword {v}, {vaddr}, {SWS}, {soff} offen {STM}')
        if n == 8:
            a(f's_cbranch_scc0 {lab}')
            a(f'buffer_store_dword {v}, {vaddr}, {SWS}, {sA} offen {STM}')
            a(f'{lab}:')

    def copy_off(n, stride, inc):
        if n == 1:
            return inc
        r = sB if stride == 4 * HPB else sD
        a(f's_and_b32 {r}, {sJ}, {n - 1}\ns_mul_i32 {r}, {r}, {stride}\ns_cmp_eq_u32 {sBAT}, 2\ns_cselect_b32 {r}, {r}, 0\ns_add_u32 {r}, {r}, {inc}')
        return r

    def set_exec(m):
        a(f's_mov_b32 exec_lo, {m:#x}\ns_mov_b32 exec_hi, {m:#x}')

    sP, sQO = 's80', 's81'

    def srd(*ks):
        for k in ks:
            r, off, sz = SRD[k]
            a(f's_mov_b32 s{r + 2}, {sz}\ns_mov_b32 s{r + 3}, 0x20000')

    def kload(*ks):
        for k in ks:
            r, off, _ = SRD[k]
            a(f's_load_dwordx2 s[{r}:{r + 1}], s[0:1], {off}')

    def consts():
        a(f's_mov_b32 {sHI}, 0xffff0000\ns_mov_b32 {sLOG2E}, {f2u(1.4426950408889634)}')
        a(f's_mov_b32 {sSPIN}, {SPIN}')

    def lds_init(v, sx, sy):
        z, p, q, r = v, f'v{v + 4}', f'v{v + 5}', f'v{v + 6}'
        for k in range(4):
            a(f'v_mov_b32 v{z + k}, 0')
        a(f'v_and_b32 {p}, 15, v0\nv_lshlrev_b32 {p}, 2, {p}\nv_add_u32 {p}, {L_FLAG}, {p}')
        a(f'ds_write_b32 {p}, v{z}')
        a(f'v_lshlrev_b32 {p}, 4, v0\nv_lshlrev_b32 {q}, 3, v0\nv_add_u32 {r}, {L_TAB}, {p}\nv_add_u32 {q}, {L_TAB2}, {q}')
        a(f'ds_write_b128 {r}, v[{z}:{z + 3}]\nds_write_b64 {q}, v[{z}:{z + 1}]')
        a(f's_lshr_b32 {sx}, {sJ}, 2\ns_mul_i32 {sx}, {sx}, 240\ns_lshl_b32 {sy}, {sJ}, 2\ns_add_u32 {sy}, {sy}, 1\ns_add_u32 {sx}, {sx}, {sy}')
        a(f'v_add_u32 {q}, {sx}, {p}\nv_lshlrev_b32 {p}, 5, v0\nv_add_u32 {p}, {sy}, {p}')
        a(f'v_cmp_gt_u32 vcc, 16, v0\nv_cndmask_b32 {p}, {p}, {q}, vcc')
        a(f'v_cmp_gt_u32 vcc, {NSTAT}, v0\nv_cndmask_b32 {p}, 0, {p}, vcc')
        if PH and PHA:
            nv = 8 if PHP else 7
            a(f'v_mov_b32 {r}, 0')
            for lo, d in ((16 - nv, 4 + PH3), (16, -nv), (20, PH3), (24, -4 - nv), (24 + PH3, 0)):
                a(f'v_cmp_le_u32 vcc, {lo}, v0\nv_cndmask_b32_e64 {r}, {r}, {d}, vcc')
            a(f'v_add_lshl_u32 {q}, v0, {r}, 2\nv_add_u32 {q}, {L_TAB}, {q}')
        else:
            a(f'v_lshlrev_b32 {q}, 2, v0\nv_add_u32 {q}, {L_TAB}, {q}')
        a(f'ds_write_b32 {q}, {p}')

    def nonce_store(sx, va, vb):
        a(f'v_lshlrev_b32 {va}, 6, v0\ns_waitcnt lgkmcnt(0)')
        a(f's_mul_i32 {sx}, s62, 0x9e3779b1\ns_or_b32 {sx}, {sx}, 1\nv_mov_b32 {vb}, {sx}')
        a('s_mov_b64 exec, 15')
        a(f'buffer_store_dword {vb}, {va}, {SDBG}, 0 offen sc1')
        a('s_mov_b64 exec, -1')

    a(f'{KERN}:')
    a('s_cmp_ge_u32 s2, 256\ns_cbranch_scc1 L_end')
    if EN:
        kload('X', 'WQ', 'K')
        a('v_lshrrev_b32 v1, 6, v0\nv_and_b32 v0, 63, v0')
        a(f'v_readfirstlane_b32 {sWAVE}, v1')
        stamp(0)
        a(f's_and_b32 {sJ}, s2, 7\ns_lshr_b32 {sH}, s2, 3')
        a(f's_cmp_ge_u32 {sWAVE}, 4\ns_cbranch_scc1 L_stream')
        srd('X', 'WQ')
    else:
        kload('X', 'WQ', 'K', 'DBG', 'WS', 'V', 'WO', 'W1', 'W2', 'OUT', 'B1', 'B2')
        a('s_memrealtime s[62:63]')
        stamp(0)
        a('v_lshrrev_b32 v1, 6, v0\nv_and_b32 v0, 63, v0')
        a(f'v_readfirstlane_b32 {sWAVE}, v1')
        srd(*SRD)
        a(f's_and_b32 {sJ}, s2, 7')
        if HM:
            a(f's_mul_i32 {sH}, {sJ}, {8 * HM}\ns_add_u32 s2, s2, {sH}\ns_and_b32 s2, s2, 255')
        a(f's_lshr_b32 {sH}, s2, 3')
        consts()
        a(f's_cmp_ge_u32 {sWAVE}, 4\ns_cbranch_scc1 L_stream')
        a(f's_cmp_lg_u32 {sWAVE}, 3\ns_cbranch_scc1 L_h0')
        lds_init(12, sA, sB)
        a('s_cmp_lg_u32 s2, 0\ns_cbranch_scc1 L_h0')
        nonce_store(sB, 'v7', 'v5')

    a('L_h0:')
    if XC:
        a('v_lshrrev_b32 v2, 2, v0\nv_and_b32 v1, 3, v2\nv_mul_u32_u24 v1, 1280, v1\nv_lshrrev_b32 v4, 4, v0')
        a('v_and_b32 v3, 3, v0\nv_lshl_add_u32 v3, v4, 2, v3\nv_lshl_add_u32 v3, v3, 4, v1\nv_lshl_add_u32 v4, v4, 3, v1')
    else:
        a('v_and_b32 v1, 3, v0\nv_mul_u32_u24 v1, 1280, v1\nv_lshrrev_b32 v2, 2, v0\nv_mul_u32_u24 v3, 80, v2\nv_add_u32 v3, v3, v1')
        a('v_lshrrev_b32 v4, 4, v0\nv_lshl_add_u32 v4, v4, 3, v1')
    a('v_lshrrev_b32 v5, 3, v0\nv_mul_u32_u24 v5, 12288, v5\nv_and_b32 v6, 7, v0\nv_lshl_add_u32 v5, v6, 4, v5')
    a(f's_add_u32 {sP}, {sJ}, {sH}\ns_and_b32 {sP}, {sP}, 7')
    a(f's_and_b32 {sD}, {sP}, 1\ns_lshl_b32 {sD}, {sD}, 2\ns_add_u32 {sD}, {sD}, {sWAVE}')
    a(f's_mul_i32 {sA}, {sD}, 160')
    a(f's_mul_i32 {sB}, {sD}, {80 * 12288}\ns_mul_i32 {sC}, {sH}, 384\ns_add_u32 {sB}, {sB}, {sC}')
    a(f's_lshr_b32 {sC}, {sP}, 1\ns_lshl_b32 {sC}, {sC}, 7\ns_add_u32 {sB}, {sB}, {sC}')
    a(f's_mul_i32 {sC}, {sWAVE}, {REG}\ns_mul_i32 {sQO}, {sH}, 6144')
    a('s_waitcnt lgkmcnt(0)')
    if PB == 1:
        a('s_barrier')
    a(f's_cmp_ge_u32 {sP}, {0 if exp & 2 else 6}\ns_cbranch_scc1 L_nold')
    if XS:
        a(f's_cmp_lg_u32 {sWAVE}, 3\ns_cbranch_scc1 L_nox')
    for i in range(5):
        a(f'buffer_load_dwordx4 v[{20 + 4 * i}:{23 + 4 * i}], v3, {SX}, 0 offen offset:{i * (256 if XC else 16)}')
    for i in range(0 if XS else 5):
        a(f'buffer_load_dwordx2 v[{10 + 2 * i}:{11 + 2 * i}], v4, {SX}, {sA} offen offset:{i * 32}')
    a('L_nox:')
    for u in range(10):
        if PB == 2 + u:
            a('s_barrier')
        a(f's_mov_b32 m0, {sC}')
        a(f'buffer_load_dwordx4 v5, {SWQ}, {sB} offen nt lds')
        if u < 9:
            a(f's_add_u32 {sB}, {sB}, {8 * 12288}\ns_add_u32 {sC}, {sC}, 1024')
    if PB >= 2:
        a('s_branch L_nob')
    a('L_nold:')
    if PB != 1:
        a('s_barrier')
    a('L_nob:')
    if EN:
        kload('DBG', 'WS', 'WO', 'W1', 'W2', 'OUT', 'B1', 'B2')
        srd('DBG', 'WS', 'WO', 'W1', 'W2', 'OUT', 'B1', 'B2')
        consts()
        a('s_waitcnt lgkmcnt(0)')
    a(f's_cmp_lg_u32 {sWAVE}, {1 if XS else 3}\ns_cbranch_scc1 L_h1')
    for i in (3, 0, 1, 2):
        a(f's_load_dword {sT[0]}, s[20:21], {64 * i}')
        a('s_waitcnt lgkmcnt(0)')
        a(f's_cmp_lg_u32 {sT[0]}, 0\ns_cbranch_scc1 L_ngot')
    a('v_mov_b32 v7, 0')
    a('L_nv:')
    a(f'buffer_load_dword v6, v7, {SDBG}, 0 offen sc1')
    a('s_waitcnt vmcnt(0)')
    a(f'v_readfirstlane_b32 {sT[0]}, v6')
    a(f's_sub_u32 {sSPIN}, {sSPIN}, 1\ns_cselect_b32 {sT[0]}, 1, {sT[0]}')
    a(f's_cmp_eq_u32 {sT[0]}, 0\ns_cbranch_scc1 L_nv')
    a(f's_mov_b32 {sSPIN}, {SPIN}')
    a('L_ngot:')
    a(f'v_mov_b32 v6, {sT[0]}\nv_mov_b32 v7, {L_FLAG}')
    a(f'ds_write_b32 v7, v6 offset:{F_NONCE}')
    a('L_h1:')
    a(f's_cmp_ge_u32 {sP}, 6\ns_cbranch_scc1 L_nop')
    a(f's_or_b32 {sB}, {sP}, {sWAVE}\ns_cbranch_scc1 L_noct')
    a(f's_mul_i32 {sB}, {sH}, {CTS}\ns_add_u32 {sB}, {sB}, {CT}')
    a('v_mov_b32 v6, 0\nv_lshlrev_b32 v7, 7, v0\ns_mov_b64 exec, 3')
    a(f'buffer_store_dword v6, v7, {SWS}, {sB} offen sc1')
    a('s_mov_b64 exec, -1')
    a('L_noct:')
    if exp & 2:
        a('s_branch L_fin')
    L_XF = L_TAB2 + 504
    if XS:
        a(f's_cmp_lg_u32 {sWAVE}, 3\ns_cbranch_scc1 L_xw')
    a('s_waitcnt vmcnt(10)')
    stamp(1)
    NX, XB = (20, 20) if XS else (10, 10)
    a(f's_mov_b32 {sD}, 0x3f803f80')
    for i in range(20):
        acc = f'v{6 + i % 2}'
        a(f'v_dot2_f32_bf16 {acc}, v{20 + i}, {sD}, {acc if i >= 2 else 0}')
    for i in range(20):
        a(f'v_lshlrev_b32 v{40 + 2 * i}, 16, v{20 + i}\nv_and_b32 v{41 + 2 * i}, {sHI}, v{20 + i}')
    a('v_add_f32 v6, v6, v7')

    def red4(r, t):
        if XC:
            a(f'v_add_f32_dpp {r}, {r}, {r} quad_perm:[1,0,3,2] {DPPM}')
            a(f'v_add_f32_dpp {r}, {r}, {r} quad_perm:[2,3,0,1] {DPPM}')
            for sw in ('v_permlane16_swap_b32', 'v_permlane32_swap_b32'):
                a(f'v_mov_b32 {t}, {r}\n{sw} {r}, {t}\nv_add_f32 {r}, {r}, {t}')
            return
        a(f'v_add_f32_dpp {r}, {r}, {r} row_ror:4 {DPPM}')
        allreduce('v_add_f32', r, t, low=False)
    red4('v6', 'v7')
    a(f'v_mul_f32 v6, {f2u(1 / 640)}, v6')
    DV, VA = (80, 10) if XS else (40, 20)
    for i in range(20):
        a(f'v_pk_add_f32 v[{DV + 2 * i}:{DV + 1 + 2 * i}], v[{40 + 2 * i}:{41 + 2 * i}], v[6:7] op_sel_hi:[1,0] neg_lo:[0,1] neg_hi:[0,1]')
    for i in range(20):
        d = f'v[{DV + 2 * i}:{DV + 1 + 2 * i}]'
        acc = f'v[{VA + 2 * (i % 2)}:{VA + 1 + 2 * (i % 2)}]'
        a(f'v_pk_mul_f32 {acc}, {d}, {d}' if i < 2 else f'v_pk_fma_f32 {acc}, {d}, {d}, {acc}')
    rbf('v6')
    for i in range(0 if XS else 10):
        a(f'v_lshlrev_b32 v{40 + 2 * i}, 16, v{10 + i}\nv_and_b32 v{41 + 2 * i}, {sHI}, v{10 + i}')
    a(f'v_add_f32 v{VA}, v{VA}, v{VA + 1}\nv_add_f32 v{VA + 2}, v{VA + 2}, v{VA + 3}\nv_add_f32 v8, v{VA}, v{VA + 2}')
    red4('v8', 'v9')
    for i in range(NX):
        a(f'v_pk_add_f32 v[{40 + 2 * i}:{41 + 2 * i}], v[{40 + 2 * i}:{41 + 2 * i}], v[6:7] op_sel_hi:[1,0] neg_lo:[0,1] neg_hi:[0,1]')
    a(f'v_mul_f32 v8, {f2u(1 / 640)}, v8')
    rbf('v8')
    a(f'v_add_f32 v8, {f2u(1e-5)}, v8')
    rbf('v8')
    a('v_sqrt_f32 v8, v8')
    for i in range(NX):
        a(f'v_cvt_pk_bf16_f32 v{XB + i}, v{40 + 2 * i}, v{41 + 2 * i}')
    rbf('v8')
    a('v_rcp_f32 v8, v8')
    for i in range(NX):
        a(f'v_lshlrev_b32 v{40 + 2 * i}, 16, v{XB + i}\nv_and_b32 v{41 + 2 * i}, {sHI}, v{XB + i}')
    for i in range(NX):
        a(f'v_pk_mul_f32 v[{40 + 2 * i}:{41 + 2 * i}], v[{40 + 2 * i}:{41 + 2 * i}], v[8:9] op_sel_hi:[1,0]')
    for i in range(NX):
        a(f'v_cvt_pk_bf16_f32 v{XB + i}, v{40 + 2 * i}, v{41 + 2 * i}')
    if XS:
        a(f'v_add_u32 v3, {L_PART}, v3\nv_mov_b32 v6, {L_XF}\nv_mov_b32 v7, 1')
        for i in range(5):
            a(f'ds_write_b128 v3, v[{20 + 4 * i}:{23 + 4 * i}] offset:{i * 256}')
        a('ds_write_b32 v6, v7')
        a('L_xw:')
        a(f's_add_u32 {sA}, {sA}, {L_PART}\nv_add_u32 v4, {sA}, v4\nv_mov_b32 v6, {L_XF}')
        lds_wait('L_xv', 'v7', 'v6', 0, 1, 1)
        for i in range(5):
            a(f'ds_read_b64 v[{10 + 2 * i}:{11 + 2 * i}], v4 offset:{i * 32}')
    a(f'v_and_b32 v1, 3, v0\nv_lshlrev_b32 v5, 7, v2\nv_lshl_add_u32 v5, v1, 3, v5')
    a(f's_mul_i32 {sC}, {sWAVE}, {REG}\nv_add_u32 v5, {sC}, v5')
    a('v_mov_b32 v9, 0xff\nv_lshlrev_b32 v8, 4, v0')
    get_nonce('L_np0', 'v6')
    stamp(2)
    a('s_waitcnt vmcnt(0)')
    stamp(3)
    for qs in ((4,), (0, 1), (2, 3)):
        for T in range(4):
            for q in qs:
                r = 20 + T * 12 + q * 2
                a(f'ds_read_b64_tr_b16 v[{r}:{r + 1}], v5 offset:{q * 2048 + T * 32}')
    a(f's_lshl_b32 {sB}, {sP}, 10\ns_add_u32 {sB}, {sB}, {sQO}')
    a(f's_lshl_b32 {sC}, {sWAVE}, 10\nv_add_u32 v7, {L_ACT}, v8\nv_add_u32 v6, {sC}, v7')
    if XC:
        a(f's_add_u32 {sC}, {sC}, {L_ACT}\nv_and_b32 v6, 0xf0, v8\nv_lshrrev_b32 v3, 4, v0\nv_lshl_add_u32 v6, v3, 2, v6\nv_add_u32 v6, {sC}, v6')
    a(f'v_mov_b32 v3, {L_TAB2 + 508}\nv_mov_b32 v4, 1')
    a('s_waitcnt lgkmcnt(15)')
    for T in range(4):
        r, d = 20 + T * 12, 68 + T * 4
        a(f'v_mfma_f32_16x16x16_bf16 v[{d}:{d + 3}], v[18:19], v[{r + 8}:{r + 9}], 0')
    for kk in range(2):
        a(f's_waitcnt lgkmcnt({8 - 8 * kk})')
        for T in range(4):
            r, d = 20 + T * 12 + 4 * kk, 68 + T * 4
            a(f'v_mfma_f32_16x16x32_bf16 v[{d}:{d + 3}], v[{10 + 4 * kk}:{13 + 4 * kk}], v[{r}:{r + 3}], v[{d}:{d + 3}]')
    if XC:
        a('ds_write2_b32 v6, v68, v72 offset0:0 offset1:64\nds_write2_b32 v6, v76, v80 offset0:128 offset1:192')
    else:
        a('s_mov_b64 exec, 0xffff')
        for T in range(4):
            a(f'ds_write_b128 v6, v[{68 + T * 4}:{71 + T * 4}] offset:{T * 256}')
    a('s_mov_b64 exec, 1\nds_add_rtn_u32 v4, v3, v4\ns_mov_b64 exec, -1')
    a(f's_waitcnt lgkmcnt(0)\nv_readfirstlane_b32 {sA}, v4\ns_nop 1')
    a(f's_cmp_lg_u32 {sA}, 3\ns_cbranch_scc1 L_qc')
    for w in range(4):
        a(f'ds_read_b128 v[{20 + 4 * w}:{23 + 4 * w}], v7 offset:{w * 1024}')
    a('s_waitcnt lgkmcnt(2)')
    a('v_pk_add_f32 v[20:21], v[20:21], v[24:25]\nv_pk_add_f32 v[22:23], v[22:23], v[26:27]')
    a('s_waitcnt lgkmcnt(0)')
    a('v_pk_add_f32 v[28:29], v[28:29], v[32:33]\nv_pk_add_f32 v[30:31], v[30:31], v[34:35]')
    a('v_pk_add_f32 v[36:37], v[20:21], v[28:29]\nv_pk_add_f32 v[38:39], v[22:23], v[30:31]')
    tag(36, 4, 'v9')
    a(f'buffer_store_dwordx4 v[36:39], v8, {SWS}, {sB} offen sc1')
    stamp(4)
    a('s_branch L_qc')
    a('L_nop:')
    a('v_mov_b32 v9, 0xff\nv_lshlrev_b32 v8, 4, v0')
    get_nonce('L_np1', 'v6')
    if exp & 2:
        a('s_branch L_fin')
    if QSL:
        a(f's_sleep {QSL}')
    a('L_qc:')
    a(f'v_mov_b32 v3, {L_FLAG}\nv_mov_b32 v4, 1')
    a(f's_cmp_eq_u32 {sWAVE}, 3\ns_cbranch_scc1 L_role')
    a(f's_lshl_b32 {sB}, {sWAVE}, 11\ns_add_u32 {sB}, {sB}, {sQO}')
    if QS2:
        a(f's_sleep {QS2}')
    if QS3:
        a(f's_branch L_qg\nL_qgs:\ns_sleep {QS3}')
    a('L_qg:')
    for m in range(2):
        a(f'buffer_load_dwordx4 v[{20 + 4 * m}:{23 + 4 * m}], v8, {SWS}, {sB} offen offset:{m * 1024} sc1')
    a('s_waitcnt vmcnt(0)')
    check(20, 8, 'v10', 'L_qg' + ('s' if QS3 else ''), 'L_qgd', sleep=False)
    a(f's_mov_b32 {sD}, 0x80')
    for i in range(8):
        a(f'v_bfi_b32 v{20 + i}, v9, {sD}, v{20 + i}')
    for i in range(4):
        a(f'v_add_f32 v{20 + i}, v{20 + i}, v{24 + i}')
    a('v_cvt_pk_bf16_f32 v20, v20, v21\nv_cvt_pk_bf16_f32 v22, v22, v23')
    a(f's_lshl_b32 {sC}, {sWAVE}, 7\ns_add_u32 {sC}, {sC}, {L_Q}')
    a(f'v_lshl_add_u32 v5, v0, 1, {sC}')
    a('ds_write_b16 v5, v20\nds_write_b16_d16_hi v5, v20 offset:384')
    a('ds_write_b16 v5, v22 offset:768\nds_write_b16_d16_hi v5, v22 offset:1152')
    lds_inc('v3', F_Q, 'v4')
    stamp(5)

    def dma_loop(lab, srd, n, gstep, pl=WOP):
        a(f's_add_u32 {sD}, {sC}, {n * 1024}')
        a(f'{lab}:')
        a(f's_mov_b32 m0, {sC}')
        a(f's_add_u32 {sC}, {sC}, 1024')
        a(f'buffer_load_dwordx4 v2, {srd}, {sB} offen {pl} lds')
        a(f's_add_u32 {sB}, {sB}, {gstep}')
        a(f's_waitcnt vmcnt({WWIN})')
        a(f's_cmp_lt_u32 {sC}, {sD}\ns_cbranch_scc1 {lab}')

    def weights_ready(lab, n=4):
        a('s_waitcnt vmcnt(0)')
        lds_inc('v3', F_W, 'v4')
        lds_wait(lab, 'v12', 'v3', F_W, n, 8)

    def tr_reads(lst):
        for n, (r, va, off) in enumerate(lst):
            if n and n % 12 == 0:
                a('s_waitcnt lgkmcnt(0)')
            a(f'ds_read_b64_tr_b16 v[{r}:{r + 1}], {va} offset:{off}')
        a('s_waitcnt lgkmcnt(0)')

    def batch_top(lab):
        a('s_branch L_pre')
        a(f'{lab}:')
        if early >> ('L_s2b', 'L_s4b', 'L_s5b').index(lab) & 1:
            a(f's_cmp_eq_u32 {sBAT}, 2\ns_cbranch_scc1 L_pre2')
        a(f'{lab}c:')

    def shadow_sleep(lab, n, force=False):
        if n or force:
            a(f's_cmp_eq_u32 {sBAT}, 3\ns_cbranch_scc1 {lab}')
        for i in range(n):
            a('s_sleep 127')

    def s1_setup(sb):
        a(f's_mul_i32 {sA}, {sb}, {PARTP}\ns_add_u32 {sA}, {sA}, {L_PART}')
        a(f'v_and_b32 v51, 31, v0\nv_lshlrev_b32 v54, 4, v51\nv_add_u32 v46, {sA}, v54\nv_mov_b32 v47, {sA}')
        a(f'v_lshl_add_u32 v51, v51, 3, {sA}\nv_mov_b32 v55, 0xffff')
        a(f'v_and_b32 v50, 1, v0\nv_lshlrev_b32 v50, 4, v50\nv_lshrrev_b32 v49, v50, {sT[0]}\nv_sub_u32 v50, 16, v50')
        a(f's_lshl_b32 s83, {sb}, 17\ns_lshl_b32 {sA}, s2, 9\ns_add_u32 s83, s83, {sA}\ns_add_u32 s83, s83, {OP}')

    def wait_flush(lab, split):
        a(f's_cmp_lg_u32 {sBAT}, 3\ns_cbranch_scc1 {lab}d')
        if PAR:
            for r, bit, off in split:
                if r[0] == 's':
                    a(f's_bitcmp1_b32 {sWAVE}, 0\ns_cselect_b32 {sB}, {off}, 0\ns_add_u32 {r}, {r}, {sB}')
                else:
                    a(f'v_bfe_u32 v10, v0, {bit}, 1\nv_mul_u32_u24 v10, {off}, v10\nv_add_u32 {r}, {r}, v10')
        stamp(2)
        lds_wait(lab, 'v10', 'v3', F_FL, 4, FSLP)
        bstamp(6)

    def wait_heads(lab):
        a(f's_cmp_lg_u32 {sBAT}, 3\ns_cbranch_scc1 {lab}x')
        a(f's_mul_i32 {sB}, {sJ}, {FST}\ns_add_u32 {sB}, {sB}, {FLB}\nv_and_b32 v11, 31, v0\nv_lshlrev_b32 v11, 2, v11')
        a(f'{lab}:')
        a(f'buffer_load_dword v10, v11, {SWS}, {sB} offen sc1')
        a(f's_sub_u32 {sSPIN}, {sSPIN}, 1\ns_cbranch_scc1 {lab}d')
        a(f's_waitcnt vmcnt(0)\nv_cmp_ne_u32 vcc, {sT[0]}, v10\ns_cbranch_vccnz {lab}')
        a(f'{lab}d:')
        a(f's_mov_b32 {sSPIN}, {SPIN}')
        if FD:
            a(f's_sleep {FD}')
        stamp(5)
        a(f'{lab}x:')

    def batch_end(lab, incs):
        a('s_mov_b64 exec, -1')
        a(f's_add_u32 {sBAT}, {sBAT}, 1')
        a('v_add_u32 v3, 4, v3')
        for r, d in incs:
            a(f's_add_u32 {r}, {r}, {d}' if r[0] == 's' else f'v_add_u32 {r}, {d}, {r}')
        a(f's_cmp_lt_u32 {sBAT}, 4\ns_cbranch_scc1 {lab}')
        a('s_branch L_fin')

    a('L_role:')
    if exp & 1:
        a('s_branch L_fin')
    for i in range(WSL):
        a('s_sleep 127')
    a(f's_lshl_b32 {sA}, {sJ}, 2\ns_add_u32 {sA}, {sA}, {sH}\ns_and_b32 {sA}, {sA}, 31\ns_mov_b32 {sROLE}, 0')
    a(f's_mul_i32 {sC}, {sWAVE}, {REG}')
    a('v_lshrrev_b32 v5, 1, v0\nv_and_b32 v5, 16, v5\nv_lshrrev_b32 v6, 2, v0\nv_and_b32 v6, 5, v6\nv_and_b32 v7, 8, v0\nv_or3_b32 v6, v5, v6, v7')
    a('v_lshrrev_b32 v5, 4, v0\nv_and_b32 v7, 3, v0')

    def sp_index(v):
        a(f'v_and_b32 {v}, 1, v0\nv_mul_u32_u24 {v}, 0xaaaa, {v}\nv_add_u32 {v}, 0x4444, {v}\nv_lshl_add_u32 {v}, {v}, 16, {v}')

    def a_addr(v, t):
        a(f'v_and_b32 {t}, 1, v0\nv_lshl_add_u32 {t}, v5, 1, {t}\nv_lshlrev_b32 {v}, 4, {t}\nv_add_u32 {v}, {L_ACT}, {v}')

    def smf(d, x, w, ix):
        a(f'v_smfmac_f32_16x16x64_bf16 v[{d}:{d + 3}], v[{x}:{x + 3}], v[{w}:{w + 7}], {ix}')

    def zero(r, n):
        for k in range(n):
            a(f'v_mov_b32 v{r + k}, 0')

    a('v_and_b32 v63, 15, v0\nv_lshlrev_b32 v63, 2, v63')
    a(f's_cmp_eq_u32 {sJ}, {JX}\ns_cbranch_scc1 L_ffn')
    a(f's_mov_b32 {sD}, {sJ}\ns_cmp_lt_u32 {sA}, 10\ns_cbranch_scc1 L_s2')
    a(f's_cmp_lg_u32 {sJ}, {JX ^ 4}\ns_cbranch_scc1 L_idle')
    a(f's_mov_b32 {sD}, {JX}\ns_xor_b32 {sA}, {sA}, 16\ns_cmp_ge_u32 {sA}, 10\ns_cbranch_scc1 L_idle')

    a('L_s2:')
    a(f's_mul_i32 {sOUTA}, {sD}, 2560\ns_lshl_b32 {sB}, {sA}, 8\ns_add_u32 {sOUTA}, {sOUTA}, {sB}')
    a(f's_add_u32 {sOUTA}, {sOUTA}, {HP}')
    a(f's_lshl_b32 {sD}, {sD}, 2\ns_add_u32 {sD}, {sD}, {sWAVE}')
    a(f's_lshl_b32 {sIN}, {sD}, 12\ns_add_u32 {sIN}, {sIN}, {OP + (1 << 17)}')
    if FG:
        a(f's_cmp_eq_u32 {sA}, 0\ns_cselect_b32 {sXO}, 3, 7\ns_lshl_b32 {sACT}, {sD}, 2\ns_add_u32 {sACT}, {sACT}, {FLB}')
        a(f'v_mul_u32_u24 v228, {FST}, v0\nv_mov_b32 v229, {sT[0]}')
    a(f's_mul_i32 {sB}, {sD}, {192 * 1280}\ns_lshl_b32 {sA}, {sA}, 7\ns_add_u32 {sB}, {sB}, {sA}')
    a('v_lshrrev_b32 v2, 3, v0\nv_mul_u32_u24 v2, 1280, v2\nv_and_b32 v1, 7, v0\nv_lshl_add_u32 v2, v1, 4, v2')
    dma_loop('L_dwo', SWO, 24, 8 * 1280)
    a('v_lshlrev_b32 v10, 7, v6\nv_lshl_add_u32 v10, v7, 3, v10')
    a(f's_mul_i32 {sA}, {sWAVE}, {REG}\nv_add_u32 v10, {sA}, v10\ns_waitcnt vmcnt(0)')
    tr_reads([(128 + 24 * T + 4 * s_ + 2 * q, 'v10', s_ * 4096 + q * 256 + T * 32) for T in range(4) for s_ in range(6) for q in range(2)])
    stamp(5)
    a('v_lshlrev_b32 v8, 4, v0\nv_and_b32 v10, 31, v0\nv_lshrrev_b32 v11, 5, v0\nv_lshl_add_u32 v10, v10, 1, v11')
    a(f's_mul_i32 {sA}, {sWAVE}, 384\ns_add_u32 {sA}, {sA}, {L_ACT}')
    a(f'v_lshl_add_u32 v2, v10, 2, {sA}\nv_lshl_add_u32 v7, v10, 1, {sA}')
    a(f'v_and_b32 v10, 1, v0\nv_lshlrev_b32 v11, 4, v10\nv_lshrrev_b32 v224, v11, {sT[0]}\nv_mov_b32 v225, 0xffff')
    a('v_mov_b32 v226, 0x07060302\nv_mov_b32 v227, 0x03020706\nv_cmp_eq_u32 vcc, 1, v10\nv_cndmask_b32 v226, v226, v227, vcc')
    a('v_bfe_u32 v1, v0, 1, 2\nv_lshlrev_b32 v1, 9, v1\nv_add_u32 v1, v1, v11')
    a_addr('v6', 'v10')
    a(f's_sub_u32 {sA}, {sA}, {L_ACT}\nv_add_u32 v6, {sA}, v6')
    sp_index('v230')
    a(f'v_lshlrev_b32 v5, 2, v0\nv_add_u32 v231, {L_ACT + 2048}, v5\ns_lshl_b32 {sA}, {sWAVE}, 8\nv_add_u32 v232, {sA}, v231')
    a(f'v_lshlrev_b32 v10, 3, v0\nv_lshrrev_b32 v227, v10, {sT[0]}')
    batch_top('L_s2b')
    zero(80, 16)
    a(f's_cmp_ge_u32 {sBAT}, 2\ns_cselect_b32 {sA}, 2048, 0\ns_add_u32 {sA}, {sA}, {sIN}')
    wait_flush('L_s2w', [])
    if pp2:
        a(f's_bitcmp0_b32 {pp2}, {sBAT}\ns_cbranch_scc1 L_og')
        a('L_op:')
        a(f'buffer_load_dword v20, v1, {SWS}, {sIN} offen offset:12 sc1')
        a(f'buffer_load_dword v21, v1, {SWS}, {sA} offen offset:12 sc1')
        a('s_waitcnt vmcnt(0)')
        check(20, 2, 'v10', 'L_op', 'L_opd', tags=['v224'], mask='v225')
    if mk & 1:
        gather('L_og', [(f'buffer_load_dwordx4 v[{20 + 4 * m}:{23 + 4 * m}], v8, {SWS}, {sIN if m < 2 else sA} offen offset:{(m % 2) * 1024} sc1', [23 + 4 * m]) for m in range(4)], ['v224'], 'v225', PL2)
        if FG:
            a(f's_cmp_lg_u32 {sXO}, {sBAT}\ns_cbranch_scc1 L_nofl\ns_mov_b64 exec, 0xff')
            a(f'buffer_store_dword v229, v228, {SWS}, {sACT} offen sc1')
            a('s_mov_b64 exec, -1\nL_nofl:')
        for m in range(4):
            a(f'v_mov_b32_dpp v{12 + m}, v{23 + 4 * m} quad_perm:[1,0,3,2] {DPPM}')
    else:
        a('L_og:')
        for m in range(4):
            a(f'buffer_load_dwordx4 v[{20 + 4 * m}:{23 + 4 * m}], v8, {SWS}, {sIN if m < 2 else sA} offen offset:{(m % 2) * 1024} sc1')
        a('s_waitcnt vmcnt(0)')
        for m in range(4):
            a(f'v_mov_b32_dpp v{12 + m}, v{23 + 4 * m} quad_perm:[1,0,3,2] {DPPM}')
        check(23, 4, 'v10', 'L_og', 'L_ogd', tags=['v224'], mask='v225', step=4)
    bstamp(3)
    UP = lambda m, k: 36 + 6 * m + k

    def unp(m):
        for k in range(3):
            a(f'v_lshlrev_b32 v{UP(m, 2 * k)}, 16, v{20 + 4 * m + k}\nv_and_b32 v{UP(m, 2 * k + 1)}, {sHI}, v{20 + 4 * m + k}')
    for m in range(4):
        a(f'v_perm_b32 v{60 + 2 * m}, v{12 + m}, v{23 + 4 * m}, v226')
    a('v_max3_f32 v10, v60, v62, v64\nv_max_f32 v10, v10, v66\nv_mov_b32 v11, v10')
    unp(0)
    a('v_permlane32_swap_b32 v10, v11\nv_max_f32 v10, v10, v11')
    for m in range(4):
        a(f'v_sub_f32 v{60 + 2 * m}, v{60 + 2 * m}, v10')
    for m in range(4):
        a(f'v_exp_f32 v{60 + 2 * m}, v{60 + 2 * m}')
    unp(1)
    a('v_add_f32 v10, v60, v62\nv_add_f32 v11, v64, v66\nv_add_f32 v10, v10, v11\nv_mov_b32 v11, v10')
    unp(2)
    a('v_permlane32_swap_b32 v10, v11\nv_add_f32 v10, v10, v11\nv_rcp_f32 v10, v10')
    unp(3)
    for m in range(4):
        for k in range(3):
            d, x, w = f'v[{12 + 2 * k}:{13 + 2 * k}]', f'v[{UP(m, 2 * k)}:{UP(m, 2 * k + 1)}]', f'v[{60 + 2 * m}:{61 + 2 * m}]'
            a(f'v_pk_fma_f32 {d}, {x}, {w}, {d} op_sel_hi:[1,0,1]' if m else f'v_pk_mul_f32 {d}, {x}, {w} op_sel_hi:[1,0]')
    a('v_permlane32_swap_b32 v12, v14\nv_permlane32_swap_b32 v13, v15\nv_permlane32_swap_b32 v16, v17')
    a('v_add_f32 v12, v12, v14\nv_add_f32 v13, v13, v15\nv_add_f32 v16, v16, v17')
    a('v_mul_f32 v12, v10, v12\nv_mul_f32 v13, v10, v13\nv_mul_f32 v16, v10, v16')
    a('v_cvt_pk_bf16_f32 v12, v12, v13\nv_cvt_pk_bf16_f32 v16, v16, v16')
    a('ds_write_b32 v2, v12\nds_write_b16 v7, v16 offset:256')
    for u in range(3):
        a(f'ds_read_b128 v[{32 + 4 * u}:{35 + 4 * u}], v6 offset:{u * 128}')

    def row_pick(T):
        a(f'v_add_f32_dpp v12, v{80 + 4 * T}, v{81 + 4 * T} quad_perm:[0,1,2,3] row_mask:{1 << T:#x} bank_mask:0xf')
    for T in range(4):
        for u in range(3):
            if T == 0:
                a(f's_waitcnt lgkmcnt({2 - u})')
            smf(80 + 4 * T, 32 + 4 * u, 128 + 24 * T + 8 * u, 'v230')
    for T in range(4):
        row_pick(T)

    def arrive(reads, lab):
        a(f's_mov_b64 exec, 1\nds_add_rtn_u32 v10, v3, v4 offset:{F_ST}\ns_mov_b64 exec, -1')
        for x in reads:
            a(x)
        a(f's_waitcnt lgkmcnt({len(reads)})\nv_cmp_ne_u32 vcc, 3, v10\ns_bitcmp1_b32 vcc_lo, 0\ns_cbranch_scc1 {lab}')
    a('ds_write_b32 v232, v12')
    arrive(['ds_read2st64_b32 v[12:13], v231 offset0:0 offset1:1', 'ds_read2st64_b32 v[14:15], v231 offset0:2 offset1:3'], 'L_s2r')
    a('s_waitcnt lgkmcnt(0)\nv_pk_add_f32 v[12:13], v[12:13], v[14:15]\nv_add_f32 v12, v12, v13\nv_bfi_b32 v12, v9, v227, v12')
    a(f'buffer_store_dword v12, v5, {SWS}, {sOUTA} offen sc1')
    a('L_s2r:')
    bstamp(4)
    a('s_waitcnt lgkmcnt(0)')
    a(f's_mov_b32 {sA}, {1 << 17}\ns_cmp_eq_u32 {sBAT}, 0\ns_cselect_b32 {sA}, 2048, {sA}\ns_cmp_eq_u32 {sBAT}, 1\ns_cselect_b32 {sA}, {(1 << 17) - 2048}, {sA}')
    batch_end('L_s2b', [(sIN, sA), (sOUTA, HPB), ('v231', 1024), ('v232', 1024)])

    a('L_ffn:')
    if RHO:
        a(f's_lshr_b32 {sA}, {sH}, 1\ns_and_b32 {sA}, {sA}, 14\ns_and_b32 {sB}, {sH}, 1\ns_or_b32 {sA}, {sA}, {sB}')
        a(f's_lshl_b32 {sB}, {sH}, 3\ns_and_b32 {sB}, {sB}, 16\ns_or_b32 {sH}, {sA}, {sB}')
    a(f's_cmp_ge_u32 {sH}, 12\ns_cbranch_scc1 L_s5')
    a(f's_mov_b32 {sROLE}, 1')
    WB = lambda T, s_: 96 + 80 * T + 4 * s_
    vTG, vGC, CS, B1R, XR, D0, D1 = 'v60', 'v61', 62, 63, 64, 72, 76
    sROW = 's[30:31]'
    a('v_mul_u32_u24 v2, 3072, v5\nv_and_b32 v1, 15, v0\nv_lshl_add_u32 v2, v1, 4, v2')
    a(f's_lshl_b32 {sA}, {sH}, 2\ns_add_u32 {sA}, {sA}, {sWAVE}')
    a(f's_lshl_b32 {sD}, {sA}, 6\nv_and_b32 v8, 31, v0\nv_lshlrev_b32 v10, 1, v8\nv_lshlrev_b32 v8, 2, v8')
    a(f'buffer_load_ushort v{B1R}, v10, {SB1}, {sD} offen')
    a(f's_lshl_b32 {sOUTA}, {sA}, 7\ns_add_u32 {sOUTA}, {sOUTA}, {AP}')
    a('v_lshlrev_b32 v10, 8, v6\nv_lshl_add_u32 v10, v7, 3, v10')
    a(f's_lshl_b32 {sA}, {sWAVE}, 6\nv_add_u32 v10, {sA}, v10\nv_add_u32 v11, 49152, v10')
    for r in range(2):
        a(f's_lshl_b32 {sB}, {sH}, 8\ns_mul_i32 {sD}, {sWAVE}, {80 * 3072}\ns_add_u32 {sB}, {sB}, {sD}')
        if r:
            a(f's_add_u32 {sB}, {sB}, {320 * 3072}')
        a(f's_mul_i32 {sC}, {sWAVE}, 20480')
        dma_loop(f'L_dw1{r}', SW1, 20, 4 * 3072)
        weights_ready(f'L_wr4{r}', 4 + 8 * r)
        tr_reads([(WB(T, 10 * r + s_) + 2 * q, 'v10' if s_ < 6 else 'v11', (s_ % 6) * 8192 + q * 512 + T * 32) for s_ in range(10) for T in range(2) for q in range(2)])
        if r == 0:
            weights_ready('L_wr4x', 8)
    for k in range(4):
        a(f'v_mov_b32 v{24 + k}, 0x3f803f80')
    for s_ in range(20):
        for T, d in enumerate((D0, D1)):
            a(f'v_mfma_f32_16x16x32_bf16 v[{d}:{d + 3}], v[24:27], v[{WB(T, s_)}:{WB(T, s_) + 3}], {f"v[{d}:{d + 3}]" if s_ else 0}')
    a('s_mov_b32 s30, 0xffff0000\ns_mov_b32 s31, 0xffff0000')
    a(f'v_lshlrev_b32 v{B1R}, 16, v{B1R}')
    a(f'v_cndmask_b32 v{CS}, v{D0}, v{D1}, {sROW}')
    stamp(5)
    a(f'v_lshlrev_b32 v10, 4, v0\nv_lshrrev_b32 {vTG}, v10, {sT[0]}\nv_and_b32 {vTG}, 0xffff, {vTG}')
    a(f'v_mov_b32 {vGC}, {f2u(-2.0 * 0.7978845608028654 * 1.4426950408889634 * 0.044715)}')
    a('v_lshlrev_b32 v1, 4, v0\nv_lshlrev_b32 v7, 3, v0\ns_mov_b32 s48, -1\ns_mov_b32 s49, 0xff')
    a(f's_mul_i32 {sXO}, {sWAVE}, 320\ns_add_u32 {sA}, {sXO}, {L_ACT}\nv_add_u32 v2, {sA}, v7')
    a(f's_lshl_b32 {sIN}, {sXO}, 1\ns_add_u32 {sIN}, {sIN}, {HP}')
    a_addr('v6', 'v10')
    sp_index('v69')
    a(f'v_lshlrev_b32 v5, 2, v0\nv_add_u32 v5, {L_ACT}, v5')
    a(f's_mov_b32 {sC}, 0x3f803f80')
    batch_top('L_s4b')
    zero(D0, 8)
    assert not PAR
    E40 = 's[48:49]'
    M = ['s[8:9]', 's[10:11]', 's[12:13]', 's[14:15]', 's[28:29]', 's[32:33]', 's[34:35]', 's[40:41]']
    VA = ['v1', 'v84', 'v85', 'v86']
    a(f'buffer_load_dwordx2 v[{XR}:{XR + 1}], v7, {SX}, {sXO} offen')
    for k in range(1, 4):
        a(f'v_add_u32 {VA[k]}, {5120 * k}, v1')
    for m in M:
        a(f's_mov_b64 {m}, {E40}')
    a('s_waitcnt vmcnt(0)')
    a(f'v_lshlrev_b32 v{XR + 2}, 16, v{XR + 1}\nv_and_b32 v{XR + 3}, {sHI}, v{XR + 1}\nv_and_b32 v{XR + 1}, {sHI}, v{XR}\nv_lshlrev_b32 v{XR}, 16, v{XR}')
    wait_flush('L_s4w', [])

    def again(lab):
        a(f's_cmp_eq_u32 {sBAT}, 3\ns_cbranch_scc1 {lab}\ns_sleep {SLP}\ns_branch {lab}')

    def acc(d, x, y):
        a(f'v_pk_add_f32 v[{d}:{d + 1}], v[{x}:{x + 1}], v[{y}:{y + 1}]\nv_pk_add_f32 v[{d + 2}:{d + 3}], v[{x + 2}:{x + 3}], v[{y + 2}:{y + 3}]')
    a('L_hg:')
    for j in range(8):
        a(f's_wqm_b64 exec, {M[j]}')
        a(f'buffer_load_dwordx4 v[{24 + 4 * j}:{27 + 4 * j}], {VA[j // 2]}, {SWS}, {sIN} offen offset:{(j % 2) * 2560} sc1')
    a(f's_mov_b64 exec, {E40}\ns_waitcnt vmcnt(0)')
    for k in range(4):
        for j in range(8):
            a(f'v_bitop3_b32 v{10 + j}, v{10 + j}, v{24 + 4 * j + k}, {sT[k]} bitop3:0xf6' if k else f'v_xor_b32 v{10 + j}, {sT[0]}, v{24 + 4 * j}')
    for j in range(8):
        a(f'v_cmp_ne_u32_sdwa {M[j]}, v{10 + j}, v{D0} src0_sel:BYTE_0 src1_sel:DWORD')
    a(f's_mov_b32 {sA}, 0')
    for j in range(8):
        a(f's_cmp_lg_u64 {M[j]}, 0\ns_addc_u32 {sA}, {sA}, {sA}')
    a(f's_bcnt1_i32_b32 {sB}, {sA}\ns_cbranch_scc0 L_hall')
    a(f's_sub_u32 {sSPIN}, {sSPIN}, 1\ns_cbranch_scc1 L_hall')
    a(f's_cmp_le_u32 {sB}, {GF}\ns_cbranch_scc1 L_hone')
    again('L_hg')
    a('L_hall:')
    bstamp(3)
    for d, x, y in ((24, 24, 28), (32, 32, 36), (40, 40, 44), (48, 48, 52), (20, 24, 32), (56, 40, 48)):
        acc(d, x, y)
    a('s_branch L_hsum')
    SL, MS, SO = [56, 88, 92, 80][:GF], ['s[36:37]', 's[38:39]', 's[42:43]', 's[50:51]'], ['s76', 's77', 's78', 's82']
    a('L_hone:')
    for n, r in enumerate(SL):
        a(f's_cmp_lg_u32 {sA}, 0\ns_cselect_b64 {MS[n]}, {E40}, 0\ns_ff1_i32_b32 {sB}, {sA}\ns_bitset0_b32 {sA}, {sB}')
        a(f's_mul_i32 {sB}, {sB}, -2560\ns_add_u32 {sB}, {sB}, {sIN}\ns_add_u32 {SO[n]}, {sB}, {7 * 2560}')
        for k in range(4 if n else 0):
            a(f'v_and_b32 v{r + k}, {sT[k]}, v9')

    def slots():
        for n, r in enumerate(SL):
            a(f's_wqm_b64 exec, {MS[n]}\nbuffer_load_dwordx4 v[{r}:{r + 3}], v1, {SWS}, {SO[n]} offen sc1')
    slots()
    a(f's_mov_b64 exec, {E40}')
    zero(20, 4)
    for j in range(8):
        a(f's_cmp_eq_u64 {M[j]}, 0\ns_cselect_b64 exec, {E40}, 0')
        acc(20, 20, 24 + 4 * j)
    a('s_branch L_honw')
    a('L_hons:')
    a(f's_sub_u32 {sSPIN}, {sSPIN}, 1\ns_cbranch_scc1 L_hsum')
    a(f's_cmp_eq_u32 {sBAT}, 3\ns_cbranch_scc1 L_honl\ns_sleep {SLP}')
    a('L_honl:')
    slots()
    a('L_honw:')
    a(f's_mov_b64 exec, {E40}\ns_waitcnt vmcnt(0)')
    for k in range(4):
        for n, r in enumerate(SL):
            a(f'v_bitop3_b32 v{10 + n}, v{10 + n}, v{r + k}, {sT[k]} bitop3:0xf6' if k else f'v_xor_b32 v{10 + n}, {sT[0]}, v{r}')
    for n in range(GF):
        a(f'v_cmp_ne_u32_sdwa {MS[n]}, v{10 + n}, v{D0} src0_sel:BYTE_0 src1_sel:DWORD')
    if GF > 1:
        acc(24, SL[1], SL[2] if GF > 2 else D0)
    if GF > 3:
        acc(24, 24, SL[3])
    a(f's_or_b64 vcc, {MS[0]}, {MS[1 % GF]}')
    for n in range(2, GF):
        a(f's_or_b64 vcc, vcc, {MS[n]}')
    a('s_cbranch_scc1 L_hons')
    bstamp(3)
    if GF > 1:
        acc(20, 20, 24)
    a('L_hsum:')
    acc(20, 20, 56)
    for k in range(4):
        a(f'v_cvt_pk_bf16_f32 v{20 + k}, 0, v{20 + k}')
    acc(20, 20, XR)
    a('v_cvt_pk_bf16_f32 v20, v20, v21\nv_cvt_pk_bf16_f32 v21, v22, v23')
    a('ds_write_b64 v2, v[20:21]')
    a(f's_mov_b32 {sSPIN}, {SPIN}')
    lds_inc('v3', F_ST, 'v4')
    lds_wait('L_s4s', 'v10', 'v3', F_ST, 4, 0)
    bstamp(1)
    for i in range(5):
        a(f'ds_read_b32 v{XR + i}, v5 offset:{i * 256}')
    AF = lambda u: 24 + 4 * u if u < 9 else 80
    for u in range(10):
        a(f'ds_read_b128 v[{AF(u)}:{AF(u) + 3}], v6 offset:{u * 128}')
    sl = []
    for i in range(5):
        sl.append(f'v_dot2_f32_bf16 v20, v{XR + i}, {sC}, {"v20" if i else 0}')
        sl.append(f'v_dot2_f32_bf16 v22, v{XR + i}, v{XR + i}, {"v22" if i else 0}')
    sl += [None, 'v_permlane32_swap_b32 v20, v22', 'v_add_f32 v20, v20, v22', 'v_mov_b32 v22, v20', None]
    sl += ['v_permlane16_swap_b32 v20, v22', 'v_add_f32 v20, v20, v22', None]
    for m in ('quad_perm:[1,0,3,2]', 'quad_perm:[2,3,0,1]', 'row_half_mirror', 'row_ror:8'):
        sl += [f'v_add_f32_dpp v20, v20, v20 {m} {DPPM}', None]
    sl[-1:] = [f'v_mul_f32 v20, {f2u(1 / 640)}, v20', 'v_mov_b32 v22, v20', None, 'v_permlane32_swap_b32 v20, v22']
    sl += ['v_fma_f32 v22, -v20, v20, v22', 'v_cvt_pk_bf16_f32 v20, 0, v20', 'v_max_f32 v22, 0, v22', 'v_cvt_pk_bf16_f32 v22, 0, v22']
    sl += [f'v_add_f32 v22, {f2u(1e-5)}, v22', 'v_cvt_pk_bf16_f32 v22, 0, v22', 'v_sqrt_f32 v22, v22', None]
    sl += ['v_cvt_pk_bf16_f32 v22, 0, v22', 'v_rcp_f32 v22, v22']

    def fill(n):
        while n and sl:
            x = sl.pop(0)
            if x is None:
                return
            a(x)
            n -= 1
        if sl and sl[0] is None:
            sl.pop(0)
    a('s_waitcnt lgkmcnt(10)')
    fill(4)
    for u in range(10):
        a(f's_waitcnt lgkmcnt({9 - u})')
        for T, d in enumerate((D0, D1)):
            smf(d, AF(u), WB(T, 2 * u), 'v69')
            fill(2)
    while sl:
        fill(9)
    c2 = -2.0 * 0.7978845608028654 * 1.4426950408889634
    a(f's_add_u32 {sA}, {sOUTA}, {32 * APB}\ns_mov_b32 exec_hi, 0\ns_cmp_lg_u32 {sBAT}, 3')
    a(f'v_add_f32 v10, v{D0}, v{D0 + 1}\nv_add_f32 v11, v{D1}, v{D1 + 1}\nv_cndmask_b32 v10, v10, v11, {sROW}')
    a(f'v_fma_f32 v10, -v20, v{CS}, v10\nv_mul_f32 v10, v22, v10')
    a(f'v_cvt_pk_bf16_f32 v10, 0, v10\nv_add_f32 v10, v10, v{B1R}\nv_cvt_pk_bf16_f32 v10, 0, v10')
    a(f'v_mul_f32 v11, v10, v10\nv_fmaak_f32 v11, {vGC}, v11, {f2u(c2)}\nv_mul_f32 v11, v11, v10')
    a('v_exp_f32 v11, v11\nv_add_f32 v11, 1.0, v11\nv_rcp_f32 v11, v11\nv_mul_f32 v10, v10, v11')
    a(f'v_cvt_pk_bf16_f32 v10, 0, v10\nv_or_b32 v10, {vTG}, v10')
    if W4S & 2:
        a('s_cbranch_scc1 L_s4q')
    if NOA or not W4S & 2:
        a('s_branch L_s4p' if NOA else 's_cbranch_scc1 L_s4p')
    a(f'buffer_store_dword v10, v8, {SWS}, {sA} offen {AM}')
    a('L_s4p:')
    a(f'buffer_store_dword v10, v8, {SWS}, {sOUTA} offen sc1')
    a('L_s4r:')
    bstamp(4)
    batch_end('L_s4b', [(sIN, copy_off(RC2, 4 * HPB, HPB)), (sOUTA, APB), (sXO, 1280), ('v2', 1536), ('v5', 1536), ('v6', 1536)])

    a('L_s5:')
    a(f's_mov_b32 {sROLE}, 2\ns_sub_u32 {sA}, {sH}, 12')
    a(f's_lshl_b32 {sXO}, {sA}, 6\ns_lshl_b32 {sIN}, {sA}, 7\ns_add_u32 {sIN}, {sIN}, {HP}')
    a(f's_mul_i32 {sACT}, {sWAVE}, 1536\ns_add_u32 {sACT}, {sACT}, {AP}')
    a('v_lshrrev_b32 v2, 2, v0\nv_mul_u32_u24 v2, 1280, v2\nv_lshl_add_u32 v2, v7, 4, v2')
    a(f's_mul_i32 {sB}, {sWAVE}, {384 * 1280}\ns_add_u32 {sB}, {sB}, {sXO}')
    a('v_lshlrev_b32 v10, 6, v6\nv_lshl_add_u32 v10, v7, 3, v10')
    a(f'v_add_u32 v12, {sC}, v10')
    dma_loop('L_dw2', SW2, 24, 16 * 1280, W2P)
    a('v_lshrrev_b32 v1, 3, v0\nv_mul_u32_u24 v1, 2560, v1\nv_and_b32 v10, 7, v0\nv_lshl_add_u32 v1, v10, 4, v1')
    a('v_lshlrev_b32 v7, 3, v10\nv_lshl_add_u32 v7, v5, 1, v7')
    a(f'buffer_load_dword v67, v63, {SB2}, {sXO} offen')
    a('v_bfe_u32 v2, v0, 1, 3\nv_min_u32 v2, 5, v2\nv_lshl_add_u32 v2, v2, 2, v5\nv_and_b32 v10, 1, v0\nv_lshl_add_u32 v2, v2, 1, v10\nv_lshlrev_b32 v2, 5, v2')
    sp_index('v60')
    a(f's_lshl_b32 {sA}, {sWAVE}, 7\ns_add_u32 {sA}, {sA}, {L_ACT}')
    a(f'v_add_u32 v5, {sA}, v63')
    a(f'v_lshlrev_b32 v6, 1, v63\nv_add_u32 v6, {L_ACT}, v6')
    a(f'v_lshlrev_b32 v62, 1, v7\nv_add_u32 v62, {L_ACT + 4096}, v62\nv_add_u32 v61, 4096, v6')
    a(f'v_mov_b32 v8, 0xffff\ns_mov_b32 {sC}, 0x07060302')
    a('s_waitcnt vmcnt(0)')
    tr_reads([(128 + 16 * (s_ >> 1) + 8 * T + 4 * (s_ & 1) + 2 * q, 'v12', s_ * 2048 + q * 128 + T * 32) for s_ in range(12) for T in range(2) for q in range(2)])
    a(f'v_lshlrev_b32 v66, 16, v67\nv_and_b32 v67, {sHI}, v67')
    stamp(5)

    def red_rows(b):
        a(f'v_permlane16_swap_b32 v{b}, v{b + 1}\nv_permlane16_swap_b32 v{b + 2}, v{b + 3}')
        a(f'v_add_f32 v{b}, v{b}, v{b + 1}\nv_add_f32 v{b + 2}, v{b + 2}, v{b + 3}')
        a(f'v_permlane32_swap_b32 v{b}, v{b + 2}')
        a(f'v_add_f32 v{b}, v{b}, v{b + 2}')
        a(f'v_add_f32_dpp v{b}, v{b}, v{b} row_ror:8 {DPPM}')

    batch_top('L_s5b')
    zero(12, 8)
    a(f's_cmp_eq_u32 {sBAT}, 3\ns_cselect_b32 {sOUTA}, {32 * APB if LOC else 0}, 0\ns_add_u32 {sOUTA}, {sOUTA}, {sACT}')
    wait_flush('L_s5w', [('v1', 2, 32 * HPB)])
    a(f's_cmp_lg_u32 {sWAVE}, 0\ns_cbranch_scc1 L_h5w')
    a(f'buffer_load_ushort v64, v7, {SX}, {sXO} offen')
    if FG:
        wait_heads('L_f5')
        a(f's_cmp_lg_u32 {sBAT}, 3\ns_cbranch_scc1 L_h5')
        lds_inc('v3', F_H, 'v4')
        a('v_mov_b32 v4, 0')
    if hsl:
        a(f's_cmp_lg_u32 {sBAT}, 0\ns_cbranch_scc1 L_h5')
        for i in range(hsl):
            a('s_sleep 127')
    a('L_h5:')
    a(f'buffer_load_dwordx4 v[20:23], v1, {SWS}, {sIN} offen sc1 {pnt}')
    a('s_waitcnt vmcnt(0)')
    check(20, 4, 'v10', 'L_h5', 'L_h5d')
    bstamp(3)
    red_rows(20)
    a('v_lshlrev_b32 v64, 16, v64\nv_cvt_pk_bf16_f32 v20, 0, v20\nv_add_f32 v64, v64, v20\nv_cvt_pk_bf16_f32 v64, 0, v64')
    a('ds_write_b32 v62, v64')
    lds_inc('v3', F_H, 'v4')
    if FG:
        a(f'v_mov_b32 v4, 1\ns_cmp_lg_u32 {sBAT}, 3\ns_cbranch_scc1 L_h5w')
        a(f's_sleep {max(YF - YW, 0)}\ns_branch L_y5')
    lds_wait('L_h5w', 'v10', 'v3', F_H, 1, 1 if FG else FSLP)
    a('ds_read_b64 v[64:65], v61')
    a(f's_sleep {YF if FG else YS3}')
    if mk & 4:
        gather('L_y5', [(f'buffer_load_dwordx4 v[{32 + 4 * i}:{35 + 4 * i}], v2, {SWS}, {sOUTA} offen offset:{16 * i} sc1', range(32 + 4 * i, 36 + 4 * i)) for i in range(2)], [sT[0], sT[2]], 'v8', PL5, (sOUTA, sACT))
        for k in range(4):
            a(f'v_perm_b32 v{28 + k}, v{33 + 2 * k}, v{32 + 2 * k}, {sC}')
    else:
        a('L_y5:')
        a(f'buffer_load_dwordx4 v[20:23], v2, {SWS}, {sACT} offen sc1 {pnt}')
        a(f'buffer_load_dwordx4 v[24:27], v2, {SWS}, {sACT} offen offset:16 sc1 {pnt}')
        a('s_waitcnt vmcnt(0)')
        for k in range(4):
            a(f'v_perm_b32 v{28 + k}, v{21 + 2 * k}, v{20 + 2 * k}, {sC}')
        check(20, 8, 'v10', 'L_y5', 'L_y5d', tags=[sT[0], sT[2]], mask='v8')
    bstamp(4)

    mv = [f'v_mov_b32_dpp v{68 + 4 * u + k}, v{28 + k} row_shl:{2 * u} {DPPM}' for u in range(1, 6) for k in range(4)]
    for u in range(6):
        for T in range(2):
            smf(12 + 4 * T, 68 + 4 * u if u else 28, 128 + 16 * u + 8 * T, 'v60')
            for k in range(4 if (u, T) == (0, 0) else 2):
                if mv:
                    a(mv.pop(0))
    a('s_mov_b64 exec, 0xffff')
    a('v_add_f32 v12, v12, v13\nv_add_f32 v16, v16, v17')
    a('ds_write2_b32 v5, v12, v16 offset0:0 offset1:16')
    arrive(['ds_read2_b64 v[20:23], v6 offset0:0 offset1:16', 'ds_read2_b64 v[24:27], v6 offset0:32 offset1:48'], 'L_s5e')
    a('s_mov_b64 exec, 0xffff')
    a('s_waitcnt lgkmcnt(1)\nv_pk_add_f32 v[20:21], v[20:21], v[22:23]')
    a('s_waitcnt lgkmcnt(0)\nv_pk_add_f32 v[24:25], v[24:25], v[26:27]\nv_pk_add_f32 v[20:21], v[20:21], v[24:25]')
    a('v_cvt_pk_bf16_f32 v20, 0, v20\nv_cvt_pk_bf16_f32 v21, 0, v21\nv_pk_add_f32 v[20:21], v[20:21], v[66:67]')
    a('v_cvt_pk_bf16_f32 v20, 0, v20\nv_cvt_pk_bf16_f32 v21, 0, v21\nv_pk_add_f32 v[20:21], v[20:21], v[64:65]')
    a('v_cvt_pk_bf16_f32 v20, v20, v21')
    a(f'buffer_store_dword v20, v63, {SOUT}, {sXO} offen {OUM}')
    if dbt:
        a(f's_cmp_lg_u32 {sBAT}, 3\ns_cbranch_scc1 L_s5e')
        dstamp(10)
        a('s_mov_b64 exec, 1\nv_mov_b32 v254, s62\nv_sub_u32 v254, 0, v254')
        a(f'buffer_atomic_umax v254, v255, {SDBG}, 0 offen offset:16 sc1')
    a('L_s5e:')
    a('s_waitcnt lgkmcnt(0)')
    batch_end('L_s5b', [(sIN, copy_off(RC2, 4 * HPB, HPB)), (sACT, copy_off(RC4, 4 * APB, APB)), (sXO, 1280), ('v5', 512), ('v6', 512), ('v61', 128), ('v62', 128)])

    a('L_idle:')
    a(f's_mov_b32 {sROLE}, 3')
    a(f's_cmp_lg_u32 {sWAVE}, 3\ns_cbranch_scc1 L_fin')
    a('L_pre:')
    if exp & 4:
        a('s_branch L_fin')
    if exp & 56:
        lim = 0 if exp & 8 else 1 if exp & 16 else 2
        a(f's_cmp_ge_u32 {sROLE}, {lim}\ns_cselect_b32 {sROLE}, 3, {sROLE}')
    a(f's_mov_b32 {sBAT}, 0\ns_mov_b32 {sPH}, 1')
    lds_wait('L_pre1', 'v10', 'v3', F_FL + 4, 4, 16)
    a(f's_cmp_lg_u32 {sWAVE}, 3\ns_cbranch_scc1 L_pre4')
    a('L_pre3:')
    s1_setup(sPH)
    a('v_mov_b32 v56, 3')
    a('s_branch L_s1')
    a('L_pre4:')
    a(f's_bitcmp1_b32 {early}, {sROLE}\ns_cbranch_scc1 L_disp')
    a('L_pre2:')
    a(f'v_mov_b32 v11, {L_FLAG}\ns_mov_b32 {sPH}, 2')
    lds_wait('L_pre5', 'v10', 'v11', F_FL + 8, 4, 16)
    a(f's_cmp_eq_u32 {sWAVE}, 3\ns_cbranch_scc1 L_pre3')
    a('L_disp:')
    for k, lab in enumerate(('L_s2bc', 'L_s4bc', 'L_s5bc')):
        a(f's_cmp_eq_u32 {sROLE}, {k}\ns_cbranch_scc1 {lab}')
    a('s_branch L_fin')

    Q, ACC, AD, S, P, TM, RING, EXT0, EXT1, AD2 = 8, 20, 44, 52, 56, 64, 68, 116, 164, 212
    vMC, vL = 'v6', 'v7'
    s = [f'v{S + t}' for t in range(4)]
    t0, t1, t2, t3 = [f'v{TM + i}' for i in range(4)]

    def ld_tile(t, srd, soff, base=RING):
        for i in range(3):
            r = base + t * 12 + i * 4
            a(f'buffer_load_dwordx4 v[{r}:{r + 3}], v{1 + t // 2}, {srd}, {soff} offen offset:{(t % 2) * 3072 + i * 128} {pol}')

    def reset_state():
        for i in range(24):
            a(f'v_mov_b32 v{ACC + i}, 0')
        a(f'v_mov_b32 {vL}, 0\nv_mov_b32 {vMC}, 0xff7fffff')

    def load_q(va='v5'):
        for i in range(3):
            a(f'ds_read_b128 v[{Q + 4 * i}:{Q + 4 * i + 3}], {va} offset:{i * 128}')

    def kdot(t, base, ad):
        for k in range(12):
            acc = f'v{ad + 2 * t + k % 2}'
            a(f'v_dot2_f32_bf16 {acc}, v{base + t * 12 + k}, v{Q + k}, {acc if k >= 2 else 0}')

    def vdot(t, base):
        for k in range(12):
            for hl in range(2):
                a(f'v_dot2c_f32_bf16 v{ACC + (k // 4) * 8 + (k % 4) * 2 + hl}, v{base + t * 12 + k}, v{P + 2 * t + hl}')

    def softmax4(ad):
        score4(ad, t0, t1)
        weigh4(t0, t1)

    def score4(ad, d0, d1):
        for t in range(4):
            a(f'v_add_f32 {s[t]}, v{ad + 2 * t}, v{ad + 2 * t + 1}')
        for mode in ('quad_perm:[1,0,3,2]', 'quad_perm:[2,3,0,1]', 'row_half_mirror'):
            for t in range(4):
                a(f'v_add_f32_dpp {s[t]}, {s[t]}, {s[t]} {mode} {DPPM}')
        a(f'v_cvt_pk_bf16_f32 {d0}, {s[0]}, {s[1]}\nv_cvt_pk_bf16_f32 {d1}, {s[2]}, {s[3]}')
        unpack4(d0, d1)
        for t in range(4):
            a(f'v_mul_f32 {s[t]}, {f2u(192 ** -0.5)}, {s[t]}')
        a(f'v_cvt_pk_bf16_f32 {d0}, {s[0]}, {s[1]}\nv_cvt_pk_bf16_f32 {d1}, {s[2]}, {s[3]}')

    def unpack4(d0, d1):
        a(f'v_lshlrev_b32 {s[0]}, 16, {d0}\nv_and_b32 {s[1]}, {sHI}, {d0}')
        a(f'v_lshlrev_b32 {s[2]}, 16, {d1}\nv_and_b32 {s[3]}, {sHI}, {d1}')

    def weigh4(d0, d1):
        unpack4(d0, d1)
        a(f'v_max3_f32 {t0}, {s[0]}, {s[1]}, {s[2]}\nv_max_f32 {t0}, {t0}, {s[3]}')
        a(f'v_mul_f32 {t0}, {sLOG2E}, {t0}\nv_max_f32 {t0}, {t0}, {vMC}')
        a(f'v_sub_f32 {t2}, {vMC}, {t0}\nv_mov_b32 {vMC}, {t0}')
        for t in range(4):
            a(f'v_fma_f32 {s[t]}, {s[t]}, {sLOG2E}, -{t0}')
        a(f'v_exp_f32 {t2}, {t2}')
        for t in range(4):
            a(f'v_exp_f32 {s[t]}, {s[t]}')
        for i in range(12):
            a(f'v_pk_mul_f32 v[{ACC + 2 * i}:{ACC + 2 * i + 1}], v[{ACC + 2 * i}:{ACC + 2 * i + 1}], v[{TM + 2}:{TM + 3}] op_sel_hi:[1,0]')
        for t in range(4):
            a(f'v_cvt_pk_bf16_f32 v{P + 2 * t}, {s[t]}, 0')
        for t in range(4):
            a(f'v_lshlrev_b32 v{P + 2 * t + 1}, 16, v{P + 2 * t}')
        a(f'v_fma_f32 {vL}, {vL}, {t2}, v{P + 1}')
        a(f'v_add_f32 {t0}, v{P + 3}, v{P + 5}\nv_add_f32 {vL}, {vL}, v{P + 7}\nv_add_f32 {vL}, {vL}, {t0}')

    def ld_one(slot, srd, soff):
        for i in range(3):
            r = RING + slot * 12 + i * 4
            a(f'buffer_load_dwordx4 v[{r}:{r + 3}], v1, {srd}, {soff} offen offset:{i * 128} {pol}')

    def claim(v, off):
        a(f'v_mov_b32 {v}, 1\ns_mov_b64 exec, 1')
        a(f'buffer_atomic_add {v}, v3, {SWS}, 0 offen offset:{off} sc0 sc1')
        a('s_mov_b64 exec, -1')

    def softmax1(t):
        x = s[0]
        a(f'v_add_f32 {x}, v{AD + 2 * t}, v{AD + 2 * t + 1}')
        for mode in ('quad_perm:[1,0,3,2]', 'quad_perm:[2,3,0,1]', 'row_half_mirror'):
            a(f'v_add_f32_dpp {x}, {x}, {x} {mode} {DPPM}')
        a(f'v_cvt_pk_bf16_f32 {x}, 0, {x}\nv_mul_f32 {x}, {f2u(192 ** -0.5)}, {x}\nv_cvt_pk_bf16_f32 {x}, 0, {x}')
        a(f'v_mul_f32 {t0}, {sLOG2E}, {x}\nv_max_f32 {t0}, {t0}, {vMC}')
        a(f'v_sub_f32 {t2}, {vMC}, {t0}\nv_mov_b32 {vMC}, {t0}')
        a(f'v_fma_f32 {x}, {x}, {sLOG2E}, -{t0}')
        a(f'v_exp_f32 {t2}, {t2}\nv_exp_f32 {x}, {x}')
        for i in range(12):
            a(f'v_pk_mul_f32 v[{ACC + 2 * i}:{ACC + 2 * i + 1}], v[{ACC + 2 * i}:{ACC + 2 * i + 1}], v[{TM + 2}:{TM + 3}] op_sel_hi:[1,0]')
        p = P + 2 * (t + 1)
        a(f'v_cvt_pk_bf16_f32 v{p}, {x}, 0\nv_cvt_pk_bf16_f32 v{p + 1}, 0, {x}')
        a(f'v_fma_f32 {vL}, {vL}, {t2}, v{p + 1}')

    assert SMALL % 4 == 0
    NBIG = 1024 - 8 - SMALL // 4
    assert 16 <= NSTAT and NSTAT * 32 <= NBIG
    vCA, vCB, vFL, vB, vT, vE, vE2, vONE = 'v220', 'v221', 'v222', 'v223', 'v224', 'v225', 'v226', 'v227'
    sTA, sTB, sLD, sROT = 's76', 's77', 's78', 's79'

    pK, pV, sKM, sSL, sLO, sHF, sSH = 's[24:25]', 's[26:27]', 's28', 's29', 's30', 's31', 's32'
    sQB, sS0, sS1 = 's33', 's34', 's35'
    assert not PH or (RH % 2 == 0 and all(r % 2 == 0 for r in RB) and P16 and PS and EN and not PM and NSTAT >= 24 + 2 * PH3 and PH3 <= 4)

    def item_addr(dst, sid, snb, ph=False):
        a(f's_lshr_b32 {snb}, {sid}, 8')
        if ph:
            nstamp[0] += 1
            n = nstamp[0]
            a(f's_and_b32 {sid}, {sid}, 255\ns_cmp_lt_u32 {snb}, 2\ns_cselect_b32 {sLO}, {0 if PHP else 32}, 0\ns_cselect_b32 {sHF}, {8 if PHP else 7}, 8')
            a(f's_cselect_b32 {sSH}, 4, 5\ns_cselect_b32 {sSL}, 0, 32\ns_lshl_b32 {sHF}, {sHF}, 4')
            a(f's_cmp_eq_u32 {snb}, 3\ns_cbranch_scc0 L_ph{n}')
            if PH3:
                a(f's_mov_b32 {sHF}, {32 * PH3}\ns_mov_b32 {sSL}, 48\ns_cmp_lt_u32 {sid}, {64 * PH3}\ns_cbranch_scc1 L_ph{n}')
            a(f's_mov_b32 {sKM}, 0\ns_mov_b64 s[8:9], {pK}\ns_mov_b64 s[12:13], {pV}\ns_branch L_phd{n}')
            a(f'L_ph{n}:\ns_sub_u32 {sid}, {sid}, {sLO}\ns_cmp_ge_u32 {sid}, {sHF}')
            a(f's_cselect_b64 s[8:9], {pV}, {pK}\ns_cselect_b32 {sKM}, 2, 1\ns_cselect_b32 {sHF}, {sHF}, 0')
            a(f's_sub_u32 {sid}, {sid}, {sHF}\ns_add_u32 s12, s8, {ITEM}\ns_addc_u32 s13, s9, 0')
            a(f's_lshr_b32 {sHF}, {sid}, {sSH}\ns_lshl2_add_u32 {sSL}, {sHF}, {sSL}\ns_and_b32 {sHF}, {sid}, 3\ns_add_u32 {sSL}, {sSL}, {sHF}')
            a(f's_lshl1_add_u32 {sid}, {sid}, {sLO}\nL_phd{n}:')
        if PM:
            nstamp[0] += 1
            a(f's_cmp_eq_u32 {snb}, 3\ns_cbranch_scc1 L_pm{nstamp[0]}\ns_and_b32 {dst}, {sid}, 3')
            if PM == 1:
                a(f's_bfe_u32 {sB}, {sid}, 0x60002\ns_mul_i32 {sB}, {sB}, 65\ns_lshr_b32 {sid}, {snb}, 1\ns_add_u32 {sid}, {sid}, 2')
                a(f's_lshr_b32 {sB}, {sB}, {sid}\ns_lshl_b32 {sid}, {sB}, 2\ns_or_b32 {sid}, {sid}, {dst}')
            else:
                a(f's_mul_i32 {sB}, {sH}, {PMH}\ns_add_u32 {sB}, {sB}, {PMM}\ns_sub_u32 {sid}, {sid}, {dst}')
                a(f's_mul_i32 {sid}, {sid}, {sB}\ns_add_u32 {sid}, {sid}, {dst}')
            a(f'L_pm{nstamp[0]}:')
        if PHP and not ph:
            a(f's_lshl_b32 {sid}, {sid}, 1')
        a(f's_add_u32 {sid}, {sid}, {sROT}')
        if any(RB):
            a(f's_lshl_b32 {sB}, {snb}, 3\ns_lshr_b32 {sB}, {sum(r << 8 * k for k, r in enumerate(RB)):#x}, {sB}\ns_add_u32 {sid}, {sid}, {sB}')
        a(f's_and_b32 {sid}, {sid}, 255\ns_mul_i32 {sid}, {sid}, {ITEM}\ns_mul_i32 {sB}, {snb}, {BSTR}')
        a(f's_add_u32 {dst}, {sHB}, {sid}\ns_add_u32 {dst}, {dst}, {sB}')


    def draw(off, n=vONE):
        a(f's_mov_b64 exec, 1\nds_add_rtn_u32 {vT}, {vB}, {n} offset:{off}\ns_mov_b64 exec, -1')

    def publish(v, add):
        a(f's_mov_b64 exec, 1\nv_lshlrev_b32 {v}, 2, {v}\nv_add_u32 {v}, {add}, {v}\nds_write_b32 {vE}, {v}\ns_mov_b64 exec, -1')

    spins = []

    def resolve(lab, st):
        a(f's_cmp_eq_u32 {sA}, 0\ns_cbranch_scc1 {lab}')
        a(f'{lab}r:')
        a(f's_and_b32 {sB}, {st}, 3\ns_add_u32 {sA}, {sA}, {sB}\ns_sub_u32 {sA}, {sA}, 1')
        spins.append(lab)

    a('L_stream:')
    if EN:
        kload('V', 'DBG', 'WS')
        a('s_memrealtime s[62:63]')
        srd('K')
    a('v_lshrrev_b32 v1, 3, v0\nv_mul_u32_u24 v1, 384, v1\nv_and_b32 v5, 7, v0\nv_lshlrev_b32 v5, 4, v5\nv_add_u32 v1, v1, v5')
    a(f's_sub_u32 {sA}, {sWAVE}, 4')
    a(f's_mul_i32 {sHB}, {sH}, {PROB}')
    a(f's_lshl_b32 {sC}, {sJ}, 2\ns_add_u32 {sC}, {sC}, {sA}\ns_mul_i32 {sROT}, {sH}, {RH}')
    a(f's_lshr_b32 {sD}, {sJ}, 2\ns_mul_i32 {sD}, {sD}, 240\ns_add_u32 {sD}, {sD}, {sC}\ns_add_u32 {sST}, {sD}, 16')
    item_addr(sNEXT, sD, sCB)

    K0B = lambda t: (ACC if t < 2 else 228 - 24) if P16 else EXT0

    def rest():
        a('v_add_u32 v2, 6144, v1\nv_mov_b32 v4, 0')
        a(f's_add_u32 {sTB}, {sST}, 16')
        item_addr(sCUR, sST, sCB)
        a(f's_mov_b32 {sSB}, {sC}')
        a(f's_mul_i32 {sC}, {sH}, {CTS}\ns_add_u32 {sC}, {sC}, {CT}\nv_mov_b32 v3, {sC}')
        a(f's_mul_i32 {sB}, {sCB}, 384\ns_add_u32 {sB}, {sB}, {L_Q}')
        a(f'v_add_u32 v5, {sB}, v5\nv_mov_b32 {vFL}, {L_FLAG + 4}\nv_mov_b32 {vB}, {L_FLAG}\nv_mov_b32 {vONE}, 1')
        a(f's_mul_i32 {sPB}, {sA}, {4 * PARTP}\ns_add_u32 {sPB}, {sPB}, {L_PART + PARTP}')
        a(f's_mov_b32 {sMODE}, 2')
    if EN:
        a(f's_cmp_lg_u32 {sWAVE}, 7\ns_cbranch_scc1 L_noi')
        a(f's_cmp_lg_u32 s2, {NWG}\ns_cbranch_scc1 L_non')
        srd('DBG')
        nonce_store(sB, 'v8', 'v9')
        a('L_non:')
        lds_init(12, sB, sD)
        a('L_noi:')
        if PT:
            a(f's_cmp_lg_u32 {sWAVE}, 6\ns_cbranch_scc1 L_nopt')
            srd('WS')
            a(f'v_lshrrev_b32 v8, 2, v0\nv_lshlrev_b32 v8, 17, v8\nv_and_b32 v9, 3, v0\nv_lshl_add_u32 v8, v9, 7, v8')
            a(f's_lshl_b32 {sB}, s2, 9\ns_add_u32 {sB}, {sB}, {OP + (1 << 17)}\nv_add_u32 v8, {sB}, v8\nv_lshlrev_b32 v9, 7, v0')
            for lo, mul, base in ((12, 768, QP), (18, 384, HP), (21, 128, AP)):
                a(f's_mul_i32 {sB}, s2, {mul}\ns_add_u32 {sB}, {sB}, {(base - lo * 128) & 0xffffffff}\nv_add_u32 v10, {sB}, v9')
                a(f'v_cmp_le_u32 vcc, {lo}, v0\nv_cndmask_b32 v8, v8, v10, vcc')
            a(f's_waitcnt lgkmcnt(0)\ns_mov_b64 exec, {(1 << 22) - 1 if PT == 1 else PT:#x}')
            a(f'buffer_load_dword v9, v8, {SWS}, 0 offen {PTM}')
            a('s_mov_b64 exec, -1\nL_nopt:')
    else:
        rest()
    a('s_waitcnt lgkmcnt(0)')
    if FS:
        stamp(3)
    pf = [(t, SK, sNEXT, K0B(t)) for t in range(4)]
    grp = [(SV, sNEXT, EXT1), (SK, sCUR, RING)]
    for srd_, so, base in (grp[::-1] if PO == 1 else grp) + ([(SV, sCUR, EXT0)] if P16 else []):
        pf += [(t, srd_, so, base) for t in range(4)]
    if PO == 2:
        pf.insert(1, pf.pop(4))
    for n, (t, srd_, so, base) in enumerate(pf):
        if n == PRE:
            a('s_barrier')
            if PSL:
                a(f's_sleep {PSL}')
        if EN and n == 1:
            srd('V')
            if PHP:
                a(f's_mov_b64 {pK}, s[8:9]\ns_mov_b64 {pV}, s[12:13]\ns_add_u32 s12, s8, {ITEM}\ns_addc_u32 s13, s9, 0')
            if KVX:
                a(f's_mov_b64 s[100:101], s[12:13]\ns_add_u32 s12, s8, {2 * BSTR}\ns_addc_u32 s13, s9, 0\ns_mov_b32 s14, {2 * BSTR}')
        if EN and n == 2:
            rest()
            srd('WS')
            consts()
        if n == 4 and not P16:
            reset_state()
        if 3 * n > PWIN:
            a(f's_waitcnt vmcnt({PWIN})')
            if FS and n == 2:
                stamp(1)
        if FS and n == 0:
            stamp(4)
        ld_tile(t, srd_, so, base)
    if P16:
        if PH:
            if not PHP:
                a(f's_mov_b64 {pK}, s[8:9]\ns_mov_b64 {pV}, s[12:13]')
            a(f's_mov_b32 {sQB}, {sCB}')
        item_addr(sCUR, sTB, sNB, PH)
    if not FS:
        stamp(3)
    if not noq:
        lds_wait('L_wqs', t0, vB, F_Q, 3, 1)
    if not FS:
        stamp(1)
    load_q()
    get_nonce('L_nps', t0)

    def take_ticket():
        a(f's_waitcnt lgkmcnt(0)\nv_readfirstlane_b32 {sST}, {vT}')
        a(f'v_and_b32 {vE}, -4, {vT}\nv_add_u32 {vE}, {L_TAB + 12}, {vE}')

    def step(n, comp, issue):
        if ISS[n] == 'b':
            issue()
        comp()
        if ISS[n] == 'a':
            issue()

    if P16:
        def pace(t):
            a('s_waitcnt vmcnt(3)')
            ld_tile(t, SK, sCUR)
        kdot(0, RING, AD)
        pace(0)
        for t in range(1, 4):
            kdot(t, RING, AD)
        for t in range(4):
            kdot(t, K0B(t), AD2)
        reset_state()
        pace(1)
        if PHP:
            a(f's_lshl_b32 {sA}, {sWAVE}, 7\ns_add_u32 {sA}, {sA}, {L_SC - 512}\nv_lshrrev_b32 v60, 3, v0\nv_lshl_add_u32 v60, v60, 4, {sA}')
            a(f's_lshl_b32 {sA}, {sWAVE}, 2\ns_add_u32 {sA}, {sA}, {L_SF - 16}\nv_mov_b32 v61, {sA}')
            for n, (ad, ext) in enumerate(((AD2, EXT1), (AD, EXT0))):
                score4(ad, 'v56', 'v57')
                for t in range(4):
                    kdot(t, ext, ad)
                pace(2 + n)
                score4(ad, 'v58', 'v59')
                a('s_mov_b32 exec_lo, 0x01010101\ns_mov_b32 exec_hi, 0x01010101')
                a(f'ds_write_b128 v60, v[56:59] offset:{n * 512}\ns_mov_b64 exec, 1\nds_write_b32 v61, {vONE} offset:{n * 16}\ns_mov_b64 exec, -1')
        else:
            softmax4(AD2)
            for t in range(4):
                vdot(t, EXT1)
            pace(2)
            softmax4(AD)
            for t in range(4):
                vdot(t, EXT0)
            pace(3)
        if not FS:
            stamp(4)
    else:
        for t in range(4):
            a('s_waitcnt vmcnt(9)')
            kdot(t, RING, AD)
            ld_tile(t, SV, sCUR)
        a(f's_mov_b32 {sLD}, 1\ns_mov_b32 {sST}, {sWAVE}\nv_mov_b32 {vE}, {L_TAB + 8}')
        for t in range(4):
            kdot(t, EXT0, AD2)
        softmax4(AD2)
        for t in range(4):
            vdot(t, EXT1)
        if not FS:
            stamp(4)
        a('s_branch L_mid')

    SC, vSA, vSF, vSG = AD2, f'v{AD2 + 4}', f'v{AD2 + 5}', f'v{AD2 + 6}'

    def put_scores():
        score4(AD, f'v{SC + 2}', f'v{SC + 3}')
        a('s_mov_b32 exec_lo, 0x01010101\ns_mov_b32 exec_hi, 0x01010101')
        a(f'ds_write_b128 {vSA}, v[{SC}:{SC + 3}]\ns_mov_b64 exec, 1\nds_write_b32 {vSF}, {vONE}\ns_mov_b64 exec, -1')

    def body(m):
        x = ('', 'k', 'v')[m]
        a(f'L_item{x}:')
        if m:
            a(f's_lshl_b32 {sA}, {sSL}, 7\ns_add_u32 {sA}, {sA}, {L_SC}\nv_lshrrev_b32 {vSA}, 3, v0\nv_lshl_add_u32 {vSA}, {vSA}, 4, {sA}')
            a(f's_lshl_b32 {sA}, {sSL}, 2\ns_add_u32 {sA}, {sA}, {L_SF}\nv_mov_b32 {vSF}, {sA}')
        if m == 2:
            a(f'ds_read_b32 {vSG}, {vSF}\nds_read_b128 v[{SC}:{SC + 3}], {vSA}')
        for t in range(4):
            if t == 2:
                draw(F_T1)
            if t == 3:
                a(f's_waitcnt vmcnt(4)\ns_cmp_eq_u32 {sLD}, 0\ns_cbranch_scc1 L_k3{x}')
            a('s_waitcnt vmcnt(3)')
            if t == 3:
                a(f'L_k3{x}:')

            def issue():
                if t == 2:
                    take_ticket()
                    a(f's_and_b32 {sLD}, {sST}, 3\ns_cmp_lt_u32 {sST}, {NSTAT * 4 - 12}\ns_cselect_b32 {sLD}, 1, {sLD}')
                    a(f's_cmp_lg_u32 {sLD}, 0\ns_cbranch_scc1 L_noclaim{x}')
                    claim('v4', 0)
                    a(f'L_noclaim{x}:')
                skip = P16 and t < 2 and m == (1 if PH else 0)
                if skip:
                    a(f's_cmp_eq_u32 {sMODE}, 2\ns_cbranch_scc1 L_k{t}{x}')
                ld_tile((t + 2) % 4, SK if t < 2 else SV, sCUR)
                if skip:
                    a(f'L_k{t}{x}:')

            def comp():
                if m != 2:
                    return kdot(t, RING, AD)
                if t == 0:
                    a(f'L_scw:\ns_waitcnt lgkmcnt(0)\nv_readfirstlane_b32 {sA}, {vSG}\ns_nop 1\ns_cmp_eq_u32 {sA}, 0\ns_cbranch_scc1 L_scs')
                    weigh4(f'v{SC}', f'v{SC + 1}')
                vdot(t, RING)
            step(t, comp, issue)
        if PS:
            ld_tile(2, SV, sCUR)
        a(f'L_mid{x}:')
        if m == 0:
            softmax4(AD)
        elif m == 1:
            score4(AD, f'v{SC}', f'v{SC + 1}')
        else:
            weigh4(f'v{SC + 2}', f'v{SC + 3}')
        for t in range(4):
            a(f's_waitcnt vmcnt({6 if PS and t == 0 else 3})')
            if t == 0:
                a(f's_cmp_lg_u32 {sLD}, 0\ns_cbranch_scc1 L_nopub{x}')
                publish('v4', NSTAT * 32 + 1)
                a(f'L_nopub{x}:')
            if t == 2:
                a(f's_mov_b64 exec, 1\nds_read_b32 {vE2}, {vE}\ns_mov_b64 exec, -1')

            def issue():
                if t < 2:
                    if not (PS and t == 0):
                        if not P16:
                            a(f's_cmp_eq_u32 {sMODE}, 2\ns_cbranch_scc1 L_v{t}')
                        ld_tile(t + 2, SV, sCUR)
                        a(f'L_v{t}{x}:')
                    return
                if t == 2:
                    a(f's_waitcnt lgkmcnt(0)\nv_readfirstlane_b32 {sA}, {vE2}\ns_mov_b32 {sMODE}, 0\ns_nop 0')
                    resolve(f'L_sp0{x}', sST)
                    a(f's_cmp_ge_u32 {sA}, {NBIG}\ns_cbranch_scc1 ' + ('L_ktrans' if m == 1 else 'L_trans'))
                    item_addr(sCUR, sA, sNB, PH)
                ld_tile(t - 2, SK, sCUR)
            step(4 + t, (lambda: kdot(t, RING, AD)) if m == 1 else (lambda: vdot(t, RING)), issue)
        if m == 1:
            put_scores()

    if PH:
        assert ISS == 'bbbbbbbb'
        body(1)
        if PHA:
            a(f's_cmp_lg_u32 {sKM}, 1\ns_cbranch_scc1 L_nk\ns_cmp_eq_u32 {sNB}, {sQB}\ns_cbranch_scc1 L_itemk')
            a(f's_sub_u32 {sA}, {sNB}, {sCB}\ns_mul_i32 {sA}, {sA}, 384\nv_add_u32 {vSG}, {sA}, v5\ns_mov_b32 {sQB}, {sNB}')
            load_q(vSG)
            a('s_waitcnt lgkmcnt(0)\ns_branch L_itemk\nL_nk:')
        a(f's_cmp_lg_u32 {sNB}, {sCB}\ns_cbranch_scc1 L_flush')
        a(f'L_next:\ns_cmp_eq_u32 {sKM}, 1\ns_cbranch_scc1 L_itemk\ns_cmp_eq_u32 {sKM}, 0\ns_cbranch_scc1 L_item')
        body(2)
        a(f's_cmp_eq_u32 {sNB}, {sCB}\ns_cbranch_scc1 L_next\ns_branch L_flush')
        a(f'L_scs:\nds_read_b32 {vSG}, {vSF}\nds_read_b128 v[{SC}:{SC + 3}], {vSA}\ns_branch L_scw')
        a('L_ktrans:\ns_waitcnt vmcnt(0)')
        kdot(2, RING, AD)
        kdot(3, RING, AD)
        put_scores()
        for k in range(4, 8):
            a(f'v_mov_b32 v{P + k}, 0')
        a('s_branch L_trans')
    body(0)
    a(f's_cmp_eq_u32 {sNB}, {sCB}\ns_cbranch_scc1 L_item')

    FA, FB, vCMP = 'v48', 'v53', 'v57'

    def flush_addr():
        a(f'v_and_b32 {FA}, 7, v0\nv_lshlrev_b32 {FA}, 5, {FA}\nv_lshrrev_b32 {FB}, 4, v0\nv_lshl_add_u32 {FA}, {FB}, 3, {FA}')
        a(f'v_add_u32 {FA}, {sPB}, {FA}\nv_mov_b32 {FB}, {sPB}')

    def unify():
        allreduce('v_max_f32', t0, t3, low=False)
        a(f'v_sub_f32 {t2}, {vMC}, {t0}\nv_exp_f32 {t2}, {t2}\nv_mov_b32 {vMC}, {t0}\nv_mul_f32 {vL}, {vL}, {t2}')
        for i in range(12):
            a(f'v_pk_mul_f32 v[{ACC + 2 * i}:{ACC + 2 * i + 1}], v[{ACC + 2 * i}:{ACC + 2 * i + 1}], v[{TM + 2}:{TM + 3}] op_sel_hi:[1,0]')
    a('L_flush:')
    a(f'v_mov_b32 {t0}, {vMC}')
    flush_addr()
    unify()
    a('L_flush2:')
    for sw, es, dl in (('v_permlane16_swap_b32', (0, 1, 4, 5), 2), ('v_permlane32_swap_b32', (0, 1), 4)):
        a(f'v_mov_b32 {t3}, {vL}')
        for i in range(3):
            for e in es:
                a(f'{sw} v{ACC + 8 * i + e}, v{ACC + 8 * i + e + dl}')
        a(f'{sw} {vL}, {t3}\nv_add_f32 {vL}, {vL}, {t3}')
        for i in range(3):
            for e in es[::2]:
                r = ACC + 8 * i + e
                a(f'v_pk_add_f32 v[{r}:{r + 1}], v[{r}:{r + 1}], v[{r + dl}:{r + dl + 1}]')
    for r in [vL] + [f'v{ACC + 8 * i + e}' for i in range(3) for e in (0, 1)]:
        a(f'v_add_f32_dpp {r}, {r}, {r} row_ror:8 {DPPM}')
    for i in range(3):
        a(f'ds_write_b64 {FA}, v[{ACC + 8 * i}:{ACC + 8 * i + 1}] offset:{i * 256}')
    a(f's_mov_b64 exec, 1\nds_write_b64 {FB}, v[6:7] offset:768\nds_add_rtn_u32 v56, {vFL}, {vONE} offset:{F_FL}\ns_mov_b64 exec, -1')
    a(f's_cmp_lg_u32 {sCB}, 3\ns_cbranch_scc1 L_nos1')
    a('L_s1:')
    for w in range(4):
        a(f'ds_read_b64 v[{10 + 2 * w}:{11 + 2 * w}], v47 offset:{w * 4 * PARTP + 768}')
    for w in range(4):
        a(f'ds_read_b128 v[{20 + 4 * w}:{23 + 4 * w}], v46 offset:{w * 4 * PARTP}')
        a(f'ds_read_b64 v[{36 + 2 * w}:{37 + 2 * w}], v51 offset:{w * 4 * PARTP + 512}')
    a('s_waitcnt lgkmcnt(8)')
    if diag:
        a(f's_cmp_lt_u32 {sWAVE}, 4\ns_cbranch_scc1 L_s1y')
        a('s_waitcnt lgkmcnt(0)')
        stamp(2)
        a('L_s1y:')
    a('v_cmp_ne_u32 vcc, 3, v56\ns_bitcmp1_b32 vcc_lo, 0\ns_cbranch_scc1 L_fin')
    a('v_max3_f32 v18, v10, v12, v14\nv_max_f32 v18, v18, v16')
    for w in range(4):
        a(f'v_sub_f32 v{10 + 2 * w}, v{10 + 2 * w}, v18')
    for w in range(4):
        a(f'v_exp_f32 v{10 + 2 * w}, v{10 + 2 * w}')
    a('v_mul_f32 v19, v10, v11')
    for w in range(1, 4):
        a(f'v_fmac_f32 v19, v{10 + 2 * w}, v{11 + 2 * w}')
    a(f'v_max_f32 v19, {f2u(1e-30)}, v19\nv_rcp_f32 v44, v19\nv_log_f32 v19, v19')
    for w in range(4):
        a(f's_waitcnt lgkmcnt({6 - 2 * w})' if w < 3 or not diag else f's_cmp_ge_u32 {sWAVE}, 4\ns_cbranch_scc1 L_s1z\ns_waitcnt lgkmcnt(0)\nL_s1z:')
        for d, x in ((20, 20 + 4 * w), (22, 22 + 4 * w), (36, 36 + 2 * w)):
            d, x, e = f'v[{d}:{d + 1}]', f'v[{x}:{x + 1}]', f'v[{10 + 2 * w}:{11 + 2 * w}]'
            a(f'v_pk_fma_f32 {d}, {x}, {e}, {d} op_sel_hi:[1,0,1]' if w else f'v_pk_mul_f32 {d}, {x}, {e} op_sel_hi:[1,0]')
    a('v_add_f32 v18, v18, v19')
    for d in (20, 22, 36):
        a(f'v_pk_mul_f32 v[{d}:{d + 1}], v[{d}:{d + 1}], v[44:45] op_sel_hi:[1,0]')
    a('v_lshlrev_b32 v18, v50, v18\nv_bfi_b32 v59, v55, v49, v18')
    a('v_cvt_pk_bf16_f32 v56, v20, v21\nv_cvt_pk_bf16_f32 v57, v22, v23\nv_cvt_pk_bf16_f32 v58, v36, v37')
    a('s_mov_b32 exec_hi, 0')
    a(f'buffer_store_dwordx4 v[56:59], v54, {SWS}, s83 offen {STM}')
    a('s_mov_b32 exec_hi, -1')
    if diag:
        a(f's_cmp_lt_u32 {sWAVE}, 4\ns_cbranch_scc1 L_s1x')
        stamp(5)
        a('L_s1x:')
    a(f's_cmp_ge_u32 {sWAVE}, 4\ns_cbranch_scc1 L_fin')
    a(f's_cmp_eq_u32 {sPH}, 1\ns_cbranch_scc1 L_pre4')
    a('s_branch L_disp')
    a('L_nos1:')
    a(f's_cmp_eq_u32 {sCB}, 0\ns_cselect_b32 {sA}, 2, 1\ns_add_u32 {sCB}, {sCB}, {sA}\ns_mul_i32 {sA}, {sA}, 384')
    a('s_waitcnt lgkmcnt(0)')
    if pst:
        for b, k in ((2, 3), (3, 4)):
            a(f's_cmp_lg_u32 {sCB}, {b}\ns_cbranch_scc1 L_st{k}')
            stamp(k)
            a(f'L_st{k}:')
    a(f's_add_u32 {sPB}, {sPB}, {PARTP}')
    a(f'v_add_u32 v5, {sA}, v5\nv_add_u32 {vFL}, 4, {vFL}')
    reset_state()
    a(f's_cmp_lt_u32 {sCB}, {sNB}\ns_cbranch_scc1 L_flush')
    load_q()
    a('s_waitcnt lgkmcnt(0)')
    a(f's_cmp_eq_u32 {sMODE}, 0\ns_cbranch_scc1 ' + ('L_next' if PH else 'L_item'))
    a('s_branch L_small0')

    def small_claim(lab, tmp=sA, back=None):
        a(f's_waitcnt lgkmcnt(0)\nv_readfirstlane_b32 {sTA}, {vT}\ns_nop 1')
        a(f's_and_b32 {tmp}, {sTA}, 3\ns_cbranch_scc1 {lab}')
        claim(vCA, 128)
        a(f's_waitcnt vmcnt(4)\ns_branch {lab}d')
        a(f'{lab}:')
        a('s_waitcnt vmcnt(3)')
        a(f's_branch {back}' if back else f'{lab}d:')

    a('L_trans:')
    if PH:
        a(f's_mov_b64 s[8:9], {pK}\ns_mov_b64 s[12:13], {pV}')
    draw(F_T2)
    a(f's_add_u32 {sROT}, {sROT}, {NBIG - 768 + RB[3]}\ns_lshl_b32 {sROT}, {sROT}, 2')
    a(f's_add_u32 {sA}, {sSB}, {sROT}\ns_and_b32 {sA}, {sA}, 1023\ns_mul_i32 {sA}, {sA}, 3072')
    a(f's_add_u32 {sSB}, {sHB}, {3 * BSTR}\ns_add_u32 {sROT}, {sROT}, 32')
    a(f's_add_u32 {sCUR}, {sSB}, {sA}')
    a(f's_mov_b32 {sMODE}, 1\ns_mov_b32 {sNB}, 3')
    ld_one(0, SK, sCUR)
    if ISS[6] == 'b':
        vdot(2, RING)
    small_claim('L_tr')
    step(7, lambda: vdot(3, RING), lambda: ld_one(1, SV, sCUR))
    stamp(6)
    a(f's_cmp_lg_u32 {sCB}, 3\ns_cbranch_scc1 L_flush')
    a('L_small0:')
    s1_setup(sCB)
    flush_addr()
    a(f'v_mov_b32 {vCMP}, 0x7fc00000')
    if EC:
        a(f's_and_b32 {sA}, {sTA}, 3\ns_cbranch_scc1 L_sm0\ns_waitcnt vmcnt(3)')
    x = s[0]
    last = f's_cmp_ge_u32 {sA}, {SMALL}'
    for par in range(2):
        cur, nxt = 2 * par, 2 - 2 * par
        a(f'L_sm{par}:')
        a(f's_and_b32 {sA}, {sTA}, -4\ns_add_u32 {sA}, {sA}, {L_TAB2}\nv_mov_b32 {vE}, {sA}')
        a(f's_and_b32 {sA}, {sTA}, 3\ns_cbranch_scc1 L_sq{par}')
        a(f's_waitcnt vmcnt({6 if EC else 3})')
        publish(vCA, 1)
        a(f'v_readfirstlane_b32 {sA}, {vCA}')
        a(f'L_sq{par}r:')
        a(f's_and_b32 {sB}, {sTA}, 3\ns_add_u32 {sA}, {sA}, {sB}\ns_sub_u32 {sA}, {sA}, 1')
        spins.append(f'L_sq{par}')
        a(f'{last}\ns_cbranch_scc1 L_nd{par}')
        draw(F_T2)
        a(f's_add_u32 {sB}, {sA}, {sROT}\ns_and_b32 {sB}, {sB}, 1023\ns_mul_i32 {sB}, {sB}, 3072\ns_add_u32 {sCUR}, {sB}, {sSB}')
        if EC:
            a(f's_waitcnt lgkmcnt(0)\nv_readfirstlane_b32 {sTA}, {vT}\ns_nop 1')
            a(f's_and_b32 {sB}, {sTA}, 3\ns_cbranch_scc0 L_cl{par}')
        a(f'{last}\nL_nd{par}:')
        a(f's_waitcnt vmcnt(3)\ns_cbranch_scc1 L_nk{par}')
        a(f'L_ik{par}:')
        ld_one(nxt, SK, sCUR)
        if not EC:
            a(f's_waitcnt lgkmcnt(0)\nv_readfirstlane_b32 {sTA}, {vT}\ns_nop 1')
            a(f's_and_b32 {sB}, {sTA}, 3\ns_cbranch_scc1 L_nk{par}')
            claim(vCA, 128)
        a(f'L_nk{par}:')
        kdot(0, RING + 12 * cur, AD)
        a(f'v_add_f32 {x}, v{AD}, v{AD + 1}')
        for mode in ('quad_perm:[1,0,3,2]', 'quad_perm:[2,3,0,1]', 'row_half_mirror'):
            a(f'v_add_f32_dpp {x}, {x}, {x} {mode} {DPPM}')
        a(f'v_cvt_pk_bf16_f32 {x}, 0, {x}\nv_mul_f32 {x}, {f2u(192 ** -0.5)}, {x}\nv_cvt_pk_bf16_f32 {x}, 0, {x}')
        a(f'v_mul_f32 {t0}, {sLOG2E}, {x}\nv_cmp_nle_f32 vcc, {t0}, {vCMP}\ns_cbranch_vccnz L_nm{par}')
        a(f'L_mo{par}:')
        a(f'v_fma_f32 {x}, {x}, {sLOG2E}, -{vMC}\nv_exp_f32 {x}, {x}')
        a(last)
        a(f'v_cvt_pk_bf16_f32 v{P + 2}, {x}, 0\nv_cvt_pk_bf16_f32 v{P + 3}, 0, {x}\nv_add_f32 {vL}, {vL}, v{P + 3}')
        a(f's_cbranch_scc0 L_nl{par}\ns_waitcnt vmcnt(0)')
        a(f'L_vd{par}:')
        vdot(1, RING + 12 * cur)
        a(f'{last}\ns_cbranch_scc1 L_flush2')
    a('s_branch L_sm0')
    for par in range(2):
        a(f'L_nl{par}:')
        a(f's_waitcnt vmcnt(4)\ns_and_b32 {sB}, {sTA}, 3\ns_cbranch_scc0 L_nv{par}\ns_waitcnt vmcnt(3)\nL_nv{par}:')
        ld_one(3 - 2 * par, SV, sCUR)
        a(f's_branch L_vd{par}')
        if EC:
            a(f'L_cl{par}:')
            claim(vCA, 128)
            a(f's_waitcnt vmcnt(4)\ns_branch L_ik{par}')
        a(f'L_nm{par}:')
        a(f'v_max_f32 {t0}, {t0}, {vMC}')
        unify()
        a(f'v_mov_b32 {vCMP}, {vMC}\ns_branch L_mo{par}')
    for lab in spins:
        a(f'{lab}:')
        a(f's_mov_b64 exec, 1\nds_read_b32 {vE2}, {vE}\ns_mov_b64 exec, -1')
        a(f's_waitcnt lgkmcnt(0)\nv_readfirstlane_b32 {sA}, {vE2}\ns_nop 1')
        a(f's_cmp_eq_u32 {sA}, 0\ns_cbranch_scc1 {lab}')
        a(f's_branch {lab}r')

    a('L_fin:')
    if diag:
        a('s_waitcnt vmcnt(0)')
        stamp(7)
        a('s_mov_b64 exec, -1')
        if lstamp:
            a(f'v_mov_b32 v3, {L_FLAG}')
            lds_wait('L_stw', 'v10', 'v3', F_FL + 12, 4, 64)
            a('s_sleep 127\ns_sleep 127')
        a('s_load_dwordx2 s[8:9], s[0:1], 96')
        a('s_getreg_b32 s62, hwreg(20, 0, 4)')
        a('s_waitcnt lgkmcnt(0)')
        a('s_add_u32 s8, s8, 0x40000000\ns_addc_u32 s9, s9, 0\ns_mov_b32 s10, 0x200000\ns_mov_b32 s11, 0x20000')
        a(f's_lshl_b32 {sA}, s2, 3\ns_add_u32 {sA}, {sA}, {sWAVE}')
        a(f's_lshl_b32 {sB}, {sA}, 5\nv_mov_b32 v1, {sB}')
        a(f's_lshl_b32 {sB}, {sA}, 6\ns_add_u32 {sB}, {sB}, 0x100000\nv_mov_b32 v2, {sB}')
        a('v_mov_b32 v4, s84\nv_mov_b32 v5, s85\nv_mov_b32 v6, s98\nv_mov_b32 v7, s99')
        a(f'v_mov_b32 v8, s62\nv_mov_b32 v9, 0\nv_mov_b32 v10, s96\nv_mov_b32 v11, s97')
        for i in range(16):
            a(f'v_mov_b32 v{12 + i}, s{84 + i}')
        a('s_mov_b64 exec, 1')
        a('buffer_store_dwordx4 v[4:7], v1, s[8:11], 0 offen')
        a('buffer_store_dwordx4 v[8:11], v1, s[8:11], 0 offen offset:16')
        for i in range(4):
            a(f'buffer_store_dwordx4 v[{12 + 4 * i}:{15 + 4 * i}], v2, s[8:11], 0 offen offset:{16 * i}')
    a('L_end:')
    a('s_endpgm')

    ref = open(f'cdna_kernels/{NAME}.s.ref').read().split('\n')
    head = [x for x in ref if x.startswith(';') and '@launch' not in x and not x.startswith('; Override') and not x.startswith('; grid=')]
    out = '\n'.join(head) + f'\n; @launch grid=(256,1,1) block=(512,1,1) lds={LDS_SZ}\n'
    out += f'.amdgcn_target "amdgcn-amd-amdhsa--gfx950"\n.text\n.globl {KERN}\n.p2align 8\n.type {KERN},@function\n'
    out += a.text() + '\n'
    out += f'''.section .rodata,"a"
.p2align 6
.amdhsa_kernel {KERN}
  .amdhsa_next_free_vgpr 256
  .amdhsa_next_free_sgpr 102
  .amdhsa_accum_offset 256
  .amdhsa_group_segment_fixed_size 0
  .amdhsa_kernarg_size 104
  .amdhsa_user_sgpr_count 2
  .amdhsa_user_sgpr_kernarg_segment_ptr 1
  .amdhsa_system_sgpr_workgroup_id_x 1
.end_amdhsa_kernel
'''
    return out


if __name__ == '__main__':
    kw = eval('dict(' + (sys.argv[2] if len(sys.argv) > 2 else '') + ')')
    open(sys.argv[1], 'w').write(gen(**kw))
```

```python
import os, sys, struct
from asmlib import Asm

NAME = 'sequential_preLN__mha_block_cached__dense_activation_gelu__decode'
KERN = NAME + '_kernel'


def f2u(x):
    return '0x%08x' % struct.unpack('<I', struct.pack('<f', x))[0]


NB_KV = 402653184
PROB = 3145728
BSTR = 100663296
ITEM = 12288
QP, OP, HP, CT, AP, WS_SZ = 0x0, 0x100000, 0x200000, 0x1C0000, 0x380000, 0x400000
HPB, APB = 20480, 6144
REG = 24576
L_Q = 98304
L_PART = 99840
PARTP = 784
L_FLAG = 112384
F_Q, F_NONCE, F_W, F_T1, F_T2, F_FL, F_ST, F_H = 0, 4, 8, 12, 16, 16, 32, 48
L_ACT = 112448
L_TAB = 118592
L_TAB2 = L_TAB + 1024
L_SC = 120128
L_SF = L_TAB + 512
LDS_SZ = L_SC + 64 * 128
SK, SV, SWS, SDBG, SX, SWQ, SWO, SW1, SW2, SOUT, SB1, SB2 = [f's[{i}:{i+3}]' for i in range(8, 56, 4)]
SRD = {'K': (8, 8, NB_KV), 'V': (12, 16, NB_KV), 'WS': (16, 96, WS_SZ), 'DBG': (20, 88, 256), 'X': (24, 0, 5120),
       'WQ': (28, 24, 7864320), 'WO': (32, 32, 7864320), 'W1': (36, 48, 1966080), 'W2': (40, 64, 1966080),
       'OUT': (44, 80, 5120), 'B1': (48, 56, 3072), 'B2': (52, 72, 1280)}
sWAVE, sH, sJ = 's3', 's4', 's5'
sCUR, sNEXT, sHB, sCB, sNB, sPB, sMODE, sSB = 's56', 's57', 's58', 's59', 's60', 's61', 's6', 's7'
sBAT, sROLE, sIN, sOUTA, sACT, sXO = 's56', 's57', 's58', 's59', 's60', 's61'
sT = ['s64', 's65', 's66', 's67']
sSPIN, sST, sHI, sLOG2E = 's68', 's69', 's70', 's71'
sA, sB, sC, sD = 's72', 's73', 's74', 's75'
sPH = 's79'
SPIN = 1 << 14
DPPM = 'row_mask:0xf bank_mask:0xf'


def gen(diag=False, pol='nt', pst=False, PWIN=3, WWIN=1, SMALL=96, SLP=32, FSLP=2, NSTAT=28, pp2=7, pp4=4, ysl=0, hsl=0, early=1, SLP0=100, QSL=70, dbt=False, pnt='', sb=3, noq=False, WSL=0, PSL=0, RH=188, RB=(0, 124, 0, 236), KVX=0, PH=True, PH3=2, PHA=True, PHP=True, PC=False, TI=False, PM=0, PMM=17, PMH=0, exp=0, QS2=40, PRE=1, lstamp=True, mk=7, D4=1, G4=6, D5=1, G5=6, RC2=1, RC4=1, YS3=4, PAR=False, CTA=0x340000, CTS=4352, STM='sc1', LDM='sc1', OUM='', ISS='bbbbbbbb', PS=True, HM=5, FS=False, XC=True, PB=0, LM=True, EN=True, NWG=6, XS=True, P16=True, PO=0, QS3=0, PL2=0, PL4=0, PL5=0, PLM='', W4=False, FG=False, JX=0, AM='', ALM='sc1', ASW=12, LOC=True, NOA=False, W4S=0, GF=3, EC=True, RHO=True, PT=0, PTM='sc1', W2P='nt', WOP='nt', FD=0, YF=38, YW=18, FLB=0x3F0000, FST=4352):
    CT = CTA
    RB = [(k * RB) & 255 for k in range(4)] if isinstance(RB, int) else RB
    a = Asm()
    nstamp = [0]

    def stamp(i):
        if diag:
            a(f's_memrealtime s[{84 + 2 * i}:{85 + 2 * i}]')

    def bstamp(i):
        if diag and sb < 3:
            nstamp[0] += 1
            a(f's_cmp_lg_u32 {sBAT}, {sb}\ns_cbranch_scc1 L_bs{nstamp[0]}')
            stamp(i)
            a(f'L_bs{nstamp[0]}:')
        else:
            stamp(i)

    def dstamp(i, op='umax'):
        if dbt:
            a('s_memrealtime s[84:85]\ns_mov_b64 s[86:87], exec\ns_mov_b64 exec, 1\ns_waitcnt lgkmcnt(0)')
            a('v_mov_b32 v254, s84\nv_mov_b32 v255, 0')
            if op == 'umin':
                a('v_sub_u32 v254, 0, v254')
            a(f'buffer_atomic_umax v254, v255, {SDBG}, 0 offen offset:{4 * i} sc1')
            a('s_mov_b64 exec, s[86:87]')

    def allreduce(op, r, t, low=True):
        if low:
            a(f'{op}_dpp {r}, {r}, {r} quad_perm:[1,0,3,2] {DPPM}')
            a(f'{op}_dpp {r}, {r}, {r} quad_perm:[2,3,0,1] {DPPM}')
            a(f'{op}_dpp {r}, {r}, {r} row_half_mirror {DPPM}')
        a(f'{op}_dpp {r}, {r}, {r} row_ror:8 {DPPM}')
        for sw in ('v_permlane16_swap_b32', 'v_permlane32_swap_b32'):
            a(f'v_mov_b32 {t}, {r}')
            a(f'{sw} {r}, {t}')
            a(f'{op} {r}, {r}, {t}')

    def rbf(r):
        a(f'v_cvt_pk_bf16_f32 {r}, {r}, {r}')
        a(f'v_and_b32 {r}, {sHI}, {r}')

    def tag(base, n, vM):
        for i in range(n):
            a(f'v_bfi_b32 v{base + i}, {vM}, {sT[i % 4]}, v{base + i}')

    def check(base, n, chk, label, done, sleep=True, tags=None, mask='v9', step=1):
        tags = tags or sT
        c2 = f'v{int(chk[1:]) + 1}'
        a(f'v_xor_b32 {chk}, {tags[0]}, v{base}\nv_xor_b32 {c2}, {tags[1 % len(tags)]}, v{base + step}')
        for i in range(2, n):
            c = chk if i % 2 == 0 else c2
            a(f'v_bitop3_b32 {c}, {c}, v{base + i * step}, {tags[i % len(tags)]} bitop3:0xf6')
        a(f'v_bitop3_b32 {chk}, {chk}, {c2}, {mask} bitop3:0xa8')
        a(f'v_cmp_ne_u32 vcc, 0, {chk}')
        a(f's_cbranch_vccz {done}')
        a(f's_sub_u32 {sSPIN}, {sSPIN}, 1')
        a(f's_cbranch_scc1 {done}')
        if sleep:
            a(f's_cmp_eq_u32 {sBAT}, 3\ns_cbranch_scc1 {label}')
            a(f's_sleep {SLP}')
            if SLP0:
                a(f's_cmp_lg_u32 {sBAT}, 0\ns_cbranch_scc1 {label}\ns_sleep {SLP0}')
        a(f's_branch {label}')
        a(f'{done}:')
        a(f's_mov_b32 {sSPIN}, {SPIN}')

    def gather(lab, loads, tags, mask, plain=0, sw=None):
        M = ['s[8:9]', 's[10:11]', 's[12:13]', 's[14:15]', 's[28:29]']
        n = len(loads)
        a(f'{lab}:')
        if plain:
            a(f's_bitcmp0_b32 {plain}, {sBAT}\ns_cbranch_scc1 {lab}m')
            for x, _ in loads:
                a(x.replace('sc1', PLM))
            a(f's_branch {lab}w')
            a(f'{lab}m:')
        for i in range(n):
            a(f's_mov_b64 {M[i]}, -1')
        a(f'{lab}l:')
        for i, (x, _) in enumerate(loads):
            a(f's_wqm_b64 exec, {M[i]}')
            a(x.replace('sc1', LDM))
        a('s_mov_b64 exec, -1')
        a(f'{lab}w:')
        a('s_waitcnt vmcnt(0)')
        for k in range(len(loads[0][1])):
            for i, (_, regs) in enumerate(loads):
                t = tags[k % len(tags)]
                a(f'v_bitop3_b32 v{10 + i}, v{10 + i}, v{regs[k]}, {t} bitop3:0xf6' if k else f'v_xor_b32 v{10 + i}, {t}, v{regs[0]}')
        for i in range(n):
            a(f'v_and_b32 v{10 + i}, {mask}, v{10 + i}')
        for i in range(n):
            a(f'v_cmp_ne_u32 {M[i]}, 0, v{10 + i}')
        a('s_nop 1')
        a(f's_or_b64 vcc, {M[0]}, {M[1]}')
        for i in range(2, n):
            a(f's_or_b64 vcc, vcc, {M[i]}')
        a(f's_cbranch_scc0 {lab}d')
        a(f's_sub_u32 {sSPIN}, {sSPIN}, 1\ns_cbranch_scc1 {lab}d')
        if sw:
            a(f's_cmp_lt_u32 {sSPIN}, {SPIN - ASW}\ns_cselect_b32 {sw[0]}, {sw[1]}, {sw[0]}')
        a(f's_cmp_eq_u32 {sBAT}, 3\ns_cbranch_scc1 {lab}l')
        a(f's_sleep {SLP}\ns_branch {lab}l')
        a(f'{lab}d:')
        a(f's_mov_b32 {sSPIN}, {SPIN}')

    def get_nonce(lab, t):
        a(f'{lab}:')
        a(f'v_mov_b32 {t}, {L_FLAG}')
        a(f'ds_read_b32 {t}, {t} offset:{F_NONCE}')
        a('s_waitcnt lgkmcnt(0)')
        a(f'v_readfirstlane_b32 {sT[0]}, {t}')
        a('s_nop 1')
        a(f's_cmp_eq_u32 {sT[0]}, 0\ns_cbranch_scc1 {lab}')
        for i in (1, 2, 3):
            a(f's_lshr_b32 {sT[i]}, {sT[0]}, {8 * i}')

    def lds_wait(lab, t, vaddr, off, val, slp):
        a(f'{lab}:')
        a(f'ds_read_b32 {t}, {vaddr} offset:{off}')
        a('s_waitcnt lgkmcnt(0)')
        a(f'v_cmp_gt_u32 vcc, {val}, {t}')
        if slp:
            a(f's_cbranch_vccz {lab}d')
            a(f's_sleep {slp}\ns_branch {lab}')
            a(f'{lab}d:')
        else:
            a(f's_cbranch_vccnz {lab}')

    def lds_inc(vaddr, off, one):
        a('s_mov_b64 exec, 1')
        a(f'ds_add_u32 {vaddr}, {one} offset:{off}')
        a('s_mov_b64 exec, -1')

    def pub_exec(n, soff, stride):
        if W4:
            a(f's_cmp_eq_u32 {sBAT}, 3\ns_cselect_b32 {sA}, -1, 0x1111')
            return
        a(f's_add_u32 {sA}, {soff}, {4 * stride}')
        a(f's_cmp_eq_u32 {sBAT}, {3 if n > 1 else 4}\ns_cselect_b64 exec, -1, 0xffff')

    def pub_addr(v, g, t, stride):
        if W4:
            a(f'v_and_b32 {t}, 3, v0\nv_lshl_add_u32 {t}, {g}, 2, {t}\nv_and_b32 {t}, 7, {t}\nv_mul_u32_u24 {t}, {stride}, {t}')
            a(f'v_and_b32 {v}, 12, v0\nv_lshl_add_u32 {v}, {v}, 2, {t}')
        else:
            a(f'v_mul_u32_u24 {t}, {stride}, {g}\nv_and_b32 {v}, 15, v0\nv_lshl_add_u32 {v}, {v}, 2, {t}')

    def pub_store(n, v, vaddr, soff, lab):
        if W4:
            assert n == 8
            for k in range(4):
                a(f'v_mov_b32_dpp v{16 + k}, {v} quad_perm:[{k},{k},{k},{k}] {DPPM}')
            a(f's_mov_b32 exec_lo, {sA}\ns_mov_b32 exec_hi, 0')
            a(f'buffer_store_dwordx4 v[16:19], {vaddr}, {SWS}, {soff} offen {STM}')
            return
        a(f'buffer_store_dword {v}, {vaddr}, {SWS}, {soff} offen {STM}')
        if n == 8:
            a(f's_cbranch_scc0 {lab}')
            a(f'buffer_store_dword {v}, {vaddr}, {SWS}, {sA} offen {STM}')
            a(f'{lab}:')

    def copy_off(n, stride, inc):
        if n == 1:
            return inc
        r = sB if stride == 4 * HPB else sD
        a(f's_and_b32 {r}, {sJ}, {n - 1}\ns_mul_i32 {r}, {r}, {stride}\ns_cmp_eq_u32 {sBAT}, 2\ns_cselect_b32 {r}, {r}, 0\ns_add_u32 {r}, {r}, {inc}')
        return r

    def set_exec(m):
        a(f's_mov_b32 exec_lo, {m:#x}\ns_mov_b32 exec_hi, {m:#x}')

    sP, sQO = 's80', 's81'

    def srd(*ks):
        for k in ks:
            r, off, sz = SRD[k]
            a(f's_mov_b32 s{r + 2}, {sz}\ns_mov_b32 s{r + 3}, 0x20000')

    def kload(*ks):
        for k in ks:
            r, off, _ = SRD[k]
            a(f's_load_dwordx2 s[{r}:{r + 1}], s[0:1], {off}')

    def consts():
        a(f's_mov_b32 {sHI}, 0xffff0000\ns_mov_b32 {sLOG2E}, {f2u(1.4426950408889634)}')
        a(f's_mov_b32 {sSPIN}, {SPIN}')

    def lds_init(v, sx, sy):
        z, p, q, r = v, f'v{v + 4}', f'v{v + 5}', f'v{v + 6}'
        for k in range(4):
            a(f'v_mov_b32 v{z + k}, 0')
        a(f'v_and_b32 {p}, 15, v0\nv_lshlrev_b32 {p}, 2, {p}\nv_add_u32 {p}, {L_FLAG}, {p}')
        a(f'ds_write_b32 {p}, v{z}')
        a(f'v_lshlrev_b32 {p}, 4, v0\nv_lshlrev_b32 {q}, 3, v0\nv_add_u32 {r}, {L_TAB}, {p}\nv_add_u32 {q}, {L_TAB2}, {q}')
        a(f'ds_write_b128 {r}, v[{z}:{z + 3}]\nds_write_b64 {q}, v[{z}:{z + 1}]')
        a(f's_lshr_b32 {sx}, {sJ}, 2\ns_mul_i32 {sx}, {sx}, 240\ns_lshl_b32 {sy}, {sJ}, 2\ns_add_u32 {sy}, {sy}, 1\ns_add_u32 {sx}, {sx}, {sy}')
        a(f'v_add_u32 {q}, {sx}, {p}\nv_lshlrev_b32 {p}, 5, v0\nv_add_u32 {p}, {sy}, {p}')
        a(f'v_cmp_gt_u32 vcc, 16, v0\nv_cndmask_b32 {p}, {p}, {q}, vcc')
        a(f'v_cmp_gt_u32 vcc, {NSTAT}, v0\nv_cndmask_b32 {p}, 0, {p}, vcc')
        if PH and PHA:
            nv = 8 if PHP else 7
            a(f'v_mov_b32 {r}, 0')
            for lo, d in ((16 - nv, 4 + PH3), (16, -nv), (20, PH3), (24, -4 - nv), (24 + PH3, 0)):
                a(f'v_cmp_le_u32 vcc, {lo}, v0\nv_cndmask_b32_e64 {r}, {r}, {d}, vcc')
            a(f'v_add_lshl_u32 {q}, v0, {r}, 2\nv_add_u32 {q}, {L_TAB}, {q}')
        else:
            a(f'v_lshlrev_b32 {q}, 2, v0\nv_add_u32 {q}, {L_TAB}, {q}')
        a(f'ds_write_b32 {q}, {p}')

    def nonce_store(sx, va, vb):
        a(f'v_lshlrev_b32 {va}, 6, v0\ns_waitcnt lgkmcnt(0)')
        a(f's_mul_i32 {sx}, s62, 0x9e3779b1\ns_or_b32 {sx}, {sx}, 1\nv_mov_b32 {vb}, {sx}')
        a('s_mov_b64 exec, 15')
        a(f'buffer_store_dword {vb}, {va}, {SDBG}, 0 offen sc1')
        a('s_mov_b64 exec, -1')

    a(f'{KERN}:')
    a('s_cmp_ge_u32 s2, 256\ns_cbranch_scc1 L_end')
    if EN:
        kload('X', 'WQ', 'K')
        a('v_lshrrev_b32 v1, 6, v0\nv_and_b32 v0, 63, v0')
        a(f'v_readfirstlane_b32 {sWAVE}, v1')
        stamp(0)
        a(f's_and_b32 {sJ}, s2, 7\ns_lshr_b32 {sH}, s2, 3')
        a(f's_cmp_ge_u32 {sWAVE}, 4\ns_cbranch_scc1 L_stream')
        srd('X', 'WQ')
    else:
        kload('X', 'WQ', 'K', 'DBG', 'WS', 'V', 'WO', 'W1', 'W2', 'OUT', 'B1', 'B2')
        a('s_memrealtime s[62:63]')
        stamp(0)
        a('v_lshrrev_b32 v1, 6, v0\nv_and_b32 v0, 63, v0')
        a(f'v_readfirstlane_b32 {sWAVE}, v1')
        srd(*SRD)
        a(f's_and_b32 {sJ}, s2, 7')
        if HM:
            a(f's_mul_i32 {sH}, {sJ}, {8 * HM}\ns_add_u32 s2, s2, {sH}\ns_and_b32 s2, s2, 255')
        a(f's_lshr_b32 {sH}, s2, 3')
        consts()
        a(f's_cmp_ge_u32 {sWAVE}, 4\ns_cbranch_scc1 L_stream')
        a(f's_cmp_lg_u32 {sWAVE}, 3\ns_cbranch_scc1 L_h0')
        lds_init(12, sA, sB)
        a('s_cmp_lg_u32 s2, 0\ns_cbranch_scc1 L_h0')
        nonce_store(sB, 'v7', 'v5')

    a('L_h0:')
    if XC:
        a('v_lshrrev_b32 v2, 2, v0\nv_and_b32 v1, 3, v2\nv_mul_u32_u24 v1, 1280, v1\nv_lshrrev_b32 v4, 4, v0')
        a('v_and_b32 v3, 3, v0\nv_lshl_add_u32 v3, v4, 2, v3\nv_lshl_add_u32 v3, v3, 4, v1\nv_lshl_add_u32 v4, v4, 3, v1')
    else:
        a('v_and_b32 v1, 3, v0\nv_mul_u32_u24 v1, 1280, v1\nv_lshrrev_b32 v2, 2, v0\nv_mul_u32_u24 v3, 80, v2\nv_add_u32 v3, v3, v1')
        a('v_lshrrev_b32 v4, 4, v0\nv_lshl_add_u32 v4, v4, 3, v1')
    a('v_lshrrev_b32 v5, 3, v0\nv_mul_u32_u24 v5, 12288, v5\nv_and_b32 v6, 7, v0\nv_lshl_add_u32 v5, v6, 4, v5')
    a(f's_add_u32 {sP}, {sJ}, {sH}\ns_and_b32 {sP}, {sP}, 7')
    a(f's_and_b32 {sD}, {sP}, 1\ns_lshl_b32 {sD}, {sD}, 2\ns_add_u32 {sD}, {sD}, {sWAVE}')
    a(f's_mul_i32 {sA}, {sD}, 160')
    a(f's_mul_i32 {sB}, {sD}, {80 * 12288}\ns_mul_i32 {sC}, {sH}, 384\ns_add_u32 {sB}, {sB}, {sC}')
    a(f's_lshr_b32 {sC}, {sP}, 1\ns_lshl_b32 {sC}, {sC}, 7\ns_add_u32 {sB}, {sB}, {sC}')
    a(f's_mul_i32 {sC}, {sWAVE}, {REG}\ns_mul_i32 {sQO}, {sH}, 6144')
    a('s_waitcnt lgkmcnt(0)')
    if PB == 1:
        a('s_barrier')
    a(f's_cmp_ge_u32 {sP}, {0 if exp & 2 else 6}\ns_cbranch_scc1 L_nold')
    if XS:
        a(f's_cmp_lg_u32 {sWAVE}, 3\ns_cbranch_scc1 L_nox')
    for i in range(5):
        a(f'buffer_load_dwordx4 v[{20 + 4 * i}:{23 + 4 * i}], v3, {SX}, 0 offen offset:{i * (256 if XC else 16)}')
    for i in range(0 if XS else 5):
        a(f'buffer_load_dwordx2 v[{10 + 2 * i}:{11 + 2 * i}], v4, {SX}, {sA} offen offset:{i * 32}')
    a('L_nox:')
    for u in range(10):
        if PB == 2 + u:
            a('s_barrier')
        a(f's_mov_b32 m0, {sC}')
        a(f'buffer_load_dwordx4 v5, {SWQ}, {sB} offen nt lds')
        if u < 9:
            a(f's_add_u32 {sB}, {sB}, {8 * 12288}\ns_add_u32 {sC}, {sC}, 1024')
    if PB >= 2:
        a('s_branch L_nob')
    a('L_nold:')
    if PB != 1:
        a('s_barrier')
    a('L_nob:')
    if EN:
        kload('DBG', 'WS', 'WO', 'W1', 'W2', 'OUT', 'B1', 'B2')
        srd('DBG', 'WS', 'WO', 'W1', 'W2', 'OUT', 'B1', 'B2')
        consts()
        a('s_waitcnt lgkmcnt(0)')
    a(f's_cmp_lg_u32 {sWAVE}, {1 if XS else 3}\ns_cbranch_scc1 L_h1')
    for i in (3, 0, 1, 2):
        a(f's_load_dword {sT[0]}, s[20:21], {64 * i}')
        a('s_waitcnt lgkmcnt(0)')
        a(f's_cmp_lg_u32 {sT[0]}, 0\ns_cbranch_scc1 L_ngot')
    a('v_mov_b32 v7, 0')
    a('L_nv:')
    a(f'buffer_load_dword v6, v7, {SDBG}, 0 offen sc1')
    a('s_waitcnt vmcnt(0)')
    a(f'v_readfirstlane_b32 {sT[0]}, v6')
    a(f's_sub_u32 {sSPIN}, {sSPIN}, 1\ns_cselect_b32 {sT[0]}, 1, {sT[0]}')
    a(f's_cmp_eq_u32 {sT[0]}, 0\ns_cbranch_scc1 L_nv')
    a(f's_mov_b32 {sSPIN}, {SPIN}')
    a('L_ngot:')
    a(f'v_mov_b32 v6, {sT[0]}\nv_mov_b32 v7, {L_FLAG}')
    a(f'ds_write_b32 v7, v6 offset:{F_NONCE}')
    a('L_h1:')
    a(f's_cmp_ge_u32 {sP}, 6\ns_cbranch_scc1 L_nop')
    a(f's_or_b32 {sB}, {sP}, {sWAVE}\ns_cbranch_scc1 L_noct')
    a(f's_mul_i32 {sB}, {sH}, {CTS}\ns_add_u32 {sB}, {sB}, {CT}')
    a('v_mov_b32 v6, 0\nv_lshlrev_b32 v7, 7, v0\ns_mov_b64 exec, 3')
    a(f'buffer_store_dword v6, v7, {SWS}, {sB} offen sc1')
    a('s_mov_b64 exec, -1')
    a('L_noct:')
    if exp & 2:
        a('s_branch L_fin')
    L_XF = L_TAB2 + 504
    if XS:
        a(f's_cmp_lg_u32 {sWAVE}, 3\ns_cbranch_scc1 L_xw')
    a('s_waitcnt vmcnt(10)')
    stamp(1)
    NX, XB = (20, 20) if XS else (10, 10)
    a(f's_mov_b32 {sD}, 0x3f803f80')
    for i in range(20):
        acc = f'v{6 + i % 2}'
        a(f'v_dot2_f32_bf16 {acc}, v{20 + i}, {sD}, {acc if i >= 2 else 0}')
    for i in range(20):
        a(f'v_lshlrev_b32 v{40 + 2 * i}, 16, v{20 + i}\nv_and_b32 v{41 + 2 * i}, {sHI}, v{20 + i}')
    a('v_add_f32 v6, v6, v7')

    def red4(r, t):
        if XC:
            a(f'v_add_f32_dpp {r}, {r}, {r} quad_perm:[1,0,3,2] {DPPM}')
            a(f'v_add_f32_dpp {r}, {r}, {r} quad_perm:[2,3,0,1] {DPPM}')
            for sw in ('v_permlane16_swap_b32', 'v_permlane32_swap_b32'):
                a(f'v_mov_b32 {t}, {r}\n{sw} {r}, {t}\nv_add_f32 {r}, {r}, {t}')
            return
        a(f'v_add_f32_dpp {r}, {r}, {r} row_ror:4 {DPPM}')
        allreduce('v_add_f32', r, t, low=False)
    red4('v6', 'v7')
    a(f'v_mul_f32 v6, {f2u(1 / 640)}, v6')
    DV, VA = (80, 10) if XS else (40, 20)
    for i in range(20):
        a(f'v_pk_add_f32 v[{DV + 2 * i}:{DV + 1 + 2 * i}], v[{40 + 2 * i}:{41 + 2 * i}], v[6:7] op_sel_hi:[1,0] neg_lo:[0,1] neg_hi:[0,1]')
    for i in range(20):
        d = f'v[{DV + 2 * i}:{DV + 1 + 2 * i}]'
        acc = f'v[{VA + 2 * (i % 2)}:{VA + 1 + 2 * (i % 2)}]'
        a(f'v_pk_mul_f32 {acc}, {d}, {d}' if i < 2 else f'v_pk_fma_f32 {acc}, {d}, {d}, {acc}')
    rbf('v6')
    for i in range(0 if XS else 10):
        a(f'v_lshlrev_b32 v{40 + 2 * i}, 16, v{10 + i}\nv_and_b32 v{41 + 2 * i}, {sHI}, v{10 + i}')
    a(f'v_add_f32 v{VA}, v{VA}, v{VA + 1}\nv_add_f32 v{VA + 2}, v{VA + 2}, v{VA + 3}\nv_add_f32 v8, v{VA}, v{VA + 2}')
    red4('v8', 'v9')
    for i in range(NX):
        a(f'v_pk_add_f32 v[{40 + 2 * i}:{41 + 2 * i}], v[{40 + 2 * i}:{41 + 2 * i}], v[6:7] op_sel_hi:[1,0] neg_lo:[0,1] neg_hi:[0,1]')
    a(f'v_mul_f32 v8, {f2u(1 / 640)}, v8')
    rbf('v8')
    a(f'v_add_f32 v8, {f2u(1e-5)}, v8')
    rbf('v8')
    a('v_sqrt_f32 v8, v8')
    for i in range(NX):
        a(f'v_cvt_pk_bf16_f32 v{XB + i}, v{40 + 2 * i}, v{41 + 2 * i}')
    rbf('v8')
    a('v_rcp_f32 v8, v8')
    for i in range(NX):
        a(f'v_lshlrev_b32 v{40 + 2 * i}, 16, v{XB + i}\nv_and_b32 v{41 + 2 * i}, {sHI}, v{XB + i}')
    for i in range(NX):
        a(f'v_pk_mul_f32 v[{40 + 2 * i}:{41 + 2 * i}], v[{40 + 2 * i}:{41 + 2 * i}], v[8:9] op_sel_hi:[1,0]')
    for i in range(NX):
        a(f'v_cvt_pk_bf16_f32 v{XB + i}, v{40 + 2 * i}, v{41 + 2 * i}')
    if XS:
        a(f'v_add_u32 v3, {L_PART}, v3\nv_mov_b32 v6, {L_XF}\nv_mov_b32 v7, 1')
        for i in range(5):
            a(f'ds_write_b128 v3, v[{20 + 4 * i}:{23 + 4 * i}] offset:{i * 256}')
        a('ds_write_b32 v6, v7')
        a('L_xw:')
        a(f's_add_u32 {sA}, {sA}, {L_PART}\nv_add_u32 v4, {sA}, v4\nv_mov_b32 v6, {L_XF}')
        lds_wait('L_xv', 'v7', 'v6', 0, 1, 1)
        for i in range(5):
            a(f'ds_read_b64 v[{10 + 2 * i}:{11 + 2 * i}], v4 offset:{i * 32}')
    a(f'v_and_b32 v1, 3, v0\nv_lshlrev_b32 v5, 7, v2\nv_lshl_add_u32 v5, v1, 3, v5')
    a(f's_mul_i32 {sC}, {sWAVE}, {REG}\nv_add_u32 v5, {sC}, v5')
    a('v_mov_b32 v9, 0xff\nv_lshlrev_b32 v8, 4, v0')
    get_nonce('L_np0', 'v6')
    stamp(2)
    a('s_waitcnt vmcnt(0)')
    stamp(3)
    for qs in ((4,), (0, 1), (2, 3)):
        for T in range(4):
            for q in qs:
                r = 20 + T * 12 + q * 2
                a(f'ds_read_b64_tr_b16 v[{r}:{r + 1}], v5 offset:{q * 2048 + T * 32}')
    a(f's_lshl_b32 {sB}, {sP}, 10\ns_add_u32 {sB}, {sB}, {sQO}')
    a(f's_lshl_b32 {sC}, {sWAVE}, 10\nv_add_u32 v7, {L_ACT}, v8\nv_add_u32 v6, {sC}, v7')
    if XC:
        a(f's_add_u32 {sC}, {sC}, {L_ACT}\nv_and_b32 v6, 0xf0, v8\nv_lshrrev_b32 v3, 4, v0\nv_lshl_add_u32 v6, v3, 2, v6\nv_add_u32 v6, {sC}, v6')
    a(f'v_mov_b32 v3, {L_TAB2 + 508}\nv_mov_b32 v4, 1')
    a('s_waitcnt lgkmcnt(15)')
    for T in range(4):
        r, d = 20 + T * 12, 68 + T * 4
        a(f'v_mfma_f32_16x16x16_bf16 v[{d}:{d + 3}], v[18:19], v[{r + 8}:{r + 9}], 0')
    for kk in range(2):
        a(f's_waitcnt lgkmcnt({8 - 8 * kk})')
        for T in range(4):
            r, d = 20 + T * 12 + 4 * kk, 68 + T * 4
            a(f'v_mfma_f32_16x16x32_bf16 v[{d}:{d + 3}], v[{10 + 4 * kk}:{13 + 4 * kk}], v[{r}:{r + 3}], v[{d}:{d + 3}]')
    if XC:
        a('ds_write2_b32 v6, v68, v72 offset0:0 offset1:64\nds_write2_b32 v6, v76, v80 offset0:128 offset1:192')
    else:
        a('s_mov_b64 exec, 0xffff')
        for T in range(4):
            a(f'ds_write_b128 v6, v[{68 + T * 4}:{71 + T * 4}] offset:{T * 256}')
    a('s_mov_b64 exec, 1\nds_add_rtn_u32 v4, v3, v4\ns_mov_b64 exec, -1')
    a(f's_waitcnt lgkmcnt(0)\nv_readfirstlane_b32 {sA}, v4\ns_nop 1')
    a(f's_cmp_lg_u32 {sA}, 3\ns_cbranch_scc1 L_qc')
    for w in range(4):
        a(f'ds_read_b128 v[{20 + 4 * w}:{23 + 4 * w}], v7 offset:{w * 1024}')
    a('s_waitcnt lgkmcnt(2)')
    a('v_pk_add_f32 v[20:21], v[20:21], v[24:25]\nv_pk_add_f32 v[22:23], v[22:23], v[26:27]')
    a('s_waitcnt lgkmcnt(0)')
    a('v_pk_add_f32 v[28:29], v[28:29], v[32:33]\nv_pk_add_f32 v[30:31], v[30:31], v[34:35]')
    a('v_pk_add_f32 v[36:37], v[20:21], v[28:29]\nv_pk_add_f32 v[38:39], v[22:23], v[30:31]')
    tag(36, 4, 'v9')
    a(f'buffer_store_dwordx4 v[36:39], v8, {SWS}, {sB} offen sc1')
    stamp(4)
    a('s_branch L_qc')
    a('L_nop:')
    a('v_mov_b32 v9, 0xff\nv_lshlrev_b32 v8, 4, v0')
    get_nonce('L_np1', 'v6')
    if exp & 2:
        a('s_branch L_fin')
    if QSL:
        a(f's_sleep {QSL}')
    a('L_qc:')
    a(f'v_mov_b32 v3, {L_FLAG}\nv_mov_b32 v4, 1')
    a(f's_cmp_eq_u32 {sWAVE}, 3\ns_cbranch_scc1 L_role')
    a(f's_lshl_b32 {sB}, {sWAVE}, 11\ns_add_u32 {sB}, {sB}, {sQO}')
    if QS2:
        a(f's_sleep {QS2}')
    if QS3:
        a(f's_branch L_qg\nL_qgs:\ns_sleep {QS3}')
    a('L_qg:')
    for m in range(2):
        a(f'buffer_load_dwordx4 v[{20 + 4 * m}:{23 + 4 * m}], v8, {SWS}, {sB} offen offset:{m * 1024} sc1')
    a('s_waitcnt vmcnt(0)')
    check(20, 8, 'v10', 'L_qg' + ('s' if QS3 else ''), 'L_qgd', sleep=False)
    a(f's_mov_b32 {sD}, 0x80')
    for i in range(8):
        a(f'v_bfi_b32 v{20 + i}, v9, {sD}, v{20 + i}')
    for i in range(4):
        a(f'v_add_f32 v{20 + i}, v{20 + i}, v{24 + i}')
    a('v_cvt_pk_bf16_f32 v20, v20, v21\nv_cvt_pk_bf16_f32 v22, v22, v23')
    a(f's_lshl_b32 {sC}, {sWAVE}, 7\ns_add_u32 {sC}, {sC}, {L_Q}')
    a(f'v_lshl_add_u32 v5, v0, 1, {sC}')
    a('ds_write_b16 v5, v20\nds_write_b16_d16_hi v5, v20 offset:384')
    a('ds_write_b16 v5, v22 offset:768\nds_write_b16_d16_hi v5, v22 offset:1152')
    lds_inc('v3', F_Q, 'v4')
    stamp(5)

    def dma_loop(lab, srd, n, gstep, pl=WOP):
        a(f's_add_u32 {sD}, {sC}, {n * 1024}')
        a(f'{lab}:')
        a(f's_mov_b32 m0, {sC}')
        a(f's_add_u32 {sC}, {sC}, 1024')
        a(f'buffer_load_dwordx4 v2, {srd}, {sB} offen {pl} lds')
        a(f's_add_u32 {sB}, {sB}, {gstep}')
        a(f's_waitcnt vmcnt({WWIN})')
        a(f's_cmp_lt_u32 {sC}, {sD}\ns_cbranch_scc1 {lab}')

    def weights_ready(lab, n=4):
        a('s_waitcnt vmcnt(0)')
        lds_inc('v3', F_W, 'v4')
        lds_wait(lab, 'v12', 'v3', F_W, n, 8)

    def tr_reads(lst):
        for n, (r, va, off) in enumerate(lst):
            if n and n % 12 == 0:
                a('s_waitcnt lgkmcnt(0)')
            a(f'ds_read_b64_tr_b16 v[{r}:{r + 1}], {va} offset:{off}')
        a('s_waitcnt lgkmcnt(0)')

    def batch_top(lab):
        a('s_branch L_pre')
        a(f'{lab}:')
        if early >> ('L_s2b', 'L_s4b', 'L_s5b').index(lab) & 1:
            a(f's_cmp_eq_u32 {sBAT}, 2\ns_cbranch_scc1 L_pre2')
        a(f'{lab}c:')

    def shadow_sleep(lab, n, force=False):
        if n or force:
            a(f's_cmp_eq_u32 {sBAT}, 3\ns_cbranch_scc1 {lab}')
        for i in range(n):
            a('s_sleep 127')

    def s1_setup(sb):
        a(f's_mul_i32 {sA}, {sb}, {PARTP}\ns_add_u32 {sA}, {sA}, {L_PART}')
        a(f'v_and_b32 v51, 31, v0\nv_lshlrev_b32 v54, 4, v51\nv_add_u32 v46, {sA}, v54\nv_mov_b32 v47, {sA}')
        a(f'v_lshl_add_u32 v51, v51, 3, {sA}\nv_mov_b32 v55, 0xffff')
        a(f'v_and_b32 v50, 1, v0\nv_lshlrev_b32 v50, 4, v50\nv_lshrrev_b32 v49, v50, {sT[0]}\nv_sub_u32 v50, 16, v50')
        a(f's_lshl_b32 s83, {sb}, 17\ns_lshl_b32 {sA}, s2, 9\ns_add_u32 s83, s83, {sA}\ns_add_u32 s83, s83, {OP}')

    def wait_flush(lab, split):
        a(f's_cmp_lg_u32 {sBAT}, 3\ns_cbranch_scc1 {lab}d')
        if PAR:
            for r, bit, off in split:
                if r[0] == 's':
                    a(f's_bitcmp1_b32 {sWAVE}, 0\ns_cselect_b32 {sB}, {off}, 0\ns_add_u32 {r}, {r}, {sB}')
                else:
                    a(f'v_bfe_u32 v10, v0, {bit}, 1\nv_mul_u32_u24 v10, {off}, v10\nv_add_u32 {r}, {r}, v10')
        stamp(2)
        lds_wait(lab, 'v10', 'v3', F_FL, 4, FSLP)
        bstamp(6)

    def wait_heads(lab):
        a(f's_cmp_lg_u32 {sBAT}, 3\ns_cbranch_scc1 {lab}x')
        a(f's_mul_i32 {sB}, {sJ}, {FST}\ns_add_u32 {sB}, {sB}, {FLB}\nv_and_b32 v11, 31, v0\nv_lshlrev_b32 v11, 2, v11')
        a(f'{lab}:')
        a(f'buffer_load_dword v10, v11, {SWS}, {sB} offen sc1')
        a(f's_sub_u32 {sSPIN}, {sSPIN}, 1\ns_cbranch_scc1 {lab}d')
        a(f's_waitcnt vmcnt(0)\nv_cmp_ne_u32 vcc, {sT[0]}, v10\ns_cbranch_vccnz {lab}')
        a(f'{lab}d:')
        a(f's_mov_b32 {sSPIN}, {SPIN}')
        if FD:
            a(f's_sleep {FD}')
        stamp(5)
        a(f'{lab}x:')

    def batch_end(lab, incs):
        a('s_mov_b64 exec, -1')
        a(f's_add_u32 {sBAT}, {sBAT}, 1')
        a('v_add_u32 v3, 4, v3')
        for r, d in incs:
            a(f's_add_u32 {r}, {r}, {d}' if r[0] == 's' else f'v_add_u32 {r}, {d}, {r}')
        a(f's_cmp_lt_u32 {sBAT}, 4\ns_cbranch_scc1 {lab}')
        a('s_branch L_fin')

    a('L_role:')
    if exp & 1:
        a('s_branch L_fin')
    for i in range(WSL):
        a('s_sleep 127')
    a(f's_lshl_b32 {sA}, {sJ}, 2\ns_add_u32 {sA}, {sA}, {sH}\ns_and_b32 {sA}, {sA}, 31\ns_mov_b32 {sROLE}, 0')
    a(f's_mul_i32 {sC}, {sWAVE}, {REG}')
    a('v_lshrrev_b32 v5, 1, v0\nv_and_b32 v5, 16, v5\nv_lshrrev_b32 v6, 2, v0\nv_and_b32 v6, 5, v6\nv_and_b32 v7, 8, v0\nv_or3_b32 v6, v5, v6, v7')
    a('v_lshrrev_b32 v5, 4, v0\nv_and_b32 v7, 3, v0')

    def sp_index(v):
        a(f'v_and_b32 {v}, 1, v0\nv_mul_u32_u24 {v}, 0xaaaa, {v}\nv_add_u32 {v}, 0x4444, {v}\nv_lshl_add_u32 {v}, {v}, 16, {v}')

    def a_addr(v, t):
        a(f'v_and_b32 {t}, 1, v0\nv_lshl_add_u32 {t}, v5, 1, {t}\nv_lshlrev_b32 {v}, 4, {t}\nv_add_u32 {v}, {L_ACT}, {v}')

    def smf(d, x, w, ix):
        a(f'v_smfmac_f32_16x16x64_bf16 v[{d}:{d + 3}], v[{x}:{x + 3}], v[{w}:{w + 7}], {ix}')

    def zero(r, n):
        for k in range(n):
            a(f'v_mov_b32 v{r + k}, 0')

    a('v_and_b32 v63, 15, v0\nv_lshlrev_b32 v63, 2, v63')
    a(f's_cmp_eq_u32 {sJ}, {JX}\ns_cbranch_scc1 L_ffn')
    a(f's_mov_b32 {sD}, {sJ}\ns_cmp_lt_u32 {sA}, 10\ns_cbranch_scc1 L_s2')
    a(f's_cmp_lg_u32 {sJ}, {JX ^ 4}\ns_cbranch_scc1 L_idle')
    a(f's_mov_b32 {sD}, {JX}\ns_xor_b32 {sA}, {sA}, 16\ns_cmp_ge_u32 {sA}, 10\ns_cbranch_scc1 L_idle')

    a('L_s2:')
    a(f's_mul_i32 {sOUTA}, {sD}, 2560\ns_lshl_b32 {sB}, {sA}, 8\ns_add_u32 {sOUTA}, {sOUTA}, {sB}')
    a(f's_add_u32 {sOUTA}, {sOUTA}, {HP}')
    a(f's_lshl_b32 {sD}, {sD}, 2\ns_add_u32 {sD}, {sD}, {sWAVE}')
    a(f's_lshl_b32 {sIN}, {sD}, 12\ns_add_u32 {sIN}, {sIN}, {OP + (1 << 17)}')
    if FG:
        a(f's_cmp_eq_u32 {sA}, 0\ns_cselect_b32 {sXO}, 3, 7\ns_lshl_b32 {sACT}, {sD}, 2\ns_add_u32 {sACT}, {sACT}, {FLB}')
        a(f'v_mul_u32_u24 v228, {FST}, v0\nv_mov_b32 v229, {sT[0]}')
    a(f's_mul_i32 {sB}, {sD}, {192 * 1280}\ns_lshl_b32 {sA}, {sA}, 7\ns_add_u32 {sB}, {sB}, {sA}')
    a('v_lshrrev_b32 v2, 3, v0\nv_mul_u32_u24 v2, 1280, v2\nv_and_b32 v1, 7, v0\nv_lshl_add_u32 v2, v1, 4, v2')
    dma_loop('L_dwo', SWO, 24, 8 * 1280)
    a('v_lshlrev_b32 v10, 7, v6\nv_lshl_add_u32 v10, v7, 3, v10')
    a(f's_mul_i32 {sA}, {sWAVE}, {REG}\nv_add_u32 v10, {sA}, v10\ns_waitcnt vmcnt(0)')
    tr_reads([(128 + 24 * T + 4 * s_ + 2 * q, 'v10', s_ * 4096 + q * 256 + T * 32) for T in range(4) for s_ in range(6) for q in range(2)])
    stamp(5)
    a('v_lshlrev_b32 v8, 4, v0\nv_and_b32 v10, 31, v0\nv_lshrrev_b32 v11, 5, v0\nv_lshl_add_u32 v10, v10, 1, v11')
    a(f's_mul_i32 {sA}, {sWAVE}, 384\ns_add_u32 {sA}, {sA}, {L_ACT}')
    a(f'v_lshl_add_u32 v2, v10, 2, {sA}\nv_lshl_add_u32 v7, v10, 1, {sA}')
    a(f'v_and_b32 v10, 1, v0\nv_lshlrev_b32 v11, 4, v10\nv_lshrrev_b32 v224, v11, {sT[0]}\nv_mov_b32 v225, 0xffff')
    a('v_mov_b32 v226, 0x07060302\nv_mov_b32 v227, 0x03020706\nv_cmp_eq_u32 vcc, 1, v10\nv_cndmask_b32 v226, v226, v227, vcc')
    a('v_bfe_u32 v1, v0, 1, 2\nv_lshlrev_b32 v1, 9, v1\nv_add_u32 v1, v1, v11')
    a_addr('v6', 'v10')
    a(f's_sub_u32 {sA}, {sA}, {L_ACT}\nv_add_u32 v6, {sA}, v6')
    sp_index('v230')
    a(f'v_lshlrev_b32 v5, 2, v0\nv_add_u32 v231, {L_ACT + 2048}, v5\ns_lshl_b32 {sA}, {sWAVE}, 8\nv_add_u32 v232, {sA}, v231')
    a(f'v_lshlrev_b32 v10, 3, v0\nv_lshrrev_b32 v227, v10, {sT[0]}')
    batch_top('L_s2b')
    zero(80, 16)
    a(f's_cmp_ge_u32 {sBAT}, 2\ns_cselect_b32 {sA}, 2048, 0\ns_add_u32 {sA}, {sA}, {sIN}')
    wait_flush('L_s2w', [])
    if pp2:
        a(f's_bitcmp0_b32 {pp2}, {sBAT}\ns_cbranch_scc1 L_og')
        a('L_op:')
        a(f'buffer_load_dword v20, v1, {SWS}, {sIN} offen offset:12 sc1')
        a(f'buffer_load_dword v21, v1, {SWS}, {sA} offen offset:12 sc1')
        a('s_waitcnt vmcnt(0)')
        check(20, 2, 'v10', 'L_op', 'L_opd', tags=['v224'], mask='v225')
    if mk & 1:
        gather('L_og', [(f'buffer_load_dwordx4 v[{20 + 4 * m}:{23 + 4 * m}], v8, {SWS}, {sIN if m < 2 else sA} offen offset:{(m % 2) * 1024} sc1', [23 + 4 * m]) for m in range(4)], ['v224'], 'v225', PL2)
        if FG:
            a(f's_cmp_lg_u32 {sXO}, {sBAT}\ns_cbranch_scc1 L_nofl\ns_mov_b64 exec, 0xff')
            a(f'buffer_store_dword v229, v228, {SWS}, {sACT} offen sc1')
            a('s_mov_b64 exec, -1\nL_nofl:')
        for m in range(4):
            a(f'v_mov_b32_dpp v{12 + m}, v{23 + 4 * m} quad_perm:[1,0,3,2] {DPPM}')
    else:
        a('L_og:')
        for m in range(4):
            a(f'buffer_load_dwordx4 v[{20 + 4 * m}:{23 + 4 * m}], v8, {SWS}, {sIN if m < 2 else sA} offen offset:{(m % 2) * 1024} sc1')
        a('s_waitcnt vmcnt(0)')
        for m in range(4):
            a(f'v_mov_b32_dpp v{12 + m}, v{23 + 4 * m} quad_perm:[1,0,3,2] {DPPM}')
        check(23, 4, 'v10', 'L_og', 'L_ogd', tags=['v224'], mask='v225', step=4)
    bstamp(3)
    UP = lambda m, k: 36 + 6 * m + k

    def unp(m):
        for k in range(3):
            a(f'v_lshlrev_b32 v{UP(m, 2 * k)}, 16, v{20 + 4 * m + k}\nv_and_b32 v{UP(m, 2 * k + 1)}, {sHI}, v{20 + 4 * m + k}')
    for m in range(4):
        a(f'v_perm_b32 v{60 + 2 * m}, v{12 + m}, v{23 + 4 * m}, v226')
    a('v_max3_f32 v10, v60, v62, v64\nv_max_f32 v10, v10, v66\nv_mov_b32 v11, v10')
    unp(0)
    a('v_permlane32_swap_b32 v10, v11\nv_max_f32 v10, v10, v11')
    for m in range(4):
        a(f'v_sub_f32 v{60 + 2 * m}, v{60 + 2 * m}, v10')
    for m in range(4):
        a(f'v_exp_f32 v{60 + 2 * m}, v{60 + 2 * m}')
    unp(1)
    a('v_add_f32 v10, v60, v62\nv_add_f32 v11, v64, v66\nv_add_f32 v10, v10, v11\nv_mov_b32 v11, v10')
    unp(2)
    a('v_permlane32_swap_b32 v10, v11\nv_add_f32 v10, v10, v11\nv_rcp_f32 v10, v10')
    unp(3)
    for m in range(4):
        for k in range(3):
            d, x, w = f'v[{12 + 2 * k}:{13 + 2 * k}]', f'v[{UP(m, 2 * k)}:{UP(m, 2 * k + 1)}]', f'v[{60 + 2 * m}:{61 + 2 * m}]'
            a(f'v_pk_fma_f32 {d}, {x}, {w}, {d} op_sel_hi:[1,0,1]' if m else f'v_pk_mul_f32 {d}, {x}, {w} op_sel_hi:[1,0]')
    a('v_permlane32_swap_b32 v12, v14\nv_permlane32_swap_b32 v13, v15\nv_permlane32_swap_b32 v16, v17')
    a('v_add_f32 v12, v12, v14\nv_add_f32 v13, v13, v15\nv_add_f32 v16, v16, v17')
    a('v_mul_f32 v12, v10, v12\nv_mul_f32 v13, v10, v13\nv_mul_f32 v16, v10, v16')
    a('v_cvt_pk_bf16_f32 v12, v12, v13\nv_cvt_pk_bf16_f32 v16, v16, v16')
    a('ds_write_b32 v2, v12\nds_write_b16 v7, v16 offset:256')
    for u in range(3):
        a(f'ds_read_b128 v[{32 + 4 * u}:{35 + 4 * u}], v6 offset:{u * 128}')

    def row_pick(T):
        a(f'v_add_f32_dpp v12, v{80 + 4 * T}, v{81 + 4 * T} quad_perm:[0,1,2,3] row_mask:{1 << T:#x} bank_mask:0xf')
    for T in range(4):
        for u in range(3):
            if T == 0:
                a(f's_waitcnt lgkmcnt({2 - u})')
            smf(80 + 4 * T, 32 + 4 * u, 128 + 24 * T + 8 * u, 'v230')
    for T in range(4):
        row_pick(T)

    def arrive(reads, lab):
        a(f's_mov_b64 exec, 1\nds_add_rtn_u32 v10, v3, v4 offset:{F_ST}\ns_mov_b64 exec, -1')
        for x in reads:
            a(x)
        a(f's_waitcnt lgkmcnt({len(reads)})\nv_cmp_ne_u32 vcc, 3, v10\ns_bitcmp1_b32 vcc_lo, 0\ns_cbranch_scc1 {lab}')
    a('ds_write_b32 v232, v12')
    arrive(['ds_read2st64_b32 v[12:13], v231 offset0:0 offset1:1', 'ds_read2st64_b32 v[14:15], v231 offset0:2 offset1:3'], 'L_s2r')
    a('s_waitcnt lgkmcnt(0)\nv_pk_add_f32 v[12:13], v[12:13], v[14:15]\nv_add_f32 v12, v12, v13\nv_bfi_b32 v12, v9, v227, v12')
    a(f'buffer_store_dword v12, v5, {SWS}, {sOUTA} offen sc1')
    a('L_s2r:')
    bstamp(4)
    a('s_waitcnt lgkmcnt(0)')
    a(f's_mov_b32 {sA}, {1 << 17}\ns_cmp_eq_u32 {sBAT}, 0\ns_cselect_b32 {sA}, 2048, {sA}\ns_cmp_eq_u32 {sBAT}, 1\ns_cselect_b32 {sA}, {(1 << 17) - 2048}, {sA}')
    batch_end('L_s2b', [(sIN, sA), (sOUTA, HPB), ('v231', 1024), ('v232', 1024)])

    a('L_ffn:')
    if RHO:
        a(f's_lshr_b32 {sA}, {sH}, 1\ns_and_b32 {sA}, {sA}, 14\ns_and_b32 {sB}, {sH}, 1\ns_or_b32 {sA}, {sA}, {sB}')
        a(f's_lshl_b32 {sB}, {sH}, 3\ns_and_b32 {sB}, {sB}, 16\ns_or_b32 {sH}, {sA}, {sB}')
    a(f's_cmp_ge_u32 {sH}, 12\ns_cbranch_scc1 L_s5')
    a(f's_mov_b32 {sROLE}, 1')
    WB = lambda T, s_: 96 + 80 * T + 4 * s_
    vTG, vGC, CS, B1R, XR, D0, D1 = 'v60', 'v61', 62, 63, 64, 72, 76
    sROW = 's[30:31]'
    a('v_mul_u32_u24 v2, 3072, v5\nv_and_b32 v1, 15, v0\nv_lshl_add_u32 v2, v1, 4, v2')
    a(f's_lshl_b32 {sA}, {sH}, 2\ns_add_u32 {sA}, {sA}, {sWAVE}')
    a(f's_lshl_b32 {sD}, {sA}, 6\nv_and_b32 v8, 31, v0\nv_lshlrev_b32 v10, 1, v8\nv_lshlrev_b32 v8, 2, v8')
    a(f'buffer_load_ushort v{B1R}, v10, {SB1}, {sD} offen')
    a(f's_lshl_b32 {sOUTA}, {sA}, 7\ns_add_u32 {sOUTA}, {sOUTA}, {AP}')
    a('v_lshlrev_b32 v10, 8, v6\nv_lshl_add_u32 v10, v7, 3, v10')
    a(f's_lshl_b32 {sA}, {sWAVE}, 6\nv_add_u32 v10, {sA}, v10\nv_add_u32 v11, 49152, v10')
    for r in range(2):
        a(f's_lshl_b32 {sB}, {sH}, 8\ns_mul_i32 {sD}, {sWAVE}, {80 * 3072}\ns_add_u32 {sB}, {sB}, {sD}')
        if r:
            a(f's_add_u32 {sB}, {sB}, {320 * 3072}')
        a(f's_mul_i32 {sC}, {sWAVE}, 20480')
        dma_loop(f'L_dw1{r}', SW1, 20, 4 * 3072)
        weights_ready(f'L_wr4{r}', 4 + 8 * r)
        tr_reads([(WB(T, 10 * r + s_) + 2 * q, 'v10' if s_ < 6 else 'v11', (s_ % 6) * 8192 + q * 512 + T * 32) for s_ in range(10) for T in range(2) for q in range(2)])
        if r == 0:
            weights_ready('L_wr4x', 8)
    for k in range(4):
        a(f'v_mov_b32 v{24 + k}, 0x3f803f80')
    for s_ in range(20):
        for T, d in enumerate((D0, D1)):
            a(f'v_mfma_f32_16x16x32_bf16 v[{d}:{d + 3}], v[24:27], v[{WB(T, s_)}:{WB(T, s_) + 3}], {f"v[{d}:{d + 3}]" if s_ else 0}')
    a('s_mov_b32 s30, 0xffff0000\ns_mov_b32 s31, 0xffff0000')
    a(f'v_lshlrev_b32 v{B1R}, 16, v{B1R}')
    a(f'v_cndmask_b32 v{CS}, v{D0}, v{D1}, {sROW}')
    stamp(5)
    a(f'v_lshlrev_b32 v10, 4, v0\nv_lshrrev_b32 {vTG}, v10, {sT[0]}\nv_and_b32 {vTG}, 0xffff, {vTG}')
    a(f'v_mov_b32 {vGC}, {f2u(-2.0 * 0.7978845608028654 * 1.4426950408889634 * 0.044715)}')
    a('v_lshlrev_b32 v1, 4, v0\nv_lshlrev_b32 v7, 3, v0\ns_mov_b32 s48, -1\ns_mov_b32 s49, 0xff')
    a(f's_mul_i32 {sXO}, {sWAVE}, 320\ns_add_u32 {sA}, {sXO}, {L_ACT}\nv_add_u32 v2, {sA}, v7')
    a(f's_lshl_b32 {sIN}, {sXO}, 1\ns_add_u32 {sIN}, {sIN}, {HP}')
    a_addr('v6', 'v10')
    sp_index('v69')
    a(f'v_lshlrev_b32 v5, 2, v0\nv_add_u32 v5, {L_ACT}, v5')
    a(f's_mov_b32 {sC}, 0x3f803f80')
    batch_top('L_s4b')
    zero(D0, 8)
    assert not PAR
    E40 = 's[48:49]'
    M = ['s[8:9]', 's[10:11]', 's[12:13]', 's[14:15]', 's[28:29]', 's[32:33]', 's[34:35]', 's[40:41]']
    VA = ['v1', 'v84', 'v85', 'v86']
    a(f'buffer_load_dwordx2 v[{XR}:{XR + 1}], v7, {SX}, {sXO} offen')
    for k in range(1, 4):
        a(f'v_add_u32 {VA[k]}, {5120 * k}, v1')
    for m in M:
        a(f's_mov_b64 {m}, {E40}')
    a('s_waitcnt vmcnt(0)')
    a(f'v_lshlrev_b32 v{XR + 2}, 16, v{XR + 1}\nv_and_b32 v{XR + 3}, {sHI}, v{XR + 1}\nv_and_b32 v{XR + 1}, {sHI}, v{XR}\nv_lshlrev_b32 v{XR}, 16, v{XR}')
    wait_flush('L_s4w', [])

    def again(lab):
        a(f's_cmp_eq_u32 {sBAT}, 3\ns_cbranch_scc1 {lab}\ns_sleep {SLP}\ns_branch {lab}')

    def acc(d, x, y):
        a(f'v_pk_add_f32 v[{d}:{d + 1}], v[{x}:{x + 1}], v[{y}:{y + 1}]\nv_pk_add_f32 v[{d + 2}:{d + 3}], v[{x + 2}:{x + 3}], v[{y + 2}:{y + 3}]')
    a('L_hg:')
    for j in range(8):
        a(f's_wqm_b64 exec, {M[j]}')
        a(f'buffer_load_dwordx4 v[{24 + 4 * j}:{27 + 4 * j}], {VA[j // 2]}, {SWS}, {sIN} offen offset:{(j % 2) * 2560} sc1')
    a(f's_mov_b64 exec, {E40}\ns_waitcnt vmcnt(0)')
    for k in range(4):
        for j in range(8):
            a(f'v_bitop3_b32 v{10 + j}, v{10 + j}, v{24 + 4 * j + k}, {sT[k]} bitop3:0xf6' if k else f'v_xor_b32 v{10 + j}, {sT[0]}, v{24 + 4 * j}')
    for j in range(8):
        a(f'v_cmp_ne_u32_sdwa {M[j]}, v{10 + j}, v{D0} src0_sel:BYTE_0 src1_sel:DWORD')
    a(f's_mov_b32 {sA}, 0')
    for j in range(8):
        a(f's_cmp_lg_u64 {M[j]}, 0\ns_addc_u32 {sA}, {sA}, {sA}')
    a(f's_bcnt1_i32_b32 {sB}, {sA}\ns_cbranch_scc0 L_hall')
    a(f's_sub_u32 {sSPIN}, {sSPIN}, 1\ns_cbranch_scc1 L_hall')
    a(f's_cmp_le_u32 {sB}, {GF}\ns_cbranch_scc1 L_hone')
    again('L_hg')
    a('L_hall:')
    bstamp(3)
    for d, x, y in ((24, 24, 28), (32, 32, 36), (40, 40, 44), (48, 48, 52), (20, 24, 32), (56, 40, 48)):
        acc(d, x, y)
    a('s_branch L_hsum')
    SL, MS, SO = [56, 88, 92, 80][:GF], ['s[36:37]', 's[38:39]', 's[42:43]', 's[50:51]'], ['s76', 's77', 's78', 's82']
    a('L_hone:')
    for n, r in enumerate(SL):
        a(f's_cmp_lg_u32 {sA}, 0\ns_cselect_b64 {MS[n]}, {E40}, 0\ns_ff1_i32_b32 {sB}, {sA}\ns_bitset0_b32 {sA}, {sB}')
        a(f's_mul_i32 {sB}, {sB}, -2560\ns_add_u32 {sB}, {sB}, {sIN}\ns_add_u32 {SO[n]}, {sB}, {7 * 2560}')
        for k in range(4 if n else 0):
            a(f'v_and_b32 v{r + k}, {sT[k]}, v9')

    def slots():
        for n, r in enumerate(SL):
            a(f's_wqm_b64 exec, {MS[n]}\nbuffer_load_dwordx4 v[{r}:{r + 3}], v1, {SWS}, {SO[n]} offen sc1')
    slots()
    a(f's_mov_b64 exec, {E40}')
    zero(20, 4)
    for j in range(8):
        a(f's_cmp_eq_u64 {M[j]}, 0\ns_cselect_b64 exec, {E40}, 0')
        acc(20, 20, 24 + 4 * j)
    a('s_branch L_honw')
    a('L_hons:')
    a(f's_sub_u32 {sSPIN}, {sSPIN}, 1\ns_cbranch_scc1 L_hsum')
    a(f's_cmp_eq_u32 {sBAT}, 3\ns_cbranch_scc1 L_honl\ns_sleep {SLP}')
    a('L_honl:')
    slots()
    a('L_honw:')
    a(f's_mov_b64 exec, {E40}\ns_waitcnt vmcnt(0)')
    for k in range(4):
        for n, r in enumerate(SL):
            a(f'v_bitop3_b32 v{10 + n}, v{10 + n}, v{r + k}, {sT[k]} bitop3:0xf6' if k else f'v_xor_b32 v{10 + n}, {sT[0]}, v{r}')
    for n in range(GF):
        a(f'v_cmp_ne_u32_sdwa {MS[n]}, v{10 + n}, v{D0} src0_sel:BYTE_0 src1_sel:DWORD')
    if GF > 1:
        acc(24, SL[1], SL[2] if GF > 2 else D0)
    if GF > 3:
        acc(24, 24, SL[3])
    a(f's_or_b64 vcc, {MS[0]}, {MS[1 % GF]}')
    for n in range(2, GF):
        a(f's_or_b64 vcc, vcc, {MS[n]}')
    a('s_cbranch_scc1 L_hons')
    bstamp(3)
    if GF > 1:
        acc(20, 20, 24)
    a('L_hsum:')
    acc(20, 20, 56)
    for k in range(4):
        a(f'v_cvt_pk_bf16_f32 v{20 + k}, 0, v{20 + k}')
    acc(20, 20, XR)
    a('v_cvt_pk_bf16_f32 v20, v20, v21\nv_cvt_pk_bf16_f32 v21, v22, v23')
    a('ds_write_b64 v2, v[20:21]')
    a(f's_mov_b32 {sSPIN}, {SPIN}')
    lds_inc('v3', F_ST, 'v4')
    lds_wait('L_s4s', 'v10', 'v3', F_ST, 4, 0)
    bstamp(1)
    for i in range(5):
        a(f'ds_read_b32 v{XR + i}, v5 offset:{i * 256}')
    AF = lambda u: 24 + 4 * u if u < 9 else 80
    for u in range(10):
        a(f'ds_read_b128 v[{AF(u)}:{AF(u) + 3}], v6 offset:{u * 128}')
    sl = []
    for i in range(5):
        sl.append(f'v_dot2_f32_bf16 v20, v{XR + i}, {sC}, {"v20" if i else 0}')
        sl.append(f'v_dot2_f32_bf16 v22, v{XR + i}, v{XR + i}, {"v22" if i else 0}')
    sl += [None, 'v_permlane32_swap_b32 v20, v22', 'v_add_f32 v20, v20, v22', 'v_mov_b32 v22, v20', None]
    sl += ['v_permlane16_swap_b32 v20, v22', 'v_add_f32 v20, v20, v22', None]
    for m in ('quad_perm:[1,0,3,2]', 'quad_perm:[2,3,0,1]', 'row_half_mirror', 'row_ror:8'):
        sl += [f'v_add_f32_dpp v20, v20, v20 {m} {DPPM}', None]
    sl[-1:] = [f'v_mul_f32 v20, {f2u(1 / 640)}, v20', 'v_mov_b32 v22, v20', None, 'v_permlane32_swap_b32 v20, v22']
    sl += ['v_fma_f32 v22, -v20, v20, v22', 'v_cvt_pk_bf16_f32 v20, 0, v20', 'v_max_f32 v22, 0, v22', 'v_cvt_pk_bf16_f32 v22, 0, v22']
    sl += [f'v_add_f32 v22, {f2u(1e-5)}, v22', 'v_cvt_pk_bf16_f32 v22, 0, v22', 'v_sqrt_f32 v22, v22', None]
    sl += ['v_cvt_pk_bf16_f32 v22, 0, v22', 'v_rcp_f32 v22, v22']

    def fill(n):
        while n and sl:
            x = sl.pop(0)
            if x is None:
                return
            a(x)
            n -= 1
        if sl and sl[0] is None:
            sl.pop(0)
    a('s_waitcnt lgkmcnt(10)')
    fill(4)
    for u in range(10):
        a(f's_waitcnt lgkmcnt({9 - u})')
        for T, d in enumerate((D0, D1)):
            smf(d, AF(u), WB(T, 2 * u), 'v69')
            fill(2)
    while sl:
        fill(9)
    c2 = -2.0 * 0.7978845608028654 * 1.4426950408889634
    a(f's_add_u32 {sA}, {sOUTA}, {32 * APB}\ns_mov_b32 exec_hi, 0\ns_cmp_lg_u32 {sBAT}, 3')
    a(f'v_add_f32 v10, v{D0}, v{D0 + 1}\nv_add_f32 v11, v{D1}, v{D1 + 1}\nv_cndmask_b32 v10, v10, v11, {sROW}')
    a(f'v_fma_f32 v10, -v20, v{CS}, v10\nv_mul_f32 v10, v22, v10')
    a(f'v_cvt_pk_bf16_f32 v10, 0, v10\nv_add_f32 v10, v10, v{B1R}\nv_cvt_pk_bf16_f32 v10, 0, v10')
    a(f'v_mul_f32 v11, v10, v10\nv_fmaak_f32 v11, {vGC}, v11, {f2u(c2)}\nv_mul_f32 v11, v11, v10')
    a('v_exp_f32 v11, v11\nv_add_f32 v11, 1.0, v11\nv_rcp_f32 v11, v11\nv_mul_f32 v10, v10, v11')
    a(f'v_cvt_pk_bf16_f32 v10, 0, v10\nv_or_b32 v10, {vTG}, v10')
    if W4S & 2:
        a('s_cbranch_scc1 L_s4q')
    if NOA or not W4S & 2:
        a('s_branch L_s4p' if NOA else 's_cbranch_scc1 L_s4p')
    a(f'buffer_store_dword v10, v8, {SWS}, {sA} offen {AM}')
    a('L_s4p:')
    a(f'buffer_store_dword v10, v8, {SWS}, {sOUTA} offen sc1')
    a('L_s4r:')
    bstamp(4)
    batch_end('L_s4b', [(sIN, copy_off(RC2, 4 * HPB, HPB)), (sOUTA, APB), (sXO, 1280), ('v2', 1536), ('v5', 1536), ('v6', 1536)])

    a('L_s5:')
    a(f's_mov_b32 {sROLE}, 2\ns_sub_u32 {sA}, {sH}, 12')
    a(f's_lshl_b32 {sXO}, {sA}, 6\ns_lshl_b32 {sIN}, {sA}, 7\ns_add_u32 {sIN}, {sIN}, {HP}')
    a(f's_mul_i32 {sACT}, {sWAVE}, 1536\ns_add_u32 {sACT}, {sACT}, {AP}')
    a('v_lshrrev_b32 v2, 2, v0\nv_mul_u32_u24 v2, 1280, v2\nv_lshl_add_u32 v2, v7, 4, v2')
    a(f's_mul_i32 {sB}, {sWAVE}, {384 * 1280}\ns_add_u32 {sB}, {sB}, {sXO}')
    a('v_lshlrev_b32 v10, 6, v6\nv_lshl_add_u32 v10, v7, 3, v10')
    a(f'v_add_u32 v12, {sC}, v10')
    dma_loop('L_dw2', SW2, 24, 16 * 1280, W2P)
    a('v_lshrrev_b32 v1, 3, v0\nv_mul_u32_u24 v1, 2560, v1\nv_and_b32 v10, 7, v0\nv_lshl_add_u32 v1, v10, 4, v1')
    a('v_lshlrev_b32 v7, 3, v10\nv_lshl_add_u32 v7, v5, 1, v7')
    a(f'buffer_load_dword v67, v63, {SB2}, {sXO} offen')
    a('v_bfe_u32 v2, v0, 1, 3\nv_min_u32 v2, 5, v2\nv_lshl_add_u32 v2, v2, 2, v5\nv_and_b32 v10, 1, v0\nv_lshl_add_u32 v2, v2, 1, v10\nv_lshlrev_b32 v2, 5, v2')
    sp_index('v60')
    a(f's_lshl_b32 {sA}, {sWAVE}, 7\ns_add_u32 {sA}, {sA}, {L_ACT}')
    a(f'v_add_u32 v5, {sA}, v63')
    a(f'v_lshlrev_b32 v6, 1, v63\nv_add_u32 v6, {L_ACT}, v6')
    a(f'v_lshlrev_b32 v62, 1, v7\nv_add_u32 v62, {L_ACT + 4096}, v62\nv_add_u32 v61, 4096, v6')
    a(f'v_mov_b32 v8, 0xffff\ns_mov_b32 {sC}, 0x07060302')
    a('s_waitcnt vmcnt(0)')
    tr_reads([(128 + 16 * (s_ >> 1) + 8 * T + 4 * (s_ & 1) + 2 * q, 'v12', s_ * 2048 + q * 128 + T * 32) for s_ in range(12) for T in range(2) for q in range(2)])
    a(f'v_lshlrev_b32 v66, 16, v67\nv_and_b32 v67, {sHI}, v67')
    stamp(5)

    def red_rows(b):
        a(f'v_permlane16_swap_b32 v{b}, v{b + 1}\nv_permlane16_swap_b32 v{b + 2}, v{b + 3}')
        a(f'v_add_f32 v{b}, v{b}, v{b + 1}\nv_add_f32 v{b + 2}, v{b + 2}, v{b + 3}')
        a(f'v_permlane32_swap_b32 v{b}, v{b + 2}')
        a(f'v_add_f32 v{b}, v{b}, v{b + 2}')
        a(f'v_add_f32_dpp v{b}, v{b}, v{b} row_ror:8 {DPPM}')

    batch_top('L_s5b')
    zero(12, 8)
    a(f's_cmp_eq_u32 {sBAT}, 3\ns_cselect_b32 {sOUTA}, {32 * APB if LOC else 0}, 0\ns_add_u32 {sOUTA}, {sOUTA}, {sACT}')
    wait_flush('L_s5w', [('v1', 2, 32 * HPB)])
    a(f's_cmp_lg_u32 {sWAVE}, 0\ns_cbranch_scc1 L_h5w')
    a(f'buffer_load_ushort v64, v7, {SX}, {sXO} offen')
    if FG:
        wait_heads('L_f5')
        a(f's_cmp_lg_u32 {sBAT}, 3\ns_cbranch_scc1 L_h5')
        lds_inc('v3', F_H, 'v4')
        a('v_mov_b32 v4, 0')
    if hsl:
        a(f's_cmp_lg_u32 {sBAT}, 0\ns_cbranch_scc1 L_h5')
        for i in range(hsl):
            a('s_sleep 127')
    a('L_h5:')
    a(f'buffer_load_dwordx4 v[20:23], v1, {SWS}, {sIN} offen sc1 {pnt}')
    a('s_waitcnt vmcnt(0)')
    check(20, 4, 'v10', 'L_h5', 'L_h5d')
    bstamp(3)
    red_rows(20)
    a('v_lshlrev_b32 v64, 16, v64\nv_cvt_pk_bf16_f32 v20, 0, v20\nv_add_f32 v64, v64, v20\nv_cvt_pk_bf16_f32 v64, 0, v64')
    a('ds_write_b32 v62, v64')
    lds_inc('v3', F_H, 'v4')
    if FG:
        a(f'v_mov_b32 v4, 1\ns_cmp_lg_u32 {sBAT}, 3\ns_cbranch_scc1 L_h5w')
        a(f's_sleep {max(YF - YW, 0)}\ns_branch L_y5')
    lds_wait('L_h5w', 'v10', 'v3', F_H, 1, 1 if FG else FSLP)
    a('ds_read_b64 v[64:65], v61')
    a(f's_sleep {YF if FG else YS3}')
    if mk & 4:
        gather('L_y5', [(f'buffer_load_dwordx4 v[{32 + 4 * i}:{35 + 4 * i}], v2, {SWS}, {sOUTA} offen offset:{16 * i} sc1', range(32 + 4 * i, 36 + 4 * i)) for i in range(2)], [sT[0], sT[2]], 'v8', PL5, (sOUTA, sACT))
        for k in range(4):
            a(f'v_perm_b32 v{28 + k}, v{33 + 2 * k}, v{32 + 2 * k}, {sC}')
    else:
        a('L_y5:')
        a(f'buffer_load_dwordx4 v[20:23], v2, {SWS}, {sACT} offen sc1 {pnt}')
        a(f'buffer_load_dwordx4 v[24:27], v2, {SWS}, {sACT} offen offset:16 sc1 {pnt}')
        a('s_waitcnt vmcnt(0)')
        for k in range(4):
            a(f'v_perm_b32 v{28 + k}, v{21 + 2 * k}, v{20 + 2 * k}, {sC}')
        check(20, 8, 'v10', 'L_y5', 'L_y5d', tags=[sT[0], sT[2]], mask='v8')
    bstamp(4)

    mv = [f'v_mov_b32_dpp v{68 + 4 * u + k}, v{28 + k} row_shl:{2 * u} {DPPM}' for u in range(1, 6) for k in range(4)]
    for u in range(6):
        for T in range(2):
            smf(12 + 4 * T, 68 + 4 * u if u else 28, 128 + 16 * u + 8 * T, 'v60')
            for k in range(4 if (u, T) == (0, 0) else 2):
                if mv:
                    a(mv.pop(0))
    a('s_mov_b64 exec, 0xffff')
    a('v_add_f32 v12, v12, v13\nv_add_f32 v16, v16, v17')
    a('ds_write2_b32 v5, v12, v16 offset0:0 offset1:16')
    arrive(['ds_read2_b64 v[20:23], v6 offset0:0 offset1:16', 'ds_read2_b64 v[24:27], v6 offset0:32 offset1:48'], 'L_s5e')
    a('s_mov_b64 exec, 0xffff')
    a('s_waitcnt lgkmcnt(1)\nv_pk_add_f32 v[20:21], v[20:21], v[22:23]')
    a('s_waitcnt lgkmcnt(0)\nv_pk_add_f32 v[24:25], v[24:25], v[26:27]\nv_pk_add_f32 v[20:21], v[20:21], v[24:25]')
    a('v_cvt_pk_bf16_f32 v20, 0, v20\nv_cvt_pk_bf16_f32 v21, 0, v21\nv_pk_add_f32 v[20:21], v[20:21], v[66:67]')
    a('v_cvt_pk_bf16_f32 v20, 0, v20\nv_cvt_pk_bf16_f32 v21, 0, v21\nv_pk_add_f32 v[20:21], v[20:21], v[64:65]')
    a('v_cvt_pk_bf16_f32 v20, v20, v21')
    a(f'buffer_store_dword v20, v63, {SOUT}, {sXO} offen {OUM}')
    if dbt:
        a(f's_cmp_lg_u32 {sBAT}, 3\ns_cbranch_scc1 L_s5e')
        dstamp(10)
        a('s_mov_b64 exec, 1\nv_mov_b32 v254, s62\nv_sub_u32 v254, 0, v254')
        a(f'buffer_atomic_umax v254, v255, {SDBG}, 0 offen offset:16 sc1')
    a('L_s5e:')
    a('s_waitcnt lgkmcnt(0)')
    batch_end('L_s5b', [(sIN, copy_off(RC2, 4 * HPB, HPB)), (sACT, copy_off(RC4, 4 * APB, APB)), (sXO, 1280), ('v5', 512), ('v6', 512), ('v61', 128), ('v62', 128)])

    a('L_idle:')
    a(f's_mov_b32 {sROLE}, 3')
    a(f's_cmp_lg_u32 {sWAVE}, 3\ns_cbranch_scc1 L_fin')
    a('L_pre:')
    if exp & 4:
        a('s_branch L_fin')
    if exp & 56:
        lim = 0 if exp & 8 else 1 if exp & 16 else 2
        a(f's_cmp_ge_u32 {sROLE}, {lim}\ns_cselect_b32 {sROLE}, 3, {sROLE}')
    a(f's_mov_b32 {sBAT}, 0\ns_mov_b32 {sPH}, 1')
    lds_wait('L_pre1', 'v10', 'v3', F_FL + 4, 4, 16)
    a(f's_cmp_lg_u32 {sWAVE}, 3\ns_cbranch_scc1 L_pre4')
    a('L_pre3:')
    s1_setup(sPH)
    a('v_mov_b32 v56, 3')
    a('s_branch L_s1')
    a('L_pre4:')
    a(f's_bitcmp1_b32 {early}, {sROLE}\ns_cbranch_scc1 L_disp')
    a('L_pre2:')
    a(f'v_mov_b32 v11, {L_FLAG}\ns_mov_b32 {sPH}, 2')
    lds_wait('L_pre5', 'v10', 'v11', F_FL + 8, 4, 16)
    a(f's_cmp_eq_u32 {sWAVE}, 3\ns_cbranch_scc1 L_pre3')
    a('L_disp:')
    for k, lab in enumerate(('L_s2bc', 'L_s4bc', 'L_s5bc')):
        a(f's_cmp_eq_u32 {sROLE}, {k}\ns_cbranch_scc1 {lab}')
    a('s_branch L_fin')

    Q, ACC, AD, S, P, TM, RING, EXT0, EXT1, AD2 = 8, 20, 44, 52, 56, 64, 68, 116, 164, 212
    vMC, vL = 'v6', 'v7'
    s = [f'v{S + t}' for t in range(4)]
    t0, t1, t2, t3 = [f'v{TM + i}' for i in range(4)]

    def ld_tile(t, srd, soff, base=RING):
        for i in range(3):
            r = base + t * 12 + i * 4
            if TI:
                a(f'buffer_load_dwordx4 v[{r}:{r + 3}], v{(1, 2, 252, 253)[t]}, {srd}, {soff} offen offset:{i * 128} {pol}')
            else:
                a(f'buffer_load_dwordx4 v[{r}:{r + 3}], v{1 + t // 2}, {srd}, {soff} offen offset:{(t % 2) * 3072 + i * 128} {pol}')

    def reset_state():
        for i in range(24):
            a(f'v_mov_b32 v{ACC + i}, 0')
        a(f'v_mov_b32 {vL}, 0\nv_mov_b32 {vMC}, 0xff7fffff')

    def load_q(va='v5'):
        for i in range(3):
            a(f'ds_read_b128 v[{Q + 4 * i}:{Q + 4 * i + 3}], {va} offset:{i * 128}')

    def kdot(t, base, ad):
        for k in range(12):
            acc = f'v{ad + 2 * t + k % 2}'
            a(f'v_dot2_f32_bf16 {acc}, v{base + t * 12 + k}, v{Q + k}, {acc if k >= 2 else 0}')

    def vdot(t, base):
        for k in range(12):
            for hl in range(2):
                a(f'v_dot2c_f32_bf16 v{ACC + (k // 4) * 8 + (k % 4) * 2 + hl}, v{base + t * 12 + k}, v{P + 2 * t + hl}')

    def softmax4(ad):
        score4(ad, t0, t1)
        weigh4(t0, t1)

    def score4(ad, d0, d1):
        for t in range(4):
            a(f'v_add_f32 {s[t]}, v{ad + 2 * t}, v{ad + 2 * t + 1}')
        for mode in ('quad_perm:[1,0,3,2]', 'quad_perm:[2,3,0,1]', 'row_half_mirror'):
            for t in range(4):
                a(f'v_add_f32_dpp {s[t]}, {s[t]}, {s[t]} {mode} {DPPM}')
        a(f'v_cvt_pk_bf16_f32 {d0}, {s[0]}, {s[1]}\nv_cvt_pk_bf16_f32 {d1}, {s[2]}, {s[3]}')
        unpack4(d0, d1)
        for t in range(4):
            a(f'v_mul_f32 {s[t]}, {f2u(192 ** -0.5)}, {s[t]}')
        a(f'v_cvt_pk_bf16_f32 {d0}, {s[0]}, {s[1]}\nv_cvt_pk_bf16_f32 {d1}, {s[2]}, {s[3]}')

    def unpack4(d0, d1):
        a(f'v_lshlrev_b32 {s[0]}, 16, {d0}\nv_and_b32 {s[1]}, {sHI}, {d0}')
        a(f'v_lshlrev_b32 {s[2]}, 16, {d1}\nv_and_b32 {s[3]}, {sHI}, {d1}')

    def weigh4(d0, d1):
        unpack4(d0, d1)
        a(f'v_max3_f32 {t0}, {s[0]}, {s[1]}, {s[2]}\nv_max_f32 {t0}, {t0}, {s[3]}')
        a(f'v_mul_f32 {t0}, {sLOG2E}, {t0}\nv_max_f32 {t0}, {t0}, {vMC}')
        a(f'v_sub_f32 {t2}, {vMC}, {t0}\nv_mov_b32 {vMC}, {t0}')
        for t in range(4):
            a(f'v_fma_f32 {s[t]}, {s[t]}, {sLOG2E}, -{t0}')
        a(f'v_exp_f32 {t2}, {t2}')
        for t in range(4):
            a(f'v_exp_f32 {s[t]}, {s[t]}')
        for i in range(12):
            a(f'v_pk_mul_f32 v[{ACC + 2 * i}:{ACC + 2 * i + 1}], v[{ACC + 2 * i}:{ACC + 2 * i + 1}], v[{TM + 2}:{TM + 3}] op_sel_hi:[1,0]')
        for t in range(4):
            a(f'v_cvt_pk_bf16_f32 v{P + 2 * t}, {s[t]}, 0')
        for t in range(4):
            a(f'v_lshlrev_b32 v{P + 2 * t + 1}, 16, v{P + 2 * t}')
        a(f'v_fma_f32 {vL}, {vL}, {t2}, v{P + 1}')
        a(f'v_add_f32 {t0}, v{P + 3}, v{P + 5}\nv_add_f32 {vL}, {vL}, v{P + 7}\nv_add_f32 {vL}, {vL}, {t0}')

    def ld_one(slot, srd, soff):
        for i in range(3):
            r = RING + slot * 12 + i * 4
            a(f'buffer_load_dwordx4 v[{r}:{r + 3}], v1, {srd}, {soff} offen offset:{i * 128} {pol}')

    def claim(v, off):
        a(f'v_mov_b32 {v}, 1\ns_mov_b64 exec, 1')
        a(f'buffer_atomic_add {v}, v3, {SWS}, 0 offen offset:{off} sc0 sc1')
        a('s_mov_b64 exec, -1')

    def softmax1(t):
        x = s[0]
        a(f'v_add_f32 {x}, v{AD + 2 * t}, v{AD + 2 * t + 1}')
        for mode in ('quad_perm:[1,0,3,2]', 'quad_perm:[2,3,0,1]', 'row_half_mirror'):
            a(f'v_add_f32_dpp {x}, {x}, {x} {mode} {DPPM}')
        a(f'v_cvt_pk_bf16_f32 {x}, 0, {x}\nv_mul_f32 {x}, {f2u(192 ** -0.5)}, {x}\nv_cvt_pk_bf16_f32 {x}, 0, {x}')
        a(f'v_mul_f32 {t0}, {sLOG2E}, {x}\nv_max_f32 {t0}, {t0}, {vMC}')
        a(f'v_sub_f32 {t2}, {vMC}, {t0}\nv_mov_b32 {vMC}, {t0}')
        a(f'v_fma_f32 {x}, {x}, {sLOG2E}, -{t0}')
        a(f'v_exp_f32 {t2}, {t2}\nv_exp_f32 {x}, {x}')
        for i in range(12):
            a(f'v_pk_mul_f32 v[{ACC + 2 * i}:{ACC + 2 * i + 1}], v[{ACC + 2 * i}:{ACC + 2 * i + 1}], v[{TM + 2}:{TM + 3}] op_sel_hi:[1,0]')
        p = P + 2 * (t + 1)
        a(f'v_cvt_pk_bf16_f32 v{p}, {x}, 0\nv_cvt_pk_bf16_f32 v{p + 1}, 0, {x}')
        a(f'v_fma_f32 {vL}, {vL}, {t2}, v{p + 1}')

    assert SMALL % 4 == 0
    NBIG = 1024 - 8 - SMALL // 4
    assert 16 <= NSTAT and NSTAT * 32 <= NBIG
    vCA, vCB, vFL, vB, vT, vE, vE2, vONE = 'v220', 'v221', 'v222', 'v223', 'v224', 'v225', 'v226', 'v227'
    sTA, sTB, sLD, sROT = 's76', 's77', 's78', 's79'

    pK, pV, sKM, sSL, sLO, sHF, sSH = 's[24:25]', 's[26:27]', 's28', 's29', 's30', 's31', 's32'
    sQB, sS0, sS1 = 's33', 's34', 's35'
    assert not PH or (RH % 2 == 0 and all(r % 2 == 0 for r in RB) and P16 and PS and EN and not PM and NSTAT >= 24 + 2 * PH3 and PH3 <= 4)

    def item_addr(dst, sid, snb, ph=False):
        a(f's_lshr_b32 {snb}, {sid}, 8')
        if ph:
            nstamp[0] += 1
            n = nstamp[0]
            a(f's_and_b32 {sid}, {sid}, 255\ns_cmp_lt_u32 {snb}, 2\ns_cselect_b32 {sLO}, {0 if PHP else 32}, 0\ns_cselect_b32 {sHF}, {8 if PHP else 7}, 8')
            a(f's_cselect_b32 {sSH}, 4, 5\ns_cselect_b32 {sSL}, 0, 32\ns_lshl_b32 {sHF}, {sHF}, 4')
            a(f's_cmp_eq_u32 {snb}, 3\ns_cbranch_scc0 L_ph{n}')
            if PH3:
                a(f's_mov_b32 {sHF}, {32 * PH3}\ns_mov_b32 {sSL}, 48\ns_cmp_lt_u32 {sid}, {64 * PH3}\ns_cbranch_scc1 L_ph{n}')
            a(f's_mov_b32 {sKM}, 0\ns_mov_b64 s[8:9], {pK}\ns_mov_b64 s[12:13], {pV}\ns_branch L_phd{n}')
            a(f'L_ph{n}:\ns_sub_u32 {sid}, {sid}, {sLO}\ns_cmp_ge_u32 {sid}, {sHF}')
            a(f's_cselect_b64 s[8:9], {pV}, {pK}\ns_cselect_b32 {sKM}, 2, 1\ns_cselect_b32 {sHF}, {sHF}, 0')
            a(f's_sub_u32 {sid}, {sid}, {sHF}\ns_add_u32 s12, s8, {4 * ITEM if TI else ITEM}\ns_addc_u32 s13, s9, 0')
            a(f's_lshr_b32 {sHF}, {sid}, {sSH}\ns_lshl2_add_u32 {sSL}, {sHF}, {sSL}\ns_and_b32 {sHF}, {sid}, 3\ns_add_u32 {sSL}, {sSL}, {sHF}')
            if PC:
                assert PHP
                a(f's_lshr_b32 {sS0}, {sid}, {sSH}\ns_lshl2_add_u32 {sHF}, {sS0}, {sHF}\ns_lshl_b32 {sS0}, {sS0}, {sSH}\ns_sub_u32 {sid}, {sid}, {sS0}')
                a(f's_lshr_b32 {sid}, {sid}, 2\ns_lshl_b32 {sS0}, {snb}, 3\ns_lshr_b32 {sS0}, {0x102020 + (4 * PH3 << 24):#x}, {sS0}\ns_and_b32 {sS0}, {sS0}, 255')
                a(f's_mul_i32 {sid}, {sid}, {sS0}\ns_add_u32 {sid}, {sid}, {sHF}')
            a(f's_lshl1_add_u32 {sid}, {sid}, {sLO}')
            if TI:
                a(f's_sub_u32 {sid}, {sid}, {sHF}')
            a(f'L_phd{n}:')
        if PM:
            nstamp[0] += 1
            a(f's_cmp_eq_u32 {snb}, 3\ns_cbranch_scc1 L_pm{nstamp[0]}\ns_and_b32 {dst}, {sid}, 3')
            if PM == 1:
                a(f's_bfe_u32 {sB}, {sid}, 0x60002\ns_mul_i32 {sB}, {sB}, 65\ns_lshr_b32 {sid}, {snb}, 1\ns_add_u32 {sid}, {sid}, 2')
                a(f's_lshr_b32 {sB}, {sB}, {sid}\ns_lshl_b32 {sid}, {sB}, 2\ns_or_b32 {sid}, {sid}, {dst}')
            else:
                a(f's_mul_i32 {sB}, {sH}, {PMH}\ns_add_u32 {sB}, {sB}, {PMM}\ns_sub_u32 {sid}, {sid}, {dst}')
                a(f's_mul_i32 {sid}, {sid}, {sB}\ns_add_u32 {sid}, {sid}, {dst}')
            a(f'L_pm{nstamp[0]}:')
        if PC and not ph:
            a(f's_bfe_u32 {sS0}, {sid}, 0x20002\ns_bfe_u32 {sS1}, {sid}, 0x10004\ns_and_b32 {sid}, {sid}, 3')
            a(f's_lshl2_add_u32 {sid}, {sS1}, {sid}\ns_lshl_b32 {sS0}, {sS0}, 5\ns_add_u32 {sid}, {sid}, {sS0}')
        if PHP and not ph:
            a(f's_and_b32 {sS0}, {sid}, -4\ns_add_u32 {sid}, {sid}, {sS0}' if TI else f's_lshl_b32 {sid}, {sid}, 1')
        a(f's_add_u32 {sid}, {sid}, {sROT}')
        if any(RB):
            a(f's_lshl_b32 {sB}, {snb}, 3\ns_lshr_b32 {sB}, {sum(r << 8 * k for k, r in enumerate(RB)):#x}, {sB}\ns_add_u32 {sid}, {sid}, {sB}')
        if TI:
            a(f's_and_b32 {sS0}, {sid}, 3\ns_mul_i32 {sS0}, {sS0}, 3072\ns_and_b32 {sid}, {sid}, 252\ns_mul_i32 {sid}, {sid}, {ITEM}')
            a(f's_add_u32 {sid}, {sid}, {sS0}\ns_mul_i32 {sB}, {snb}, {BSTR}')
        else:
            a(f's_and_b32 {sid}, {sid}, 255\ns_mul_i32 {sid}, {sid}, {ITEM}\ns_mul_i32 {sB}, {snb}, {BSTR}')
        a(f's_add_u32 {dst}, {sHB}, {sid}\ns_add_u32 {dst}, {dst}, {sB}')


    def draw(off, n=vONE):
        a(f's_mov_b64 exec, 1\nds_add_rtn_u32 {vT}, {vB}, {n} offset:{off}\ns_mov_b64 exec, -1')

    def publish(v, add):
        a(f's_mov_b64 exec, 1\nv_lshlrev_b32 {v}, 2, {v}\nv_add_u32 {v}, {add}, {v}\nds_write_b32 {vE}, {v}\ns_mov_b64 exec, -1')

    spins = []

    def resolve(lab, st):
        a(f's_cmp_eq_u32 {sA}, 0\ns_cbranch_scc1 {lab}')
        a(f'{lab}r:')
        a(f's_and_b32 {sB}, {st}, 3\ns_add_u32 {sA}, {sA}, {sB}\ns_sub_u32 {sA}, {sA}, 1')
        spins.append(lab)

    a('L_stream:')
    if EN:
        kload('V', 'DBG', 'WS')
        a('s_memrealtime s[62:63]')
        srd('K')
    a('v_lshrrev_b32 v1, 3, v0\nv_mul_u32_u24 v1, 384, v1\nv_and_b32 v5, 7, v0\nv_lshlrev_b32 v5, 4, v5\nv_add_u32 v1, v1, v5')
    if TI:
        assert PHP and RH % 8 == 0 and all(r % 8 == 0 for r in RB)
        a(f'v_add_u32 v2, {ITEM}, v1\nv_add_u32 v252, {2 * ITEM}, v1\nv_add_u32 v253, {3 * ITEM}, v1')
    a(f's_sub_u32 {sA}, {sWAVE}, 4')
    a(f's_mul_i32 {sHB}, {sH}, {PROB}')
    a(f's_lshl_b32 {sC}, {sJ}, 2\ns_add_u32 {sC}, {sC}, {sA}\ns_mul_i32 {sROT}, {sH}, {RH}')
    a(f's_lshr_b32 {sD}, {sJ}, 2\ns_mul_i32 {sD}, {sD}, 240\ns_add_u32 {sD}, {sD}, {sC}\ns_add_u32 {sST}, {sD}, 16')
    item_addr(sNEXT, sD, sCB)

    K0B = lambda t: (ACC if t < 2 else 228 - 24) if P16 else EXT0

    def rest():
        a('v_mov_b32 v4, 0' if TI else 'v_add_u32 v2, 6144, v1\nv_mov_b32 v4, 0')
        a(f's_add_u32 {sTB}, {sST}, 16')
        item_addr(sCUR, sST, sCB)
        a(f's_mov_b32 {sSB}, {sC}')
        a(f's_mul_i32 {sC}, {sH}, {CTS}\ns_add_u32 {sC}, {sC}, {CT}\nv_mov_b32 v3, {sC}')
        a(f's_mul_i32 {sB}, {sCB}, 384\ns_add_u32 {sB}, {sB}, {L_Q}')
        a(f'v_add_u32 v5, {sB}, v5\nv_mov_b32 {vFL}, {L_FLAG + 4}\nv_mov_b32 {vB}, {L_FLAG}\nv_mov_b32 {vONE}, 1')
        a(f's_mul_i32 {sPB}, {sA}, {4 * PARTP}\ns_add_u32 {sPB}, {sPB}, {L_PART + PARTP}')
        a(f's_mov_b32 {sMODE}, 2')
    if EN:
        a(f's_cmp_lg_u32 {sWAVE}, 7\ns_cbranch_scc1 L_noi')
        a(f's_cmp_lg_u32 s2, {NWG}\ns_cbranch_scc1 L_non')
        srd('DBG')
        nonce_store(sB, 'v8', 'v9')
        a('L_non:')
        lds_init(12, sB, sD)
        a('L_noi:')
        if PT:
            a(f's_cmp_lg_u32 {sWAVE}, 6\ns_cbranch_scc1 L_nopt')
            srd('WS')
            a(f'v_lshrrev_b32 v8, 2, v0\nv_lshlrev_b32 v8, 17, v8\nv_and_b32 v9, 3, v0\nv_lshl_add_u32 v8, v9, 7, v8')
            a(f's_lshl_b32 {sB}, s2, 9\ns_add_u32 {sB}, {sB}, {OP + (1 << 17)}\nv_add_u32 v8, {sB}, v8\nv_lshlrev_b32 v9, 7, v0')
            for lo, mul, base in ((12, 768, QP), (18, 384, HP), (21, 128, AP)):
                a(f's_mul_i32 {sB}, s2, {mul}\ns_add_u32 {sB}, {sB}, {(base - lo * 128) & 0xffffffff}\nv_add_u32 v10, {sB}, v9')
                a(f'v_cmp_le_u32 vcc, {lo}, v0\nv_cndmask_b32 v8, v8, v10, vcc')
            a(f's_waitcnt lgkmcnt(0)\ns_mov_b64 exec, {(1 << 22) - 1 if PT == 1 else PT:#x}')
            a(f'buffer_load_dword v9, v8, {SWS}, 0 offen {PTM}')
            a('s_mov_b64 exec, -1\nL_nopt:')
    else:
        rest()
    a('s_waitcnt lgkmcnt(0)')
    if FS:
        stamp(3)
    pf = [(t, SK, sNEXT, K0B(t)) for t in range(4)]
    grp = [(SV, sNEXT, EXT1), (SK, sCUR, RING)]
    for srd_, so, base in (grp[::-1] if PO == 1 else grp) + ([(SV, sCUR, EXT0)] if P16 else []):
        pf += [(t, srd_, so, base) for t in range(4)]
    if PO == 2:
        pf.insert(1, pf.pop(4))
    for n, (t, srd_, so, base) in enumerate(pf):
        if n == PRE:
            a('s_barrier')
            if PSL:
                a(f's_sleep {PSL}')
        if EN and n == 1:
            srd('V')
            if PHP:
                a(f's_mov_b64 {pK}, s[8:9]\ns_mov_b64 {pV}, s[12:13]\ns_add_u32 s12, s8, {4 * ITEM if TI else ITEM}\ns_addc_u32 s13, s9, 0')
            if KVX:
                a(f's_mov_b64 s[100:101], s[12:13]\ns_add_u32 s12, s8, {2 * BSTR}\ns_addc_u32 s13, s9, 0\ns_mov_b32 s14, {2 * BSTR}')
        if EN and n == 2:
            rest()
            srd('WS')
            consts()
        if n == 4 and not P16:
            reset_state()
        if 3 * n > PWIN:
            a(f's_waitcnt vmcnt({PWIN})')
            if FS and n == 2:
                stamp(1)
        if FS and n == 0:
            stamp(4)
        ld_tile(t, srd_, so, base)
    if P16:
        if PH:
            if not PHP:
                a(f's_mov_b64 {pK}, s[8:9]\ns_mov_b64 {pV}, s[12:13]')
            a(f's_mov_b32 {sQB}, {sCB}')
        item_addr(sCUR, sTB, sNB, PH)
    if not FS:
        stamp(3)
    if not noq:
        lds_wait('L_wqs', t0, vB, F_Q, 3, 1)
    if not FS:
        stamp(1)
    load_q()
    get_nonce('L_nps', t0)

    def take_ticket():
        a(f's_waitcnt lgkmcnt(0)\nv_readfirstlane_b32 {sST}, {vT}')
        a(f'v_and_b32 {vE}, -4, {vT}\nv_add_u32 {vE}, {L_TAB + 12}, {vE}')

    def step(n, comp, issue):
        if ISS[n] == 'b':
            issue()
        comp()
        if ISS[n] == 'a':
            issue()

    if P16:
        def pace(t):
            a('s_waitcnt vmcnt(3)')
            ld_tile(t, SK, sCUR)
        kdot(0, RING, AD)
        pace(0)
        for t in range(1, 4):
            kdot(t, RING, AD)
        for t in range(4):
            kdot(t, K0B(t), AD2)
        reset_state()
        pace(1)
        if PHP:
            a(f's_lshl_b32 {sA}, {sWAVE}, 7\ns_add_u32 {sA}, {sA}, {L_SC - 512}\nv_lshrrev_b32 v60, 3, v0\nv_lshl_add_u32 v60, v60, 4, {sA}')
            a(f's_lshl_b32 {sA}, {sWAVE}, 2\ns_add_u32 {sA}, {sA}, {L_SF - 16}\nv_mov_b32 v61, {sA}')
            for n, (ad, ext) in enumerate(((AD2, EXT1), (AD, EXT0))):
                score4(ad, 'v56', 'v57')
                for t in range(4):
                    kdot(t, ext, ad)
                pace(2 + n)
                score4(ad, 'v58', 'v59')
                a('s_mov_b32 exec_lo, 0x01010101\ns_mov_b32 exec_hi, 0x01010101')
                a(f'ds_write_b128 v60, v[56:59] offset:{n * 512}\ns_mov_b64 exec, 1\nds_write_b32 v61, {vONE} offset:{n * 16}\ns_mov_b64 exec, -1')
        else:
            softmax4(AD2)
            for t in range(4):
                vdot(t, EXT1)
            pace(2)
            softmax4(AD)
            for t in range(4):
                vdot(t, EXT0)
            pace(3)
        if not FS:
            stamp(4)
    else:
        for t in range(4):
            a('s_waitcnt vmcnt(9)')
            kdot(t, RING, AD)
            ld_tile(t, SV, sCUR)
        a(f's_mov_b32 {sLD}, 1\ns_mov_b32 {sST}, {sWAVE}\nv_mov_b32 {vE}, {L_TAB + 8}')
        for t in range(4):
            kdot(t, EXT0, AD2)
        softmax4(AD2)
        for t in range(4):
            vdot(t, EXT1)
        if not FS:
            stamp(4)
        a('s_branch L_mid')

    SC, vSA, vSF, vSG = AD2, f'v{AD2 + 4}', f'v{AD2 + 5}', f'v{AD2 + 6}'

    def put_scores():
        score4(AD, f'v{SC + 2}', f'v{SC + 3}')
        a('s_mov_b32 exec_lo, 0x01010101\ns_mov_b32 exec_hi, 0x01010101')
        a(f'ds_write_b128 {vSA}, v[{SC}:{SC + 3}]\ns_mov_b64 exec, 1\nds_write_b32 {vSF}, {vONE}\ns_mov_b64 exec, -1')

    def body(m):
        x = ('', 'k', 'v')[m]
        a(f'L_item{x}:')
        if m:
            a(f's_lshl_b32 {sA}, {sSL}, 7\ns_add_u32 {sA}, {sA}, {L_SC}\nv_lshrrev_b32 {vSA}, 3, v0\nv_lshl_add_u32 {vSA}, {vSA}, 4, {sA}')
            a(f's_lshl_b32 {sA}, {sSL}, 2\ns_add_u32 {sA}, {sA}, {L_SF}\nv_mov_b32 {vSF}, {sA}')
        if m == 2:
            a(f'ds_read_b32 {vSG}, {vSF}\nds_read_b128 v[{SC}:{SC + 3}], {vSA}')
        for t in range(4):
            if t == 2:
                draw(F_T1)
            if t == 3:
                a(f's_waitcnt vmcnt(4)\ns_cmp_eq_u32 {sLD}, 0\ns_cbranch_scc1 L_k3{x}')
            a('s_waitcnt vmcnt(3)')
            if t == 3:
                a(f'L_k3{x}:')

            def issue():
                if t == 2:
                    take_ticket()
                    a(f's_and_b32 {sLD}, {sST}, 3\ns_cmp_lt_u32 {sST}, {NSTAT * 4 - 12}\ns_cselect_b32 {sLD}, 1, {sLD}')
                    a(f's_cmp_lg_u32 {sLD}, 0\ns_cbranch_scc1 L_noclaim{x}')
                    claim('v4', 0)
                    a(f'L_noclaim{x}:')
                skip = P16 and t < 2 and m == (1 if PH else 0)
                if skip:
                    a(f's_cmp_eq_u32 {sMODE}, 2\ns_cbranch_scc1 L_k{t}{x}')
                ld_tile((t + 2) % 4, SK if t < 2 else SV, sCUR)
                if skip:
                    a(f'L_k{t}{x}:')

            def comp():
                if m != 2:
                    return kdot(t, RING, AD)
                if t == 0:
                    a(f'L_scw:\ns_waitcnt lgkmcnt(0)\nv_readfirstlane_b32 {sA}, {vSG}\ns_nop 1\ns_cmp_eq_u32 {sA}, 0\ns_cbranch_scc1 L_scs')
                    weigh4(f'v{SC}', f'v{SC + 1}')
                vdot(t, RING)
            step(t, comp, issue)
        if PS:
            ld_tile(2, SV, sCUR)
        a(f'L_mid{x}:')
        if m == 0:
            softmax4(AD)
        elif m == 1:
            score4(AD, f'v{SC}', f'v{SC + 1}')
        else:
            weigh4(f'v{SC + 2}', f'v{SC + 3}')
        for t in range(4):
            a(f's_waitcnt vmcnt({6 if PS and t == 0 else 3})')
            if t == 0:
                a(f's_cmp_lg_u32 {sLD}, 0\ns_cbranch_scc1 L_nopub{x}')
                publish('v4', NSTAT * 32 + 1)
                a(f'L_nopub{x}:')
            if t == 2:
                a(f's_mov_b64 exec, 1\nds_read_b32 {vE2}, {vE}\ns_mov_b64 exec, -1')

            def issue():
                if t < 2:
                    if not (PS and t == 0):
                        if not P16:
                            a(f's_cmp_eq_u32 {sMODE}, 2\ns_cbranch_scc1 L_v{t}')
                        ld_tile(t + 2, SV, sCUR)
                        a(f'L_v{t}{x}:')
                    return
                if t == 2:
                    a(f's_waitcnt lgkmcnt(0)\nv_readfirstlane_b32 {sA}, {vE2}\ns_mov_b32 {sMODE}, 0\ns_nop 0')
                    resolve(f'L_sp0{x}', sST)
                    a(f's_cmp_ge_u32 {sA}, {NBIG}\ns_cbranch_scc1 ' + ('L_ktrans' if m == 1 else 'L_trans'))
                    item_addr(sCUR, sA, sNB, PH)
                ld_tile(t - 2, SK, sCUR)
            step(4 + t, (lambda: kdot(t, RING, AD)) if m == 1 else (lambda: vdot(t, RING)), issue)
        if m == 1:
            put_scores()

    if PH:
        assert ISS == 'bbbbbbbb'
        body(1)
        if PHA:
            a(f's_cmp_lg_u32 {sKM}, 1\ns_cbranch_scc1 L_nk\ns_cmp_eq_u32 {sNB}, {sQB}\ns_cbranch_scc1 L_itemk')
            a(f's_sub_u32 {sA}, {sNB}, {sCB}\ns_mul_i32 {sA}, {sA}, 384\nv_add_u32 {vSG}, {sA}, v5\ns_mov_b32 {sQB}, {sNB}')
            load_q(vSG)
            a('s_waitcnt lgkmcnt(0)\ns_branch L_itemk\nL_nk:')
        a(f's_cmp_lg_u32 {sNB}, {sCB}\ns_cbranch_scc1 L_flush')
        a(f'L_next:\ns_cmp_eq_u32 {sKM}, 1\ns_cbranch_scc1 L_itemk\ns_cmp_eq_u32 {sKM}, 0\ns_cbranch_scc1 L_item')
        body(2)
        a(f's_cmp_eq_u32 {sNB}, {sCB}\ns_cbranch_scc1 L_next\ns_branch L_flush')
        a(f'L_scs:\nds_read_b32 {vSG}, {vSF}\nds_read_b128 v[{SC}:{SC + 3}], {vSA}\ns_branch L_scw')
        a('L_ktrans:\ns_waitcnt vmcnt(0)')
        kdot(2, RING, AD)
        kdot(3, RING, AD)
        put_scores()
        for k in range(4, 8):
            a(f'v_mov_b32 v{P + k}, 0')
        a('s_branch L_trans')
    body(0)
    a(f's_cmp_eq_u32 {sNB}, {sCB}\ns_cbranch_scc1 L_item')

    FA, FB, vCMP = 'v48', 'v53', 'v57'

    def flush_addr():
        a(f'v_and_b32 {FA}, 7, v0\nv_lshlrev_b32 {FA}, 5, {FA}\nv_lshrrev_b32 {FB}, 4, v0\nv_lshl_add_u32 {FA}, {FB}, 3, {FA}')
        a(f'v_add_u32 {FA}, {sPB}, {FA}\nv_mov_b32 {FB}, {sPB}')

    def unify():
        allreduce('v_max_f32', t0, t3, low=False)
        a(f'v_sub_f32 {t2}, {vMC}, {t0}\nv_exp_f32 {t2}, {t2}\nv_mov_b32 {vMC}, {t0}\nv_mul_f32 {vL}, {vL}, {t2}')
        for i in range(12):
            a(f'v_pk_mul_f32 v[{ACC + 2 * i}:{ACC + 2 * i + 1}], v[{ACC + 2 * i}:{ACC + 2 * i + 1}], v[{TM + 2}:{TM + 3}] op_sel_hi:[1,0]')
    a('L_flush:')
    a(f'v_mov_b32 {t0}, {vMC}')
    flush_addr()
    unify()
    a('L_flush2:')
    for sw, es, dl in (('v_permlane16_swap_b32', (0, 1, 4, 5), 2), ('v_permlane32_swap_b32', (0, 1), 4)):
        a(f'v_mov_b32 {t3}, {vL}')
        for i in range(3):
            for e in es:
                a(f'{sw} v{ACC + 8 * i + e}, v{ACC + 8 * i + e + dl}')
        a(f'{sw} {vL}, {t3}\nv_add_f32 {vL}, {vL}, {t3}')
        for i in range(3):
            for e in es[::2]:
                r = ACC + 8 * i + e
                a(f'v_pk_add_f32 v[{r}:{r + 1}], v[{r}:{r + 1}], v[{r + dl}:{r + dl + 1}]')
    for r in [vL] + [f'v{ACC + 8 * i + e}' for i in range(3) for e in (0, 1)]:
        a(f'v_add_f32_dpp {r}, {r}, {r} row_ror:8 {DPPM}')
    for i in range(3):
        a(f'ds_write_b64 {FA}, v[{ACC + 8 * i}:{ACC + 8 * i + 1}] offset:{i * 256}')
    a(f's_mov_b64 exec, 1\nds_write_b64 {FB}, v[6:7] offset:768\nds_add_rtn_u32 v56, {vFL}, {vONE} offset:{F_FL}\ns_mov_b64 exec, -1')
    a(f's_cmp_lg_u32 {sCB}, 3\ns_cbranch_scc1 L_nos1')
    a('L_s1:')
    for w in range(4):
        a(f'ds_read_b64 v[{10 + 2 * w}:{11 + 2 * w}], v47 offset:{w * 4 * PARTP + 768}')
    for w in range(4):
        a(f'ds_read_b128 v[{20 + 4 * w}:{23 + 4 * w}], v46 offset:{w * 4 * PARTP}')
        a(f'ds_read_b64 v[{36 + 2 * w}:{37 + 2 * w}], v51 offset:{w * 4 * PARTP + 512}')
    a('s_waitcnt lgkmcnt(8)')
    if diag:
        a(f's_cmp_lt_u32 {sWAVE}, 4\ns_cbranch_scc1 L_s1y')
        a('s_waitcnt lgkmcnt(0)')
        stamp(2)
        a('L_s1y:')
    a('v_cmp_ne_u32 vcc, 3, v56\ns_bitcmp1_b32 vcc_lo, 0\ns_cbranch_scc1 L_fin')
    a('v_max3_f32 v18, v10, v12, v14\nv_max_f32 v18, v18, v16')
    for w in range(4):
        a(f'v_sub_f32 v{10 + 2 * w}, v{10 + 2 * w}, v18')
    for w in range(4):
        a(f'v_exp_f32 v{10 + 2 * w}, v{10 + 2 * w}')
    a('v_mul_f32 v19, v10, v11')
    for w in range(1, 4):
        a(f'v_fmac_f32 v19, v{10 + 2 * w}, v{11 + 2 * w}')
    a(f'v_max_f32 v19, {f2u(1e-30)}, v19\nv_rcp_f32 v44, v19\nv_log_f32 v19, v19')
    for w in range(4):
        a(f's_waitcnt lgkmcnt({6 - 2 * w})' if w < 3 or not diag else f's_cmp_ge_u32 {sWAVE}, 4\ns_cbranch_scc1 L_s1z\ns_waitcnt lgkmcnt(0)\nL_s1z:')
        for d, x in ((20, 20 + 4 * w), (22, 22 + 4 * w), (36, 36 + 2 * w)):
            d, x, e = f'v[{d}:{d + 1}]', f'v[{x}:{x + 1}]', f'v[{10 + 2 * w}:{11 + 2 * w}]'
            a(f'v_pk_fma_f32 {d}, {x}, {e}, {d} op_sel_hi:[1,0,1]' if w else f'v_pk_mul_f32 {d}, {x}, {e} op_sel_hi:[1,0]')
    a('v_add_f32 v18, v18, v19')
    for d in (20, 22, 36):
        a(f'v_pk_mul_f32 v[{d}:{d + 1}], v[{d}:{d + 1}], v[44:45] op_sel_hi:[1,0]')
    a('v_lshlrev_b32 v18, v50, v18\nv_bfi_b32 v59, v55, v49, v18')
    a('v_cvt_pk_bf16_f32 v56, v20, v21\nv_cvt_pk_bf16_f32 v57, v22, v23\nv_cvt_pk_bf16_f32 v58, v36, v37')
    a('s_mov_b32 exec_hi, 0')
    a(f'buffer_store_dwordx4 v[56:59], v54, {SWS}, s83 offen {STM}')
    a('s_mov_b32 exec_hi, -1')
    if diag:
        a(f's_cmp_lt_u32 {sWAVE}, 4\ns_cbranch_scc1 L_s1x')
        stamp(5)
        a('L_s1x:')
    a(f's_cmp_ge_u32 {sWAVE}, 4\ns_cbranch_scc1 L_fin')
    a(f's_cmp_eq_u32 {sPH}, 1\ns_cbranch_scc1 L_pre4')
    a('s_branch L_disp')
    a('L_nos1:')
    a(f's_cmp_eq_u32 {sCB}, 0\ns_cselect_b32 {sA}, 2, 1\ns_add_u32 {sCB}, {sCB}, {sA}\ns_mul_i32 {sA}, {sA}, 384')
    a('s_waitcnt lgkmcnt(0)')
    if pst:
        for b, k in ((2, 3), (3, 4)):
            a(f's_cmp_lg_u32 {sCB}, {b}\ns_cbranch_scc1 L_st{k}')
            stamp(k)
            a(f'L_st{k}:')
    a(f's_add_u32 {sPB}, {sPB}, {PARTP}')
    a(f'v_add_u32 v5, {sA}, v5\nv_add_u32 {vFL}, 4, {vFL}')
    reset_state()
    a(f's_cmp_lt_u32 {sCB}, {sNB}\ns_cbranch_scc1 L_flush')
    load_q()
    a('s_waitcnt lgkmcnt(0)')
    a(f's_cmp_eq_u32 {sMODE}, 0\ns_cbranch_scc1 ' + ('L_next' if PH else 'L_item'))
    a('s_branch L_small0')

    def small_claim(lab, tmp=sA, back=None):
        a(f's_waitcnt lgkmcnt(0)\nv_readfirstlane_b32 {sTA}, {vT}\ns_nop 1')
        a(f's_and_b32 {tmp}, {sTA}, 3\ns_cbranch_scc1 {lab}')
        claim(vCA, 128)
        a(f's_waitcnt vmcnt(4)\ns_branch {lab}d')
        a(f'{lab}:')
        a('s_waitcnt vmcnt(3)')
        a(f's_branch {back}' if back else f'{lab}d:')

    a('L_trans:')
    if PH:
        a(f's_mov_b64 s[8:9], {pK}\ns_mov_b64 s[12:13], {pV}')
    draw(F_T2)
    a(f's_add_u32 {sROT}, {sROT}, {NBIG - 768 + RB[3]}\ns_lshl_b32 {sROT}, {sROT}, 2')
    a(f's_add_u32 {sA}, {sSB}, {sROT}\ns_and_b32 {sA}, {sA}, 1023\ns_mul_i32 {sA}, {sA}, 3072')
    a(f's_add_u32 {sSB}, {sHB}, {3 * BSTR}\ns_add_u32 {sROT}, {sROT}, 32')
    a(f's_add_u32 {sCUR}, {sSB}, {sA}')
    a(f's_mov_b32 {sMODE}, 1\ns_mov_b32 {sNB}, 3')
    ld_one(0, SK, sCUR)
    if ISS[6] == 'b':
        vdot(2, RING)
    small_claim('L_tr')
    step(7, lambda: vdot(3, RING), lambda: ld_one(1, SV, sCUR))
    stamp(6)
    a(f's_cmp_lg_u32 {sCB}, 3\ns_cbranch_scc1 L_flush')
    a('L_small0:')
    s1_setup(sCB)
    flush_addr()
    a(f'v_mov_b32 {vCMP}, 0x7fc00000')
    if EC:
        a(f's_and_b32 {sA}, {sTA}, 3\ns_cbranch_scc1 L_sm0\ns_waitcnt vmcnt(3)')
    x = s[0]
    last = f's_cmp_ge_u32 {sA}, {SMALL}'
    for par in range(2):
        cur, nxt = 2 * par, 2 - 2 * par
        a(f'L_sm{par}:')
        a(f's_and_b32 {sA}, {sTA}, -4\ns_add_u32 {sA}, {sA}, {L_TAB2}\nv_mov_b32 {vE}, {sA}')
        a(f's_and_b32 {sA}, {sTA}, 3\ns_cbranch_scc1 L_sq{par}')
        a(f's_waitcnt vmcnt({6 if EC else 3})')
        publish(vCA, 1)
        a(f'v_readfirstlane_b32 {sA}, {vCA}')
        a(f'L_sq{par}r:')
        a(f's_and_b32 {sB}, {sTA}, 3\ns_add_u32 {sA}, {sA}, {sB}\ns_sub_u32 {sA}, {sA}, 1')
        spins.append(f'L_sq{par}')
        a(f'{last}\ns_cbranch_scc1 L_nd{par}')
        draw(F_T2)
        a(f's_add_u32 {sB}, {sA}, {sROT}\ns_and_b32 {sB}, {sB}, 1023\ns_mul_i32 {sB}, {sB}, 3072\ns_add_u32 {sCUR}, {sB}, {sSB}')
        if EC:
            a(f's_waitcnt lgkmcnt(0)\nv_readfirstlane_b32 {sTA}, {vT}\ns_nop 1')
            a(f's_and_b32 {sB}, {sTA}, 3\ns_cbranch_scc0 L_cl{par}')
        a(f'{last}\nL_nd{par}:')
        a(f's_waitcnt vmcnt(3)\ns_cbranch_scc1 L_nk{par}')
        a(f'L_ik{par}:')
        ld_one(nxt, SK, sCUR)
        if not EC:
            a(f's_waitcnt lgkmcnt(0)\nv_readfirstlane_b32 {sTA}, {vT}\ns_nop 1')
            a(f's_and_b32 {sB}, {sTA}, 3\ns_cbranch_scc1 L_nk{par}')
            claim(vCA, 128)
        a(f'L_nk{par}:')
        kdot(0, RING + 12 * cur, AD)
        a(f'v_add_f32 {x}, v{AD}, v{AD + 1}')
        for mode in ('quad_perm:[1,0,3,2]', 'quad_perm:[2,3,0,1]', 'row_half_mirror'):
            a(f'v_add_f32_dpp {x}, {x}, {x} {mode} {DPPM}')
        a(f'v_cvt_pk_bf16_f32 {x}, 0, {x}\nv_mul_f32 {x}, {f2u(192 ** -0.5)}, {x}\nv_cvt_pk_bf16_f32 {x}, 0, {x}')
        a(f'v_mul_f32 {t0}, {sLOG2E}, {x}\nv_cmp_nle_f32 vcc, {t0}, {vCMP}\ns_cbranch_vccnz L_nm{par}')
        a(f'L_mo{par}:')
        a(f'v_fma_f32 {x}, {x}, {sLOG2E}, -{vMC}\nv_exp_f32 {x}, {x}')
        a(last)
        a(f'v_cvt_pk_bf16_f32 v{P + 2}, {x}, 0\nv_cvt_pk_bf16_f32 v{P + 3}, 0, {x}\nv_add_f32 {vL}, {vL}, v{P + 3}')
        a(f's_cbranch_scc0 L_nl{par}\ns_waitcnt vmcnt(0)')
        a(f'L_vd{par}:')
        vdot(1, RING + 12 * cur)
        a(f'{last}\ns_cbranch_scc1 L_flush2')
    a('s_branch L_sm0')
    for par in range(2):
        a(f'L_nl{par}:')
        a(f's_waitcnt vmcnt(4)\ns_and_b32 {sB}, {sTA}, 3\ns_cbranch_scc0 L_nv{par}\ns_waitcnt vmcnt(3)\nL_nv{par}:')
        ld_one(3 - 2 * par, SV, sCUR)
        a(f's_branch L_vd{par}')
        if EC:
            a(f'L_cl{par}:')
            claim(vCA, 128)
            a(f's_waitcnt vmcnt(4)\ns_branch L_ik{par}')
        a(f'L_nm{par}:')
        a(f'v_max_f32 {t0}, {t0}, {vMC}')
        unify()
        a(f'v_mov_b32 {vCMP}, {vMC}\ns_branch L_mo{par}')
    for lab in spins:
        a(f'{lab}:')
        a(f's_mov_b64 exec, 1\nds_read_b32 {vE2}, {vE}\ns_mov_b64 exec, -1')
        a(f's_waitcnt lgkmcnt(0)\nv_readfirstlane_b32 {sA}, {vE2}\ns_nop 1')
        a(f's_cmp_eq_u32 {sA}, 0\ns_cbranch_scc1 {lab}')
        a(f's_branch {lab}r')

    a('L_fin:')
    if diag:
        a('s_waitcnt vmcnt(0)')
        stamp(7)
        a('s_mov_b64 exec, -1')
        if lstamp:
            a(f'v_mov_b32 v3, {L_FLAG}')
            lds_wait('L_stw', 'v10', 'v3', F_FL + 12, 4, 64)
            a('s_sleep 127\ns_sleep 127')
        a('s_load_dwordx2 s[8:9], s[0:1], 96')
        a('s_getreg_b32 s62, hwreg(20, 0, 4)')
        a('s_waitcnt lgkmcnt(0)')
        a('s_add_u32 s8, s8, 0x40000000\ns_addc_u32 s9, s9, 0\ns_mov_b32 s10, 0x200000\ns_mov_b32 s11, 0x20000')
        a(f's_lshl_b32 {sA}, s2, 3\ns_add_u32 {sA}, {sA}, {sWAVE}')
        a(f's_lshl_b32 {sB}, {sA}, 5\nv_mov_b32 v1, {sB}')
        a(f's_lshl_b32 {sB}, {sA}, 6\ns_add_u32 {sB}, {sB}, 0x100000\nv_mov_b32 v2, {sB}')
        a('v_mov_b32 v4, s84\nv_mov_b32 v5, s85\nv_mov_b32 v6, s98\nv_mov_b32 v7, s99')
        a(f'v_mov_b32 v8, s62\nv_mov_b32 v9, 0\nv_mov_b32 v10, s96\nv_mov_b32 v11, s97')
        for i in range(16):
            a(f'v_mov_b32 v{12 + i}, s{84 + i}')
        a('s_mov_b64 exec, 1')
        a('buffer_store_dwordx4 v[4:7], v1, s[8:11], 0 offen')
        a('buffer_store_dwordx4 v[8:11], v1, s[8:11], 0 offen offset:16')
        for i in range(4):
            a(f'buffer_store_dwordx4 v[{12 + 4 * i}:{15 + 4 * i}], v2, s[8:11], 0 offen offset:{16 * i}')
    a('L_end:')
    a('s_endpgm')

    ref = open(f'cdna_kernels/{NAME}.s.ref').read().split('\n')
    head = [x for x in ref if x.startswith(';') and '@launch' not in x and not x.startswith('; Override') and not x.startswith('; grid=')]
    out = '\n'.join(head) + f'\n; @launch grid=(256,1,1) block=(512,1,1) lds={LDS_SZ}\n'
    out += f'.amdgcn_target "amdgcn-amd-amdhsa--gfx950"\n.text\n.globl {KERN}\n.p2align 8\n.type {KERN},@function\n'
    out += a.text() + '\n'
    out += f'''.section .rodata,"a"
.p2align 6
.amdhsa_kernel {KERN}
  .amdhsa_next_free_vgpr 256
  .amdhsa_next_free_sgpr 102
  .amdhsa_accum_offset 256
  .amdhsa_group_segment_fixed_size 0
  .amdhsa_kernarg_size 104
  .amdhsa_user_sgpr_count 2
  .amdhsa_user_sgpr_kernarg_segment_ptr 1
  .amdhsa_system_sgpr_workgroup_id_x 1
.end_amdhsa_kernel
'''
    return out


if __name__ == '__main__':
    kw = eval('dict(' + (sys.argv[2] if len(sys.argv) > 2 else '') + ')')
    open(sys.argv[1], 'w').write(gen(**kw))
```
